```python
import torch

def _softmax(x, axis=-1):
    return torch.softmax(x, dim=axis)
def _gelu(x):
    return torch.nn.functional.gelu(x, approximate="tanh")
def _silu(x):
    return torch.nn.functional.silu(x)
def _sigmoid(x):
    return torch.sigmoid(x)
def _layernorm(x, axis=-1, eps=1e-5):
    m = x.mean(dim=axis, keepdim=True)
    v = x.var(dim=axis, keepdim=True, unbiased=False)
    return (x - m) / torch.sqrt(v + eps)
def _scatter_add(tgt, idx, src, axis=0):
    return tgt.clone().index_add_(axis, idx, src)
def _segment_sum(src, seg, n):
    out = torch.zeros((n,) + src.shape[1:], dtype=src.dtype)
    return out.index_add_(0, seg, src)
def _pad(x, pw):
    flat = tuple(v for pair in reversed(pw) for v in pair)
    return torch.nn.functional.pad(x, flat)

kernel_name = 'sequential_preLN__mha_block_cached__geglu_ffn__decode'

def setup_inputs():

    _w = (lambda a: (lambda t: t.to(torch.bfloat16) if t.is_floating_point() else t)(torch.as_tensor(a)))
    def _A_setup():
        B, Sq, D = 2, 1, 640
        H, Sk, Dh = 32, 8192, 128
        return {
            "x": _w((lambda *s: torch.randn(*s, dtype=torch.bfloat16) * 0.05)(B, Sq, D)),
            "k_cache": _w((lambda *s: torch.randn(*s, dtype=torch.bfloat16) * 3.2)(B, H, Sk, Dh)),
            "v_cache": _w((lambda *s: torch.randn(*s, dtype=torch.bfloat16) * 0.4)(B, H, Sk, Dh)),
            "wq": _w((lambda *s: torch.randn(*s, dtype=torch.bfloat16) * 3.2)(D, H * Dh) * (D ** -0.5)),
            "wo": _w((lambda *s: torch.randn(*s, dtype=torch.bfloat16) * 0.4)(H * Dh, D) * ((H * Dh) ** -0.5)),
        }
    _A_in = _A_setup()

    def _B_setup():
        B, S, D, F = 2, 1, 640, 1728
        return {
            "x": _w((lambda *s: torch.randn(*s, dtype=torch.bfloat16) * 0.05)(B, S, D)),
            "w_gate": _w((lambda *s: torch.randn(*s, dtype=torch.bfloat16) * 0.05)(D, F)),
            "w_up": _w((lambda *s: torch.randn(*s, dtype=torch.bfloat16) * 0.05)(D, F)),
            "w_down": _w((lambda *s: torch.randn(*s, dtype=torch.bfloat16) * 0.05)(F, D)),
        }
    _B_in = _B_setup()

    return {
        "A_x": _A_in["x"],
        "A_k_cache": _A_in["k_cache"],
        "A_v_cache": _A_in["v_cache"],
        "A_wq": _A_in["wq"],
        "A_wo": _A_in["wo"],
        "B_x": _B_in["x"],
        "B_w_gate": _B_in["w_gate"],
        "B_w_up": _B_in["w_up"],
        "B_w_down": _B_in["w_down"],
    }

def reference(A_x, A_k_cache, A_v_cache, A_wq, A_wo, B_x, B_w_gate, B_w_up, B_w_down):
    def _A_ref(x, k_cache, v_cache, wq, wo):
        B, Sq, D = x.shape
        H, Dh = 32, 128
        q = (lambda x, *d: x.permute(*d))((x @ wq).reshape(B, Sq, H, Dh), 0, 2, 1, 3)
        scores = torch.einsum("bhqd,bhkd->bhqk", q, k_cache) * (Dh ** -0.5)
        p = _softmax(scores, axis=-1)
        o = torch.einsum("bhqk,bhkd->bhqd", p, v_cache)
        return (lambda x, *d: x.permute(*d))(o, 0, 2, 1, 3).reshape(B, Sq, H * Dh) @ wo

    def _B_ref(x, w_gate, w_up, w_down):
        return (_gelu(x @ w_gate) * (x @ w_up)) @ w_down

    x = A_x
    h = x + _A_ref(_layernorm(x, axis=-1), A_k_cache, A_v_cache, A_wq, A_wo)
    h2 = h + _B_ref(_layernorm(h, axis=-1), B_w_gate, B_w_up, B_w_down)
    return h2
```

```python
import re

TRANS = ("v_exp_f32", "v_log_f32", "v_rcp_f32", "v_rsq_f32", "v_sqrt_f32", "v_sin_f32", "v_cos_f32")

def regs_of(tok):
    tok = tok.strip()
    tok = tok.lstrip("-")
    if tok.startswith("abs(") and tok.endswith(")"): tok = tok[4:-1]
    if tok.startswith("|") and tok.endswith("|"): tok = tok[1:-1]
    m = re.fullmatch(r"([vsa])(\d+)", tok)
    if m: return {(m.group(1), int(m.group(2)))}
    m = re.fullmatch(r"([vsa])\[(\d+):(\d+)\]", tok)
    if m: return {(m.group(1), i) for i in range(int(m.group(2)), int(m.group(3)) + 1)}
    if tok == "vcc": return {("s", "vcc_lo"), ("s", "vcc_hi")}
    if tok in ("vcc_lo", "vcc_hi"): return {("s", tok)}
    if tok == "exec": return {("s", "exec_lo"), ("s", "exec_hi")}
    if tok == "m0": return {("s", "m0")}
    return set()

def split_ops(rest):
    out, depth, cur = [], 0, ""
    for ch in rest:
        if ch in "[(": depth += 1
        if ch in "])": depth -= 1
        if ch == "," and depth == 0:
            out.append(cur.strip()); cur = ""
        else: cur += ch
    if cur.strip(): out.append(cur.strip())
    return out

class Ins:
    def __init__(self, text):
        self.text = text
        t = text.split(";")[0].strip()
        self.label = None
        self.op = None
        if not t or t.startswith("."):
            self.kind = "dir"; return
        if t.endswith(":"):
            self.kind = "label"; self.label = t[:-1]; return
        p = t.split(None, 1)
        self.op = op = p[0]
        ops = split_ops(p[1]) if len(p) > 1 else []
        if ops:
            last = ops[-1].split()
            self.mods = " ".join(last[1:])
            ops[-1] = last[0]
        else: self.mods = ""
        self.ops = ops
        R = [regs_of(o) for o in ops]
        self.w, self.r = set(), set()
        self.srcc = set()
        self.dpp = "_dpp" in op
        self.states = 1
        if op.startswith("v_mfma"):
            self.kind = "mfma"
            self.w = R[0]; self.ab = R[1] | R[2]; self.srcc = R[3]; self.r = self.ab | self.srcc
            self.passes = 8 if "32x32x16" in op or "16x16x4_f32" in op else 4
        elif op.startswith("v_"):
            self.kind = "valu"
            if "permlane" in op and "swap" in op:
                self.w = R[0] | R[1]; self.r = R[0] | R[1]
            elif op.startswith(("v_add_co", "v_sub_co", "v_addc_co", "v_subb_co")):
                self.w = R[0] | R[1]; self.r = set().union(*R[2:])
            else:
                self.w = R[0]; self.r = set().union(*R[1:]) if len(R) > 1 else set()
                if op.startswith(("v_fmac", "v_dot2c", "v_writelane")) or self.dpp: self.r |= R[0]
                if op.startswith("v_cndmask") and len(ops) == 3: self.r |= regs_of("vcc")
        elif op.startswith(("buffer_", "global_")):
            self.kind = "vmem"
            isload = "_load" in op
            if op.startswith("buffer_"):
                if isload: self.w = R[0]; self.r = set().union(*R[1:])
                else: self.r = set().union(*R); self.sdata = R[0]
                if "atomic" in op and "sc0" in self.mods: self.w = R[0]
            else:
                if isload: self.w = R[0]; self.r = set().union(*R[1:])
                else: self.r = set().union(*R); self.sdata = R[1]
            self.wide = (not isload) and ("x3" in op or "x4" in op)
        elif op.startswith("ds_"):
            self.kind = "ds"
            if "read" in op or "rtn" in op or "permute" in op or "swizzle" in op:
                self.w = R[0]; self.r = set().union(*R[1:])
            else: self.r = set().union(*R)
        elif op.startswith("s_"):
            self.kind = "salu"
            if op == "s_nop": self.states = int(ops[0], 0) + 1
            elif op.startswith(("s_cmp", "s_cbranch", "s_branch", "s_waitcnt", "s_barrier", "s_sleep", "s_setprio", "s_endpgm", "s_bitcmp")):
                self.r = set().union(*R) if R else set()
            else:
                self.w = R[0] if R else set(); self.r = set().union(*R[1:]) if len(R) > 1 else set()
            self.target = ops[0] if op.startswith(("s_cbranch", "s_branch")) else None
        else:
            raise ValueError("unknown instruction: " + text)

def isv(s): return {x for x in s if x[0] in "va"}
def iss(s): return {x for x in s if x[0] == "s"}

def need(p, c):
    n = 0
    if p.kind == "valu":
        vw, sw = isv(p.w), iss(p.w)
        if c.kind == "valu":
            if c.dpp and vw & c.r: n = max(n, 2)
            if "permlane" in c.op and vw & c.r: n = max(n, 2)
            if c.op.startswith(("v_readlane", "v_readfirstlane")) and vw & c.r: n = max(n, 1)
            if sw & c.r: n = max(n, 4 if c.op.startswith(("v_readlane", "v_writelane")) else 2)
            if p.op.startswith(TRANS) and vw & c.r: n = max(n, 1)
        if c.kind == "mfma" and vw & c.r: n = max(n, 2)
        if c.kind == "vmem" and sw & c.r: n = max(n, 5)
        if c.kind == "salu" and sw & c.r: n = max(n, 1)
        if c.kind == "salu" and c.op.startswith("s_cbranch_vcc") and ("s", "vcc_lo") in sw: n = max(n, 1)
        if p.op.startswith(TRANS) and c.kind in ("vmem", "ds") and vw & c.r: n = max(n, 1)
    if p.kind == "mfma":
        big = {4: 8, 8: 12}[p.passes]
        if c.kind == "mfma":
            if p.w & c.ab: n = max(n, big)
            if p.w & c.srcc and not (p.w == c.srcc and p.passes == c.passes): n = max(n, big - 2)
            if p.w & c.w and not (p.w & c.srcc): n = max(n, big - 2)
        elif c.kind in ("valu", "vmem", "ds"):
            if p.w & (c.r | c.w): n = max(n, big)
            if c.kind == "valu" and p.srcc & c.w: n = max(n, {4: 3, 8: 7}[p.passes])
    if p.kind == "vmem" and getattr(p, "wide", False):
        if c.kind in ("valu", "mfma") and p.sdata & c.w: n = max(n, 2)
        if c.kind in ("vmem", "ds") and p.sdata & c.w: n = max(n, 1)
    if p.kind == "salu" and ("s", "m0") in p.w and c.kind == "vmem" and "lds" in c.mods: n = max(n, 1)
    return n

WINDOW = 13

def fix_hazards(lines):
    ins = [Ins(l) for l in lines]
    label_in = {}
    for it in range(6):
        out, state, new_in, alive = [], [], {}, True
        def merge(a, b):
            d = {}
            for (p, age) in a + b:
                d[id(p)] = (p, min(age, d[id(p)][1])) if id(p) in d else (p, age)
            return list(d.values())
        for i in ins:
            if i.kind == "dir":
                out.append(i.text); continue
            if i.kind == "label":
                cur = state if alive else []
                state = merge(merge(cur, label_in.get(i.label, [])), new_in.get(i.label, []))
                alive = True
                out.append(i.text); continue
            k = max([need(p, i) - age for (p, age) in state] + [0])
            if k > 0:
                out.append(f"    s_nop {k-1}")
                state = [(p, age + k) for (p, age) in state]
            out.append(i.text)
            state = [(p, age + i.states) for (p, age) in state if age + i.states < WINDOW]
            if i.kind in ("valu", "mfma", "vmem") or (i.kind == "salu" and ("s", "m0") in i.w):
                state.append((i, 0))
            if i.kind == "salu" and getattr(i, "target", None):
                new_in[i.target] = merge(new_in.get(i.target, []), state)
                if i.op == "s_branch": alive = False
            if i.op == "s_endpgm": alive = False
        key = lambda d: {l: sorted((id(p), a) for p, a in v) for l, v in d.items()}
        merged = {l: merge(new_in.get(l, []), label_in.get(l, [])) for l in set(new_in) | set(label_in)}
        if key(merged) == key(label_in): break
        label_in = merged
    return out

class Asm:
    def __init__(self):
        self.lines = []
        self.nlab = 0
    def __call__(self, text):
        for l in text.split("\n"):
            l = l.strip()
            if not l: continue
            self.lines.append(l if l.endswith(":") or l.startswith((".", ";")) else "    " + l)
    def lab(self, base):
        self.nlab += 1
        return f"L_{base}_{self.nlab}"
    def finish(self):
        return fix_hazards(self.lines)
```

```python
import sys, struct
from asmlib import Asm

NAME = "sequential_preLN__mha_block_cached__geglu_ffn__decode"
def f2u(x): return struct.unpack("<I", struct.pack("<f", x))[0]
def hx(x): return "0x%08x" % (x & 0xffffffff)

TT, ML, QP, OPA, OPB, YP, DP, DIAG, WSZ = 0x1000, 0x2000, 0x10000, 0x90000, 0xD0000, 0x110000, 0x120000, 0x180000, 0x200000
OOB = 0x7ff00000
QRED, QF, CNT, CLR, STAT, ORED, YRED, GRED, HTAB, LDSZ = 0, 4096, 4608, 4624, 4864, 5120, 9216, 11264, 13312, 24576
sK, sV, sWS, sX, sWQ, sWO, sWG, sWU, sWD, sOUT = [f"s[{n}:{n+3}]" for n in range(32, 72, 4)]
DPPM = "row_mask:0xf bank_mask:0xf"
LOG2E = f2u(1.4426950408889634)
SPIN = 0x10000

def gen(depth=5, taildepth=8, tailfrom=230, P=32, budget=56, diag=False, pre3=8, wthr=2, fast=True, ml0=116, ml1=182):
    a = Asm()
    kname = NAME + "_kernel"
    def stamp(k):
        if diag: a(f"s_memrealtime s[{8+2*k}:{9+2*k}]")
    def dump_stamps():
        if not diag: return
        a("s_waitcnt lgkmcnt(0)")
        a("s_mov_b64 exec, 1")
        a("s_lshl_b32 s90, s6, 3\ns_add_u32 s90, s90, s3\ns_lshl_b32 s90, s90, 6")
        a(f"s_add_u32 s90, s90, {DIAG}")
        a("v_mov_b32 v5, 0")
        for k in range(11):
            a(f"v_mov_b32 v{112+k}, s{8+2*k}")
        a("v_mov_b32 v123, s78")
        for q in range(3):
            a(f"buffer_store_dwordx4 v[{112+4*q}:{115+4*q}], v5, {sWS}, s90 offen offset:{16*q}")
    def srd(n, p, size):
        a(f"s_mov_b32 s{n}, s{p}\ns_mov_b32 s{n+1}, s{p+1}\ns_mov_b32 s{n+2}, {hx(size)}\ns_mov_b32 s{n+3}, 0x20000")
    def bfr(d, s):
        a(f"v_cvt_pk_bf16_f32 v{d}, v{s}, v{s}\nv_and_b32 v{d}, 0xffff0000, v{d}")
    def mask64(n, v):
        a(f"s_mov_b32 s{n}, {hx(v)}\ns_mov_b32 s{n+1}, {hx(v >> 32)}")
    def spin_begin(base):
        L = a.lab(base); a(f"s_mov_b32 s79, {SPIN}"); a(L + ":"); return L
    def spin_end(L, sleep=0):
        Ld = L + "_d"
        a(f"s_cbranch_vccz {Ld}")
        if sleep == "first":
            a(f"s_cmp_lg_u32 s98, 0\ns_cbranch_scc1 {L}_n\ns_sleep 8\n{L}_n:")
        elif sleep: a(f"s_sleep {sleep}")
        a(f"s_sub_u32 s79, s79, 1\ns_cbranch_scc0 {L}")
        a(Ld + ":")
    def sent_check(regs, t):
        regs = list(regs)
        if len(regs) == 1:
            a(f"v_cmp_eq_u32 vcc, -1, v{regs[0]}"); return
        first = True
        while regs:
            if first:
                if len(regs) >= 3: a(f"v_max3_u32 v{t}, v{regs[0]}, v{regs[1]}, v{regs[2]}"); regs = regs[3:]
                else: a(f"v_max_u32 v{t}, v{regs[0]}, v{regs[1]}"); regs = regs[2:]
                first = False
            elif len(regs) >= 2: a(f"v_max3_u32 v{t}, v{t}, v{regs[0]}, v{regs[1]}"); regs = regs[2:]
            else: a(f"v_max_u32 v{t}, v{t}, v{regs[0]}"); regs = regs[1:]
        a(f"v_cmp_eq_u32 vcc, -1, v{t}")
    def rows_allreduce(op, v, t, both=True):
        a(f"v_mov_b32 v{t}, v{v}\nv_permlane16_swap_b32 v{v}, v{t}\n{op} v{v}, v{v}, v{t}")
        if both: a(f"v_mov_b32 v{t}, v{v}\nv_permlane32_swap_b32 v{v}, v{t}\n{op} v{v}, v{v}, v{t}")
    def half_masks(first, esrc, t0):
        a(f"v_and_b32 v{t0}, 1, v{esrc}\nv_lshlrev_b32 v{t0}, 4, v{t0}\nv_mov_b32 v{t0+1}, 0xffff\nv_lshlrev_b32 v{t0}, v{t0}, v{t0+1}")
        a(f"v_lshrrev_b32 v{t0+1}, 1, v{esrc}")
        for r in range(4):
            a(f"v_cmp_eq_u32 vcc, {r}, v{t0+1}\nv_cndmask_b32 v{first+r}, 0, v{t0}, vcc")

    a(f".text\n.globl {kname}\n.p2align 8\n.type {kname},@function\n{kname}:")
    a("s_cmp_ge_u32 s2, 256\ns_cbranch_scc1 L_exit")
    a("s_load_dwordx16 s[8:23], s[0:1], 0\ns_load_dwordx8 s[24:31], s[0:1], 64")
    a("s_getpc_b64 s[4:5]\nL_pc:")
    a("v_lshlrev_b32 v4, 7, v0\nv_min_u32 v4, L_code_end-L_pc-4, v4")
    a("global_load_dword v4, v4, s[4:5]")
    a("v_lshrrev_b32 v5, 6, v0\nv_and_b32 v1, 63, v0\nv_readfirstlane_b32 s3, v5")
    a("s_and_b32 s72, s2, 7\ns_lshr_b32 s73, s2, 3\ns_lshl_b32 s6, s72, 5\ns_add_u32 s6, s6, s73")
    a("s_lshr_b32 s74, s6, 3\ns_and_b32 s75, s6, 7\ns_and_b32 s76, s3, 3")
    a("s_getreg_b32 s78, hwreg(HW_REG_XCC_ID, 0, 4)")
    a("v_lshlrev_b32 v5, 4, v0\nv_mov_b32 v112, -1\nv_mov_b32 v113, -1\nv_mov_b32 v114, -1\nv_mov_b32 v115, -1")
    for k in range(LDSZ // 8192):
        a(f"ds_write_b128 v5, v[112:115] offset:{k*8192}")
    a("v_and_b32 v6, 15, v1\nv_lshrrev_b32 v7, 4, v1")
    a("s_cmp_lt_u32 s3, 4\ns_cbranch_scc1 L_aux")

    a("s_setprio 2")
    a("v_bfe_u32 v8, v1, 2, 2\nv_lshlrev_b32 v8, 8, v8\nv_lshl_or_b32 v8, v7, 6, v8\nv_and_b32 v9, 3, v1\nv_lshl_or_b32 v2, v9, 4, v8")
    a("s_lshl_b32 s7, s6, 18\ns_lshl_b32 s79, s76, 12\ns_add_u32 s7, s7, s79")
    a("v_add_u32 v2, s7, v2\nv_lshl_add_u32 v3, v1, 4, s7")
    a("s_waitcnt lgkmcnt(0)")
    srd(32, 10, 1 << 27); srd(36, 12, 1 << 27); srd(40, 30, WSZ)
    a("s_load_dword s77, s[30:31], 0")
    RING, NB = 128, 32
    BK, DK, ACC, BV, MLB, MLS, RMAX, S = 16, 32, 40, 44, 52, 56, 60, [64, 80]
    vm = ["code"]
    landed = [-1]
    def wait_vm(idx):
        if idx > landed[0]:
            a(f"s_waitcnt vmcnt({len(vm) - 1 - idx})"); landed[0] = idx
    ld_idx = {}
    cur_so = [None]
    def issue(i):
        ph, n = divmod(i, 64)
        b, isv = ph & 1, ph >> 1
        so = (b << 26) + (n >> 2) * 16384
        if cur_so[0] != so:
            a(f"s_mov_b32 s7, {hx(so)}"); cur_so[0] = so
        r = RING + (i % NB) * 4
        a(f"buffer_load_dwordx4 v[{r}:{r+3}], {'v3' if isv else 'v2'}, {sV if isv else sK}, s7 offen offset:{(n & 3) * 1024} nt")
        ld_idx[i] = len(vm); vm.append(("ld", i))

    items = []
    def add(cost, needs, fn): items.append((cost, needs, fn))
    def it_setup():
        half_masks(10, 6, 8)
        for t in range(4): mask64(80 + 2 * t, 0x000F000F000F000F << (4 * t))
        mask64(88, 0x00FF00FF00FF00FF)
        a(f"v_and_b32 v9, 3, v1\nv_lshlrev_b32 v9, 4, v9\nv_lshl_or_b32 v14, v7, 6, v9")
        a(f"v_and_b32 v15, 31, v1\nv_lshlrev_b32 v15, 4, v15")
        a(f"v_lshl_add_u32 v9, v7, 3, v6\nv_lshlrev_b32 v9, 4, v9\ns_lshl_b32 s79, s76, 9\nv_add_u32 v62, s79, v9")
        a(f"s_lshl_b32 s79, s6, 9\nv_add_u32 v63, s79, v15")
        a("v_mov_b32 v61, 0")
        a("s_waitcnt lgkmcnt(0)")
        a("s_mul_i32 s77, s77, 1664525\ns_add_u32 s77, s77, 1013904223")
        a(f"v_mov_b32 v{MLS+1}, s77\nv_mov_b32 v{MLS+3}, s77")
        a(f"s_lshl_b32 s90, s74, 9\ns_add_u32 s90, s90, {ML}")
        a("s_lshl_b32 s91, s75, 2\ns_add_u32 s91, s91, s76\ns_lshl_b32 s91, s91, 4\ns_add_u32 s91, s91, s90")
        a(f"s_mov_b32 s92, {hx(f2u(128 ** -0.5))}\ns_mov_b32 s93, {hx(LOG2E)}")
    def it_qfrag(b):
        def fn():
            L = spin_begin("q")
            a(f"ds_read_b128 v[112:115], v14 offset:{QF + b * 256}\ns_waitcnt lgkmcnt(0)")
            sent_check(range(112, 116), 116)
            spin_end(L, 1)
            if b == 0: stamp(1)
            for t in range(4):
                for r in range(4):
                    a(f"v_cndmask_b32 v{BK + 4*t + r}, 0, v{112 + r}, s[{80+2*t}:{81+2*t}]")
        return fn
    def it_k(i):
        b, n = divmod(i, 64); u, t = n >> 2, n & 3
        def fn():
            r = RING + (i % NB) * 4; d = DK + (u & 1) * 4
            a(f"v_mfma_f32_16x16x32_bf16 v[{d}:{d+3}], v[{r}:{r+3}], v[{BK+4*t}:{BK+4*t+3}], {'0' if t == 0 else f'v[{d}:{d+3}]'}")
        return fn
    def it_kred(b, u):
        def fn():
            d = DK + (u & 1) * 4; s = S[b] + u
            a(f"v_mov_b32_dpp v{s}, v{d} quad_perm:[0,0,0,0] {DPPM}")
            for r in range(1, 4):
                a(f"v_add_f32_dpp v{s}, v{d+r}, v{s} quad_perm:[{r},{r},{r},{r}] {DPPM}")
            bfr(s, s); a(f"v_mul_f32 v{s}, s92, v{s}"); bfr(s, s)
            a(f"v_mov_b32 v{RMAX}, v{s}" if u == 0 else f"v_max_f32 v{RMAX}, v{RMAX}, v{s}")
        return fn
    def it_max(b):
        def fn():
            a(f"v_max_f32_dpp v{RMAX}, v{RMAX}, v{RMAX} row_ror:8 {DPPM}\nv_max_f32_dpp v{RMAX}, v{RMAX}, v{RMAX} row_ror:4 {DPPM}")
            rows_allreduce("v_max_f32", RMAX, 112)
            a(f"v_mov_b32 v{MLS}, v{RMAX}\nv_mov_b32 v{MLS+2}, 0")
        return fn
    def it_sum(b, u0):
        def fn():
            for u in range(u0, u0 + 4): a(f"v_sub_f32 v{112+u-u0}, v{S[b]+u}, v{MLS}")
            for u in range(4): a(f"v_mul_f32 v{112+u}, s93, v{112+u}")
            for u in range(4): a(f"v_exp_f32 v{112+u}, v{112+u}")
            for u in range(4): a(f"v_add_f32 v{MLS+2}, v{MLS+2}, v{112+u}")
        return fn
    def it_mlpub(b):
        def fn():
            l = MLS + 2
            a(f"v_add_f32_dpp v{l}, v{l}, v{l} row_ror:8 {DPPM}\nv_add_f32_dpp v{l}, v{l}, v{l} row_ror:4 {DPPM}")
            rows_allreduce("v_add_f32", l, 112)
            a(f"s_add_u32 s79, s91, {b * 16384}\ns_mov_b64 exec, 1")
            a(f"buffer_store_dwordx4 v[{MLS}:{MLS+3}], v61, {sWS}, s79 offen sc0 sc1\ns_mov_b64 exec, -1")
            vm.append("mlst")
        return fn
    def ml_issue(b):
        a(f"s_add_u32 s94, s90, {b * 16384}")
        a(f"buffer_load_dwordx4 v[{MLB}:{MLB+3}], v15, {sWS}, s94 offen sc1")
        ld_idx[("ml", b)] = len(vm); vm.append("mlld")
    def it_mlget(b):
        def fn():
            Lok, chk = a.lab("mlok"), f"v_cmp_ne_u32 vcc, s77, v{MLB+1}\nv_cmp_ne_u32 s[96:97], s77, v{MLB+3}\ns_or_b64 vcc, vcc, s[96:97]"
            a(chk); a(f"s_cbranch_vccz {Lok}")
            L = spin_begin("ml")
            a(f"buffer_load_dwordx4 v[{MLB}:{MLB+3}], v15, {sWS}, s94 offen sc1\ns_waitcnt vmcnt(0)")
            a(chk); spin_end(L, 2)
            a(Lok + ":")
            M, Ls = MLB + 1, MLB + 2
            a(f"v_max_f32_dpp v{M}, v{MLB}, v{MLB} row_ror:8 {DPPM}")
            for k in (4, 2, 1): a(f"v_max_f32_dpp v{M}, v{M}, v{M} row_ror:{k} {DPPM}")
            rows_allreduce("v_max_f32", M, 112, both=False)
            a(f"v_sub_f32 v112, v{MLB}, v{M}\nv_mul_f32 v112, s93, v112\nv_exp_f32 v112, v112\nv_mul_f32 v{Ls}, v{Ls}, v112")
            for k in (8, 4, 2, 1): a(f"v_add_f32_dpp v{Ls}, v{Ls}, v{Ls} row_ror:{k} {DPPM}")
            rows_allreduce("v_add_f32", Ls, 112, both=False)
            a(f"v_rcp_f32 v{Ls}, v{Ls}")
        return fn
    def it_p(b, u0):
        def fn():
            R = [S[b] + u for u in range(u0, u0 + 4)]
            for s in R: a(f"v_sub_f32 v{s}, v{s}, v{MLB+1}")
            for s in R: a(f"v_mul_f32 v{s}, s93, v{s}")
            for s in R: a(f"v_exp_f32 v{s}, v{s}")
            for s in R: a(f"v_mul_f32 v{s}, v{s}, v{MLB+2}")
            for s in R: a(f"v_cvt_pk_bf16_f32 v{s}, v{s}, v{s}")
        return fn
    def v_bfrag(i):
        b, n = divmod(i - 128, 64); u, t = n >> 2, n & 3; bv = BV + (i & 1) * 4
        for r in range(4):
            a(f"v_and_b32_dpp v{bv+r}, v{S[b]+u}, v{10+r} row_newbcast:{4*t} {DPPM}")
    def v_mfma(i):
        n = (i - 128) % 64; r = RING + (i % NB) * 4; bv = BV + (i & 1) * 4
        a(f"v_mfma_f32_16x16x32_bf16 v[{ACC}:{ACC+3}], v[{r}:{r+3}], v[{bv}:{bv+3}], {'0' if n == 0 else f'v[{ACC}:{ACC+3}]'}")
    def it_opub(b):
        def fn():
            Ls = a.lab("olast")
            if b == 1: stamp(2)
            a(f"v_mov_b32 v112, 1\ns_mov_b64 exec, s[88:89]")
            a(f"ds_write_b128 v62, v[{ACC}:{ACC+3}] offset:{ORED + b * 2048}")
            a(f"s_mov_b64 exec, 1\nds_add_rtn_u32 v113, v61, v112 offset:{CNT + 4*b}\ns_mov_b64 exec, -1")
            for w in range(4): a(f"ds_read_b128 v[{96+4*w}:{99+4*w}], v15 offset:{ORED + b * 2048 + w * 512}")
            a(f"s_mov_b32 s95, {OPA + b * 0x20000}\ns_mov_b32 s96, {OPB + b * 0x20000}")
            a("s_waitcnt lgkmcnt(0)\nv_readfirstlane_b32 s79, v113")
            a("v_pk_add_f32 v[96:97], v[96:97], v[100:101]\nv_pk_add_f32 v[98:99], v[98:99], v[102:103]")
            a("v_pk_add_f32 v[104:105], v[104:105], v[108:109]\nv_pk_add_f32 v[106:107], v[106:107], v[110:111]")
            a(f"s_cmp_lg_u32 s79, 2\ns_cbranch_scc1 {Ls}")
            a("v_pk_add_f32 v[96:97], v[96:97], v[104:105]\nv_pk_add_f32 v[98:99], v[98:99], v[106:107]")
            if b == 0:
                L = spin_begin("clr")
                a(f"ds_read_b32 v114, v61 offset:{CLR}\ns_waitcnt lgkmcnt(0)\nv_cmp_eq_u32 vcc, -1, v114")
                spin_end(L, 2)
            a("s_mov_b32 exec_hi, 0")
            a(f"buffer_store_dwordx4 v[96:99], v63, {sWS}, s95 offen")
            a(f"buffer_store_dwordx4 v[96:99], v63, {sWS}, s96 offen sc0 sc1")
            a("s_mov_b64 exec, -1")
            if b == 1: stamp(3)
            a(Ls + ":")
        return fn

    for b in range(2):
        add(30, None, it_qfrag(b))
        for n in range(64):
            add(4, 64 * b + n, it_k(64 * b + n))
            if n & 3 == 0 and n: add(12, None, it_kred(b, (n >> 2) - 1))
            if b == 1 and 64 + n == ml0:
                add(40, ("ml", 0), it_mlget(0))
                for u0 in range(0, 16, 4): add(24, None, it_p(0, u0))
        add(16, None, it_kred(b, 15)); add(20, None, it_max(b))
        for u0 in range(0, 16, 4): add(20, None, it_sum(b, u0))
        add(20, None, it_mlpub(b))
    for b in range(2):
        for n in range(64):
            i = 128 + 64 * b + n
            add(4, None, (lambda i=i: v_bfrag(i))); add(4, i, (lambda i=i: v_mfma(i)))
            if b == 0 and i == ml1:
                add(40, ("ml", 1), it_mlget(1))
                for u0 in range(0, 16, 4): add(24, None, it_p(1, u0))
        add(40, None, it_opub(b))

    consumed = [-1]
    def run_items(bud, force=False):
        while items:
            cost, needs, fn = items[0]
            if needs is not None:
                if needs not in ld_idx: return
                if ld_idx[needs] > landed[0]:
                    if not force: return
                    wait_vm(ld_idx[needs])
            if bud <= 0 and not force: return
            items.pop(0); fn(); bud -= cost
            if isinstance(needs, int): consumed[0] = needs
    issued = 0
    step = 0
    while issued < 256:
        i = issued
        d = taildepth if i >= tailfrom else depth
        if i - d >= 0: wait_vm(ld_idx[i - d])
        while consumed[0] < i - NB:
            n0 = len(items); run_items(1); assert len(items) < n0, "ring stall"
        issue(i); issued += 1
        if i == depth - 1:
            a("s_barrier"); it_setup(); stamp(0)
        if i == ml0: ml_issue(0)
        if i == ml1: ml_issue(1)
        if i >= P - 1: run_items(budget)
    run_items(0, force=True)
    dump_stamps()
    a("s_endpgm")

    a("L_aux:")
    a("v_and_b32 v8, 31, v1\nv_lshlrev_b32 v8, 3, v8\nv_lshrrev_b32 v9, 5, v1\nv_mul_u32_u24 v9, 1280, v9\nv_add_u32 v2, v8, v9")
    a("s_mul_i32 s7, s75, 80\ns_mul_i32 s79, s76, 20\ns_add_u32 s7, s7, s79\nv_add_u32 v8, s7, v7")
    a("v_bfe_u32 v9, v1, 3, 1\nv_mul_u32_u24 v9, 1280, v9\nv_lshl_add_u32 v3, v8, 1, v9")
    a("s_lshl_b32 s7, s74, 8\nv_lshlrev_b32 v8, 13, v8\nv_lshl_add_u32 v9, v6, 4, s7\nv_add_u32 v5, v8, v9")
    a("s_waitcnt lgkmcnt(0)")
    srd(44, 8, 2560); srd(48, 14, 640 * 4096 * 2); srd(40, 30, WSZ)
    for i in range(5): a(f"buffer_load_dwordx2 v[{8+2*i}:{9+2*i}], v2, {sX}, 0 offen offset:{256*i}")
    for i in range(5): a(f"buffer_load_ushort v{18+i}, v3, {sX}, 0 offen offset:{8*i}")
    for i in range(5):
        a(f"s_mov_b32 s7, {i * 32768}\nbuffer_load_dwordx4 v[{24+4*i}:{27+4*i}], v5, {sWQ}, s7 offen nt")
    a("s_load_dword s77, s[30:31], 0")
    srd(52, 16, 4096 * 640 * 2); srd(56, 20, 640 * 1728 * 2); srd(60, 22, 640 * 1728 * 2); srd(64, 24, 1728 * 640 * 2); srd(68, 26, 2560)
    a("s_barrier")
    a("v_and_b32 v68, 7, v1"); half_masks(64, 68, 69)
    mask64(88, 0xFF00FF00FF00FF00)
    a(f"s_mov_b32 s92, {hx(f2u(1/640))}\ns_mov_b32 s93, {hx(f2u(1e-5))}")
    a("s_waitcnt lgkmcnt(0)")
    stamp(0)
    a("s_mul_i32 s77, s77, 1664525\ns_add_u32 s77, s77, 1013904223")
    a("s_waitcnt vmcnt(10)")
    for i in range(10): a(f"v_lshlrev_b32 v{44+2*i}, 16, v{8+i}\nv_and_b32 v{45+2*i}, 0xffff0000, v{8+i}")
    def red32(v):
        for k in (8, 4, 2, 1): a(f"v_add_f32_dpp v{v}, v{v}, v{v} row_ror:{k} {DPPM}")
        rows_allreduce("v_add_f32", v, 71, both=False)
    a("v_pk_add_f32 v[8:9], v[44:45], v[46:47]")
    for i in range(2, 10): a(f"v_pk_add_f32 v[8:9], v[8:9], v[{44+2*i}:{45+2*i}]")
    a("v_add_f32 v8, v8, v9"); red32(8)
    a("v_mul_f32 v8, s92, v8\nv_mov_b32 v10, 0\nv_mov_b32 v11, 0")
    for i in range(20): a(f"v_sub_f32 v{44+i}, v{44+i}, v8")
    for i in range(20): a(f"v_fmac_f32 v{10+(i&1)}, v{44+i}, v{44+i}")
    a("v_add_f32 v10, v10, v11"); red32(10)
    def ln_finish(mean, var):
        bfr(var, var); bfr(mean, mean); a(f"v_add_f32 v{var}, s93, v{var}"); bfr(var, var); a(f"v_sqrt_f32 v{var}, v{var}"); bfr(var, var)
        a(f"v_rcp_f32 v{var}, v{var}")
    a("v_mul_f32 v10, s92, v10"); ln_finish(8, 10)
    a("v_readlane_b32 s80, v8, 0\nv_readlane_b32 s81, v8, 32\nv_readlane_b32 s82, v10, 0\nv_readlane_b32 s83, v10, 32")
    a("v_mov_b32 v8, s80\nv_mov_b32 v9, s81\nv_mov_b32 v10, s82\nv_mov_b32 v11, s83")
    a("v_cndmask_b32 v8, v8, v9, s[88:89]\nv_cndmask_b32 v10, v10, v11, s[88:89]")
    a("s_waitcnt vmcnt(5)")
    for i in range(5): a(f"v_lshlrev_b32 v{18+i}, 16, v{18+i}\nv_sub_f32 v{18+i}, v{18+i}, v8")
    for i in range(5): bfr(18 + i, 18 + i)
    for i in range(5): a(f"v_mul_f32 v{18+i}, v{18+i}, v10\nv_cvt_pk_bf16_f32 v{18+i}, v{18+i}, v{18+i}")
    for i in range(5):
        for r in range(4): a(f"v_and_b32 v{44+4*i+r}, v{18+i}, v{64+r}")
    for i in range(5):
        a(f"s_waitcnt vmcnt({4-i})")
        a(f"v_mfma_f32_16x16x32_bf16 v[72:75], v[{24+4*i}:{27+4*i}], v[{44+4*i}:{47+4*i}], {'0' if i == 0 else 'v[72:75]'}")
    a("v_lshlrev_b32 v8, 4, v0\nv_lshlrev_b32 v9, 4, v1\ns_lshl_b32 s7, s76, 2\nv_add_u32 v9, s7, v9")
    a("v_lshlrev_b32 v12, 3, v0\ns_lshl_b32 s80, s6, 11")
    a(f"s_add_u32 s80, s80, {QP}\ns_lshl_b32 s81, s74, 14\ns_add_u32 s81, s81, {QP}")
    a(f"ds_write_b128 v8, v[72:75] offset:{QRED}")
    L = spin_begin("qred")
    for w in range(4): a(f"ds_read_b32 v{76+w}, v9 offset:{QRED + 1024*w}")
    a("s_waitcnt lgkmcnt(0)"); sent_check(range(76, 80), 80); spin_end(L)
    a("v_add_f32 v76, v76, v77\nv_add_f32 v78, v78, v79\nv_add_f32 v76, v76, v78\nv_mov_b32 v77, s77")
    a(f"buffer_store_dwordx2 v[76:77], v12, {sWS}, s80 offen sc0 sc1")
    stamp(1)
    for k in range(1, 4): a(f"s_add_u32 s{81+k}, s81, {4096*k}")
    a("v_bfe_u32 v13, v1, 3, 1\nv_lshlrev_b32 v13, 8, v13\nv_lshl_or_b32 v13, v7, 6, v13\nv_lshl_add_u32 v13, v68, 1, v13")
    a("s_lshl_b32 s7, s76, 4\nv_add_u32 v13, s7, v13")
    mask64(86, 0x5555555555555555)
    a("s_sleep 6")
    L = spin_begin("qg")
    for k in range(8): a(f"buffer_load_dwordx2 v[{80+2*k}:{81+2*k}], v12, {sWS}, s{81+(k>>1)} offen offset:{2048*(k&1)} sc1")
    a("s_waitcnt vmcnt(0)")
    for k in range(8): a(f"v_xor_b32 v{81+2*k}, s77, v{81+2*k}")
    a("v_or3_b32 v81, v81, v83, v85\nv_or3_b32 v87, v87, v89, v91\nv_or3_b32 v81, v81, v93, v95\nv_or_b32 v81, v81, v87\nv_cmp_ne_u32 vcc, 0, v81")
    spin_end(L, 1)
    a("v_add_f32 v80, v80, v82\nv_add_f32 v84, v84, v86\nv_add_f32 v88, v88, v90\nv_add_f32 v92, v92, v94")
    a("v_add_f32 v80, v80, v84\nv_add_f32 v88, v88, v92\nv_add_f32 v80, v80, v88")
    a(f"v_mov_b32_dpp v81, v80 quad_perm:[1,1,3,3] {DPPM}\nv_cvt_pk_bf16_f32 v80, v80, v81\nv_min_u32 v80, -2, v80")
    a(f"s_mov_b64 exec, s[86:87]\nds_write_b32 v13, v80 offset:{QF}\ns_mov_b64 exec, -1")
    stamp(2)
    a("s_mov_b32 s84, 1\ns_mov_b32 s85, s73\ns_cmp_lt_u32 s73, 10\ns_cbranch_scc1 L_role")
    a("s_sub_u32 s7, s73, 10\ns_lshr_b32 s85, s7, 1\ns_lshl_b32 s85, s85, 3\ns_add_u32 s85, s85, s72")
    a("s_mov_b32 s84, 0\ns_cmp_lt_u32 s85, 27\ns_cbranch_scc0 L_role")
    a("s_mov_b32 s84, 2\ns_lshl_b32 s85, s85, 1\ns_and_b32 s7, s7, 1\ns_add_u32 s85, s85, s7")
    a("L_role:")
    a("s_cmp_lg_u32 s76, 0\ns_cbranch_scc1 L_noclr")
    a("v_and_b32 v8, 31, v1\nv_lshlrev_b32 v8, 4, v8\nv_lshrrev_b32 v9, 5, v1\nv_lshl_or_b32 v8, v9, 17, v8\ns_lshl_b32 s7, s6, 9\nv_add_u32 v8, s7, v8")
    a(f"s_mov_b32 s7, {OPA}\nbuffer_store_dwordx4 v[112:115], v8, {sWS}, s7 offen sc0 sc1")
    a(f"s_mov_b32 s7, {OPB}\nbuffer_store_dwordx4 v[112:115], v8, {sWS}, s7 offen sc0 sc1")
    a("s_cmp_lg_u32 s84, 1\ns_cbranch_scc1 L_clr2")
    a("v_and_b32 v9, 1, v7\nv_mul_u32_u24 v9, 20480, v9\nv_lshl_add_u32 v8, v6, 4, v9")
    a(f"s_mul_i32 s7, s72, 2560\ns_lshl_b32 s79, s85, 8\ns_add_u32 s7, s7, s79\ns_add_u32 s7, s7, {YP}")
    a(f"s_mov_b32 exec_hi, 0\nbuffer_store_dwordx4 v[112:115], v8, {sWS}, s7 offen sc0 sc1\ns_mov_b64 exec, -1")
    a("L_clr2:")
    a("s_cmp_lg_u32 s84, 2\ns_cbranch_scc1 L_clr3")
    a("v_and_b32 v8, 31, v1\nv_lshlrev_b32 v8, 4, v8\nv_lshrrev_b32 v9, 5, v1\nv_mul_u32_u24 v9, 138240, v9\nv_add_u32 v8, v8, v9")
    a(f"s_mul_i32 s7, s85, 2560\ns_add_u32 s7, s7, {DP}")
    for k in range(5): a(f"buffer_store_dwordx4 v[112:115], v8, {sWS}, s7 offen offset:{512*k} sc0 sc1")
    a("L_clr3:")
    a(f"v_mov_b32 v8, 0\nv_mov_b32 v10, s78\nv_mov_b32 v11, s77\ns_lshl_b32 s7, s6, 3\ns_add_u32 s7, s7, {TT}")
    a(f"s_waitcnt vmcnt(0)\ns_mov_b64 exec, 1\nds_write_b32 v8, v8 offset:{CLR}")
    a(f"buffer_store_dwordx2 v[10:11], v8, {sWS}, s7 offen sc0 sc1\ns_mov_b64 exec, -1")
    a("L_noclr:")
    a("s_mov_b32 s90, 0x05040100\ns_mov_b32 s91, 0x07060302")
    mask64(88, 0x0001000100010001)
    a("v_mov_b32 v61, 0")
    a("s_cmp_eq_u32 s84, 2\ns_cbranch_scc1 L_ffn\ns_cmp_eq_u32 s84, 1\ns_cbranch_scc1 L_wo")
    dump_stamps()
    a("s_endpgm")

    def table_check():
        a(f"v_lshlrev_b32 v8, 4, v1\ns_mov_b32 s7, {TT}")
        L = spin_begin("tt")
        a(f"buffer_load_dwordx4 v[64:67], v8, {sWS}, s7 offen sc1\nbuffer_load_dwordx4 v[68:71], v8, {sWS}, s7 offen offset:1024 sc1")
        a("s_waitcnt vmcnt(0)")
        for k in range(4): a(f"v_xor_b32 v{65+2*k}, s77, v{65+2*k}")
        a("v_or3_b32 v65, v65, v67, v69\nv_or_b32 v65, v65, v71\nv_cmp_ne_u32 vcc, 0, v65")
        spin_end(L, 16)
    def wait_own_v():
        L = spin_begin("own")
        a("ds_read_b32 v8, v60\ns_waitcnt lgkmcnt(0)\nv_cmp_ne_u32 vcc, 3, v8")
        spin_end(L, 2)
    def staged(nbatch, nld, issue_fn, finish_fn):
        for k in range(min(wthr, nbatch)): issue_fn(k, k % wthr)
        for k in range(nbatch):
            a(f"s_waitcnt vmcnt({nld * (min(nbatch, k + wthr) - k - 1)})")
            finish_fn(k, k % wthr)
            if k + wthr < nbatch: issue_fn(k + wthr, k % wthr)
    backoff = "first"

    a("L_wo:")
    a("s_lshl_b32 s7, s72, 2\ns_add_u32 s7, s7, s76\ns_lshl_b32 s7, s7, 7\nv_lshl_add_u32 v8, v7, 5, s7\nv_mul_u32_u24 v8, 1280, v8")
    a("s_lshl_b32 s7, s85, 7\nv_lshl_add_u32 v9, v6, 3, s7\nv_add_u32 v2, v8, v9")
    a("s_waitcnt vmcnt(0)")
    def wo_issue(k, slot):
        for p in range(2):
            a(f"s_mov_b32 s7, {(2*k + p) * 2560}")
            for e in range(2):
                r = 64 + slot * 8 + p * 4 + e * 2
                a(f"buffer_load_dwordx2 v[{r}:{r+1}], v2, {sWO}, s7 offen offset:{1280*e} nt")
    def wo_finish(k, slot):
        for p in range(2):
            pair = 2 * k + p; r, i = pair >> 2, pair & 3; t = 64 + slot * 8 + p * 4
            for q in range(4):
                a(f"v_perm_b32 v{128 + (i*4 + q)*4 + r}, v{t + 2 + (q>>1)}, v{t + (q>>1)}, s{90 + (q&1)}")
    staged(8, 4, wo_issue, wo_finish)
    table_check()
    a(f"v_and_b32 v8, 31, v1\nv_lshlrev_b32 v8, 3, v8\ns_lshl_b32 s7, s72, 8\ns_add_u32 s7, s7, {TT}")
    a(f"buffer_load_dword v9, v8, {sWS}, s7 offen sc1\ns_waitcnt vmcnt(0)\nv_cmp_ne_u32 vcc, s78, v9")
    a(f"s_mov_b32 s94, {OPB}\ns_cmp_eq_u64 vcc, 0\ns_cselect_b32 s94, {OPA if fast else OPB}, s94")
    a("s_lshl_b32 s7, s72, 2\ns_add_u32 s7, s7, s76\ns_lshl_b32 s7, s7, 12")
    a("v_bfe_u32 v8, v1, 2, 2\nv_lshlrev_b32 v8, 10, v8\nv_lshl_or_b32 v8, v7, 7, v8\nv_and_b32 v9, 3, v1\nv_lshl_or_b32 v8, v9, 5, v8\nv_add_u32 v2, s7, v8")
    a(f"s_lshl_b32 s7, s76, 8\ns_add_u32 s7, s7, {YRED}\nv_lshl_add_u32 v3, v7, 4, s7")
    a(f"v_lshlrev_b32 v59, 4, v6\nv_add_u32 v5, {YRED}, v59")
    a(f"s_mul_i32 s95, s72, 2560\ns_lshl_b32 s7, s85, 8\ns_add_u32 s95, s95, s7\ns_add_u32 s95, s95, {YP}")
    a(f"v_mov_b32 v60, {CNT}\ns_mov_b32 s98, 0")
    stamp(3)
    a("L_wo_b:")
    wait_own_v()
    stamp(4)
    L = spin_begin("h1")
    for k, off in enumerate((0, 16, 512, 528)):
        a(f"buffer_load_dwordx4 v[{64+4*k}:{67+4*k}], v2, {sWS}, s94 offen offset:{off} sc1")
    a("s_waitcnt vmcnt(0)"); sent_check(range(64, 80), 8); spin_end(L, backoff)
    stamp(5)
    for k in range(4): a(f"v_pk_add_f32 v[{64+2*k}:{65+2*k}], v[{64+2*k}:{65+2*k}], v[{72+2*k}:{73+2*k}]")
    for ror in (8, 4):
        for k in range(8): a(f"v_add_f32_dpp v{64+k}, v{64+k}, v{64+k} row_ror:{ror} {DPPM}")
    for r in range(4): a(f"v_cvt_pk_bf16_f32 v{72+r}, v{64+r}, v{68+r}")
    def wo_b(i):
        for r in range(4): a(f"v_mov_b32_dpp v{80+4*i+r}, v{72+r} quad_perm:[{i},{i},{i},{i}] {DPPM}")
    wo_b(0); wo_b(1)
    for i in range(4):
        for q in range(4):
            A = 128 + (i * 4 + q) * 4; D = 96 + 4 * q
            a(f"v_mfma_f32_16x16x32_bf16 v[{D}:{D+3}], v[{A}:{A+3}], v[{80+4*i}:{83+4*i}], {'0' if i == 0 else f'v[{D}:{D+3}]'}")
            if q == 0 and i < 2: wo_b(i + 2)
    a("s_mov_b64 exec, s[88:89]")
    for q in range(4): a(f"ds_write_b128 v3, v[{96+4*q}:{99+4*q}] offset:{64*q}")
    a("s_mov_b64 exec, -1\ns_cmp_lg_u32 s76, 0\ns_cbranch_scc1 L_wo_next")
    L = spin_begin("yr")
    for w in range(4): a(f"ds_read_b128 v[{64+4*w}:{67+4*w}], v5 offset:{256*w}")
    a("s_waitcnt lgkmcnt(0)"); sent_check(range(64, 80), 8); spin_end(L)
    a("v_pk_add_f32 v[64:65], v[64:65], v[68:69]\nv_pk_add_f32 v[66:67], v[66:67], v[70:71]")
    a("v_pk_add_f32 v[72:73], v[72:73], v[76:77]\nv_pk_add_f32 v[74:75], v[74:75], v[78:79]")
    a("v_pk_add_f32 v[64:65], v[64:65], v[72:73]\nv_pk_add_f32 v[66:67], v[66:67], v[74:75]")
    a(f"s_mov_b64 exec, 0xffff\nbuffer_store_dwordx4 v[64:67], v59, {sWS}, s95 offen sc0 sc1\ns_mov_b64 exec, -1")
    stamp(6)
    a("L_wo_next:")
    a("s_add_u32 s94, s94, 0x20000\ns_add_u32 s95, s95, 20480\nv_add_u32 v3, 1024, v3\nv_add_u32 v5, 1024, v5\nv_add_u32 v60, 4, v60")
    a("s_add_u32 s98, s98, 1\ns_cmp_lt_u32 s98, 2\ns_waitcnt vmcnt(0)\ns_cbranch_scc1 L_wo_b")
    dump_stamps()
    a("s_endpgm")

    a("L_ffn:")
    def rowbase(d, q, t):
        a(f"v_lshrrev_b32 v{t}, 4, v{q}\nv_bfe_u32 v{d}, v{q}, 2, 2\nv_lshl_or_b32 v{d}, v{t}, 6, v{d}\nv_and_b32 v{t}, 3, v{q}\nv_lshl_or_b32 v{d}, v{t}, 4, v{d}")
    a("s_mul_i32 s7, s76, 40\nv_mul_u32_u24 v12, 10, v7\nv_add_u32 v12, s7, v12")
    a("s_lshl_b32 s7, s85, 6\nv_lshl_add_u32 v13, v6, 2, s7")
    for r in range(1, 4): a(f"s_mov_b32 s{80+r}, {r * 13824}")
    a("s_mov_b32 s80, 3456\ns_waitcnt vmcnt(0)")
    def gu_issue(k, slot):
        a(f"v_add_u32 v8, {k}, v12"); rowbase(9, 8, 10); a("v_mad_u32_u24 v9, v9, s80, v13")
        for m in range(2):
            for r in range(4):
                a(f"buffer_load_dword v{64 + slot*8 + m*4 + r}, v9, {sWU if m else sWG}, {'0' if r == 0 else f's{80+r}'} offen nt")
    def gu_finish(k, slot):
        i, half = k >> 1, k & 1
        for m in range(2):
            for par in range(2):
                for rr in range(2):
                    t = 64 + slot * 8 + m * 4 + 2 * rr
                    a(f"v_perm_b32 v{128 + (i*4 + m*2 + par)*4 + 2*half + rr}, v{t+1}, v{t}, s{90+par}")
    staged(10, 8, gu_issue, gu_finish)
    a("s_lshl_b32 s7, s85, 5\nv_lshl_add_u32 v8, v7, 3, s7\nv_mul_u32_u24 v8, 1280, v8\ns_mul_i32 s7, s76, 320\nv_lshl_add_u32 v9, v6, 2, s7\nv_add_u32 v2, v8, v9")
    for r in range(1, 4): a(f"s_mov_b32 s{80+r}, {r * 2560}")
    def dn_issue(k, slot):
        for e in range(8):
            a(f"buffer_load_dword v{64 + slot*8 + e}, v2, {sWD}, {'0' if e < 2 else f's{80+(e>>1)}'} offen offset:{(e&1)*1280 + k*64} nt")
    def dn_finish(k, slot):
        for par in range(2):
            for r in range(4):
                t = 64 + slot * 8 + 2 * r
                a(f"v_perm_b32 v{208 + (k*2 + par)*4 + r}, v{t+1}, v{t}, s{90+par}")
    staged(5, 8, dn_issue, dn_finish)
    table_check()
    a("v_add_u32 v8, v12, v6"); rowbase(9, 8, 10)
    a(f"v_cmp_gt_u32 vcc, 10, v6\ns_mov_b64 s[86:87], vcc\nv_mov_b32 v10, {hx(OOB)}")
    a("v_lshlrev_b32 v2, 4, v8\nv_cndmask_b32 v2, v10, v2, vcc")
    a("v_lshlrev_b32 v3, 1, v9\nv_cndmask_b32 v3, v10, v3, vcc")
    a(f"v_lshlrev_b32 v5, 2, v9\nv_add_u32 v5, {HTAB}, v5")
    a(f"s_lshl_b32 s7, s76, 5\ns_add_u32 s7, s7, {STAT}\nv_lshl_add_u32 v50, v7, 3, s7")
    a(f"v_lshlrev_b32 v51, 3, v6\nv_add_u32 v51, {STAT}, v51")
    a(f"s_lshl_b32 s7, s76, 8\ns_add_u32 s7, s7, {GRED}\nv_lshl_add_u32 v52, v7, 4, s7")
    a(f"v_and_b32 v8, 1, v1\nv_lshlrev_b32 v8, 6, v8\nv_lshl_or_b32 v8, v7, 4, v8\nv_bfe_u32 v9, v1, 1, 2\nv_lshl_or_b32 v8, v9, 2, v8\nv_add_u32 v53, {GRED}, v8")
    a("s_mul_i32 s7, s76, 640\nv_lshl_add_u32 v54, v7, 4, s7")
    a(f"s_mul_i32 s95, s85, 2560\ns_add_u32 s95, s95, {DP}")
    a("v_lshrrev_b32 v8, 3, v1\nv_mul_u32_u24 v9, 2560, v8\nv_and_b32 v11, 7, v1\nv_lshl_add_u32 v55, v11, 4, v9")
    a("s_lshl_b32 s7, s85, 7\nv_add_u32 v55, s7, v55\nv_cmp_gt_u32 vcc, 6, v8\nv_cndmask_b32 v56, v10, v55, vcc")
    a("v_and_b32 v8, 3, v1\nv_bfe_u32 v9, v1, 2, 1\nv_lshl_or_b32 v8, v8, 3, v9\nv_bfe_u32 v9, v1, 4, 1\nv_lshl_or_b32 v8, v9, 2, v8\nv_bfe_u32 v9, v1, 5, 1\nv_lshl_or_b32 v8, v9, 1, v8")
    a(f"s_lshl_b32 s7, s85, 5\nv_add_u32 v8, s7, v8\nv_lshlrev_b32 v57, 1, v8\nv_lshlrev_b32 v58, 2, v8\nv_add_u32 v58, {HTAB}, v58")
    a(f"v_mov_b32 v60, {CNT}\ns_mov_b32 s98, 0\ns_mov_b32 s94, {YP}\ns_mov_b32 s96, {DP}\ns_mov_b32 s97, 0")
    c1 = -2.0 * 0.7978845608028654 * 1.4426950408889634
    a(f"s_mov_b32 s100, {hx(f2u(c1 * 0.044715))}\nv_mov_b32 v59, {hx(f2u(c1))}")
    mask64(4, 0x00FF00FF00FF00FF)
    stamp(3)
    a("L_ffn_b:")
    for r in range(4): a(f"buffer_load_ushort v{44+r}, v3, {sX}, s97 offen offset:{8*r}")
    for k in range(1, 4): a(f"s_add_u32 s{80+k}, s94, {5120*k}")
    a("s_waitcnt vmcnt(0)")
    for r in range(4): a(f"v_lshlrev_b32 v{44+r}, 16, v{44+r}")
    wait_own_v()
    stamp(4)
    L = spin_begin("h2")
    for k in range(8):
        a(f"buffer_load_dwordx4 v[{64+4*k}:{67+4*k}], v2, {sWS}, {'s94' if k < 2 else f's{80+(k>>1)}'} offen offset:{2560*(k&1)} sc1")
    a("s_waitcnt vmcnt(0)"); sent_check(range(64, 96), 8); spin_end(L, backoff)
    stamp(5)
    for st in (16, 8, 4):
        for k in range(0, st, 2): a(f"v_pk_add_f32 v[{64+k}:{65+k}], v[{64+k}:{65+k}], v[{64+st+k}:{65+st+k}]")
    a("v_cvt_pk_bf16_f32 v68, v64, v65\nv_cvt_pk_bf16_f32 v69, v66, v67")
    a("v_lshlrev_b32 v64, 16, v68\nv_and_b32 v65, 0xffff0000, v68\nv_lshlrev_b32 v66, 16, v69\nv_and_b32 v67, 0xffff0000, v69")
    a("v_pk_add_f32 v[64:65], v[64:65], v[44:45]\nv_pk_add_f32 v[66:67], v[66:67], v[46:47]")
    a("v_cvt_pk_bf16_f32 v68, v64, v65\nv_cvt_pk_bf16_f32 v69, v66, v67")
    a("v_lshlrev_b32 v64, 16, v68\nv_and_b32 v65, 0xffff0000, v68\nv_lshlrev_b32 v66, 16, v69\nv_and_b32 v67, 0xffff0000, v69")
    a("v_pk_add_f32 v[70:71], v[64:65], v[66:67]\nv_pk_mul_f32 v[72:73], v[64:65], v[64:65]\nv_add_f32 v70, v70, v71")
    a("v_fmac_f32 v72, v66, v66\nv_fmac_f32 v73, v67, v67\nv_add_f32 v71, v72, v73")
    for k in (8, 4, 2, 1):
        a(f"v_add_f32_dpp v70, v70, v70 row_ror:{k} {DPPM}\nv_add_f32_dpp v71, v71, v71 row_ror:{k} {DPPM}")
    a("s_mov_b64 exec, s[88:89]\nds_write_b64 v50, v[70:71]\ns_mov_b64 exec, s[86:87]")
    for r in range(4): a(f"ds_write_b32 v5, v{64+r} offset:{16*r}")
    a("s_mov_b64 exec, -1")
    L = spin_begin("st")
    a("ds_read_b64 v[70:71], v51\ns_waitcnt lgkmcnt(0)"); sent_check((70, 71), 8); spin_end(L)
    for k in (8, 4, 2, 1):
        a(f"v_add_f32_dpp v70, v70, v70 row_ror:{k} {DPPM}\nv_add_f32_dpp v71, v71, v71 row_ror:{k} {DPPM}")
    a("v_mul_f32 v70, s92, v70\nv_mul_f32 v71, s92, v71\nv_fma_f32 v71, -v70, v70, v71\nv_max_f32 v71, 0, v71")
    ln_finish(70, 71)
    for r in range(4): a(f"v_sub_f32 v{64+r}, v{64+r}, v70")
    a("v_cvt_pk_bf16_f32 v68, v64, v65\nv_cvt_pk_bf16_f32 v69, v66, v67")
    a("v_lshlrev_b32 v64, 16, v68\nv_and_b32 v65, 0xffff0000, v68\nv_lshlrev_b32 v66, 16, v69\nv_and_b32 v67, 0xffff0000, v69")
    for r in range(4): a(f"v_mul_f32 v{64+r}, v{64+r}, v71")
    a("v_cvt_pk_bf16_f32 v68, v64, v65\nv_cvt_pk_bf16_f32 v69, v66, v67")
    def gu_b(i):
        for r in range(4): a(f"v_mov_b32_dpp v{72+4*i+r}, v{68+(r&1)} row_newbcast:{2*i+(r>>1)} {DPPM}")
    gu_b(0); gu_b(1)
    for i in range(5):
        for q in range(4):
            A = 128 + (i * 4 + q) * 4; D = 96 + 4 * q
            a(f"v_mfma_f32_16x16x32_bf16 v[{D}:{D+3}], v[{A}:{A+3}], v[{72+4*i}:{75+4*i}], {'0' if i == 0 else f'v[{D}:{D+3}]'}")
            if q == 0 and i < 3: gu_b(i + 2)
    a("s_mov_b64 exec, s[88:89]")
    for q in range(4): a(f"ds_write_b128 v52, v[{96+4*q}:{99+4*q}] offset:{64*q}")
    a("s_mov_b64 exec, -1")
    stamp(6)
    L = spin_begin("gr")
    for w in range(4): a(f"ds_read2_b32 v[{64+2*w}:{65+2*w}], v53 offset0:{64*w} offset1:{64*w+32}")
    a("s_waitcnt lgkmcnt(0)"); sent_check(range(64, 72), 8); spin_end(L)
    a("ds_read_b32 v48, v58")
    a("v_pk_add_f32 v[64:65], v[64:65], v[66:67]\nv_pk_add_f32 v[68:69], v[68:69], v[70:71]\nv_pk_add_f32 v[64:65], v[64:65], v[68:69]")
    a("v_cvt_pk_bf16_f32 v66, v64, v65\nv_lshlrev_b32 v64, 16, v66\nv_and_b32 v65, 0xffff0000, v66")
    a("v_mul_f32 v66, v64, v64\nv_fma_f32 v66, v66, s100, v59\nv_mul_f32 v66, v66, v64\nv_exp_f32 v66, v66\nv_add_f32 v66, 1.0, v66\nv_rcp_f32 v66, v66\nv_mul_f32 v64, v64, v66")
    bfr(64, 64)
    a(f"v_mul_f32 v64, v64, v65\nv_mov_b32_dpp v65, v64 quad_perm:[1,1,3,3] {DPPM}\nv_cvt_pk_bf16_f32 v64, v64, v65")
    for r in range(4): a(f"v_mov_b32_dpp v{68+r}, v64 row_newbcast:{2*r} {DPPM}")
    for k in range(10):
        a(f"v_mfma_f32_16x16x32_bf16 v[{72+4*k}:{75+4*k}], v[{208+4*k}:{211+4*k}], v[68:71], 0")
    a("s_mov_b64 exec, s[88:89]")
    for k in range(10):
        a(f"buffer_store_dwordx4 v[{72+4*k}:{75+4*k}], v54, {sWS}, s95 offen offset:{64*k} sc0 sc1")
    a("s_mov_b64 exec, -1")
    stamp(7)
    a("s_cmp_lg_u32 s76, 0\ns_cbranch_scc1 L_ffn_next\ns_cmp_ge_u32 s85, 20\ns_cbranch_scc1 L_ffn_next")
    if pre3: a(f"s_sleep {pre3}")
    L = spin_begin("h3")
    a("s_mov_b32 s7, s96")
    for k in range(7):
        a(f"buffer_load_dwordx4 v[{16+4*k}:{19+4*k}], {'v56' if k == 6 else 'v55'}, {sWS}, s7 offen sc1")
        if k < 6: a("s_add_u32 s7, s7, 20480")
    a("s_waitcnt vmcnt(0)"); sent_check(range(16, 44), 8); spin_end(L, backoff)
    stamp(8)
    for (d, s) in ((16, 20), (24, 28), (32, 36), (16, 24), (32, 40), (16, 32)):
        a(f"v_pk_add_f32 v[{d}:{d+1}], v[{d}:{d+1}], v[{s}:{s+1}]\nv_pk_add_f32 v[{d+2}:{d+3}], v[{d+2}:{d+3}], v[{s+2}:{s+3}]")
    a("v_permlane32_swap_b32 v16, v17\nv_permlane32_swap_b32 v18, v19\nv_add_f32 v16, v16, v17\nv_add_f32 v18, v18, v19")
    a(f"v_permlane16_swap_b32 v16, v18\nv_add_f32 v16, v16, v18\nv_add_f32_dpp v16, v16, v16 row_ror:8 {DPPM}")
    bfr(16, 16)
    a("s_waitcnt lgkmcnt(0)\nv_add_f32 v16, v16, v48\nv_cvt_pk_bf16_f32 v16, v16, v16")
    a(f"s_mov_b64 exec, s[4:5]\nbuffer_store_short v16, v57, {sOUT}, s97 offen\ns_mov_b64 exec, -1")
    stamp(9)
    a("s_cmp_lg_u32 s85, 0\ns_cbranch_scc1 L_ffn_next\ns_cmp_lg_u32 s98, 1\ns_cbranch_scc1 L_ffn_next")
    a(f"v_mov_b32 v8, s77\ns_mov_b64 exec, 1\nbuffer_store_dword v8, v61, {sWS}, 0 offen\ns_mov_b64 exec, -1")
    a("L_ffn_next:")
    a("s_add_u32 s94, s94, 20480\ns_add_u32 s95, s95, 138240\ns_add_u32 s96, s96, 138240\ns_add_u32 s97, s97, 1280")
    a("v_add_u32 v5, 2560, v5\nv_add_u32 v58, 2560, v58\nv_add_u32 v50, 128, v50\nv_add_u32 v51, 128, v51")
    a("v_add_u32 v52, 1024, v52\nv_add_u32 v53, 1024, v53\nv_add_u32 v60, 4, v60")
    a("s_add_u32 s98, s98, 1\ns_cmp_lt_u32 s98, 2\ns_cbranch_scc1 L_ffn_b")
    dump_stamps()
    a("L_exit:\ns_endpgm\nL_code_end:")

    hdr = open("cdna_kernels/" + NAME + ".s.ref").read().split("; Override launch")[0]
    out = [hdr.rstrip(), f"; @launch grid=(256,1,1) block=(512,1,1) lds={LDSZ}", '.amdgcn_target "amdgcn-amd-amdhsa--gfx950"']
    out += a.finish()
    out.append(f""".section .rodata,"a"
.p2align 6
.amdhsa_kernel {kname}
  .amdhsa_next_free_vgpr 256
  .amdhsa_next_free_sgpr 102
  .amdhsa_accum_offset 256
  .amdhsa_group_segment_fixed_size 0
  .amdhsa_kernarg_size 96
  .amdhsa_user_sgpr_count 2
  .amdhsa_user_sgpr_kernarg_segment_ptr 1
  .amdhsa_system_sgpr_workgroup_id_x 1
  .amdhsa_float_denorm_mode_32 3
.end_amdhsa_kernel""")
    return "\n".join(out) + "\n"

if __name__ == "__main__":
    kw = eval("dict(" + (sys.argv[2] if len(sys.argv) > 2 else "") + ")")
    open(sys.argv[1], "w").write(gen(**kw))
```

```python
import sys, struct
from asmlib import Asm

NAME = "sequential_preLN__mha_block_cached__geglu_ffn__decode"
def f2u(x): return struct.unpack("<I", struct.pack("<f", x))[0]
def hx(x): return "0x%08x" % (x & 0xffffffff)

TT, ML, QP, OPA, OPB, YP, DP, DIAG, WSZ = 0x1000, 0x2000, 0x10000, 0x90000, 0xD0000, 0x110000, 0x120000, 0x180000, 0x200000
OOB = 0x7ff00000
QRED, QF, CNT, CLR, STAT, ORED, YRED, GRED, HTAB, LDSZ = 0, 4096, 4608, 4624, 4864, 5120, 9216, 11264, 13312, 24576
sK, sV, sWS, sX, sWQ, sWO, sWG, sWU, sWD, sOUT = [f"s[{n}:{n+3}]" for n in range(32, 72, 4)]
DPPM = "row_mask:0xf bank_mask:0xf"
LOG2E = f2u(1.4426950408889634)
SPIN = 0x10000

def gen(depth=5, taildepth=8, tailfrom=230, P=32, budget=56, diag=False, pre3=8, wthr=2, fast=True, ml0=116, ml1=182, kvpol='nt', wpol='nt'):
    a = Asm()
    kname = NAME + "_kernel"
    def stamp(k):
        if diag: a(f"s_memrealtime s[{8+2*k}:{9+2*k}]")
    def dump_stamps():
        if not diag: return
        a("s_waitcnt lgkmcnt(0)")
        a("s_mov_b64 exec, 1")
        a("s_lshl_b32 s90, s6, 3\ns_add_u32 s90, s90, s3\ns_lshl_b32 s90, s90, 6")
        a(f"s_add_u32 s90, s90, {DIAG}")
        a("v_mov_b32 v5, 0")
        for k in range(11):
            a(f"v_mov_b32 v{112+k}, s{8+2*k}")
        a("v_mov_b32 v123, s78")
        for q in range(3):
            a(f"buffer_store_dwordx4 v[{112+4*q}:{115+4*q}], v5, {sWS}, s90 offen offset:{16*q}")
    def srd(n, p, size):
        a(f"s_mov_b32 s{n}, s{p}\ns_mov_b32 s{n+1}, s{p+1}\ns_mov_b32 s{n+2}, {hx(size)}\ns_mov_b32 s{n+3}, 0x20000")
    def bfr(d, s):
        a(f"v_cvt_pk_bf16_f32 v{d}, v{s}, v{s}\nv_and_b32 v{d}, 0xffff0000, v{d}")
    def mask64(n, v):
        a(f"s_mov_b32 s{n}, {hx(v)}\ns_mov_b32 s{n+1}, {hx(v >> 32)}")
    def spin_begin(base):
        L = a.lab(base); a(f"s_mov_b32 s79, {SPIN}"); a(L + ":"); return L
    def spin_end(L, sleep=0):
        Ld = L + "_d"
        a(f"s_cbranch_vccz {Ld}")
        if sleep == "first":
            a(f"s_cmp_lg_u32 s98, 0\ns_cbranch_scc1 {L}_n\ns_sleep 8\n{L}_n:")
        elif sleep: a(f"s_sleep {sleep}")
        a(f"s_sub_u32 s79, s79, 1\ns_cbranch_scc0 {L}")
        a(Ld + ":")
    def sent_check(regs, t):
        regs = list(regs)
        if len(regs) == 1:
            a(f"v_cmp_eq_u32 vcc, -1, v{regs[0]}"); return
        first = True
        while regs:
            if first:
                if len(regs) >= 3: a(f"v_max3_u32 v{t}, v{regs[0]}, v{regs[1]}, v{regs[2]}"); regs = regs[3:]
                else: a(f"v_max_u32 v{t}, v{regs[0]}, v{regs[1]}"); regs = regs[2:]
                first = False
            elif len(regs) >= 2: a(f"v_max3_u32 v{t}, v{t}, v{regs[0]}, v{regs[1]}"); regs = regs[2:]
            else: a(f"v_max_u32 v{t}, v{t}, v{regs[0]}"); regs = regs[1:]
        a(f"v_cmp_eq_u32 vcc, -1, v{t}")
    def rows_allreduce(op, v, t, both=True):
        a(f"v_mov_b32 v{t}, v{v}\nv_permlane16_swap_b32 v{v}, v{t}\n{op} v{v}, v{v}, v{t}")
        if both: a(f"v_mov_b32 v{t}, v{v}\nv_permlane32_swap_b32 v{v}, v{t}\n{op} v{v}, v{v}, v{t}")
    def half_masks(first, esrc, t0):
        a(f"v_and_b32 v{t0}, 1, v{esrc}\nv_lshlrev_b32 v{t0}, 4, v{t0}\nv_mov_b32 v{t0+1}, 0xffff\nv_lshlrev_b32 v{t0}, v{t0}, v{t0+1}")
        a(f"v_lshrrev_b32 v{t0+1}, 1, v{esrc}")
        for r in range(4):
            a(f"v_cmp_eq_u32 vcc, {r}, v{t0+1}\nv_cndmask_b32 v{first+r}, 0, v{t0}, vcc")

    a(f".text\n.globl {kname}\n.p2align 8\n.type {kname},@function\n{kname}:")
    a("s_cmp_ge_u32 s2, 256\ns_cbranch_scc1 L_exit")
    a("s_load_dwordx16 s[8:23], s[0:1], 0\ns_load_dwordx8 s[24:31], s[0:1], 64")
    a("s_getpc_b64 s[4:5]\nL_pc:")
    a("v_lshlrev_b32 v4, 7, v0\nv_min_u32 v4, L_code_end-L_pc-4, v4")
    a("global_load_dword v4, v4, s[4:5]")
    a("v_lshrrev_b32 v5, 6, v0\nv_and_b32 v1, 63, v0\nv_readfirstlane_b32 s3, v5")
    a("s_and_b32 s72, s2, 7\ns_lshr_b32 s73, s2, 3\ns_lshl_b32 s6, s72, 5\ns_add_u32 s6, s6, s73")
    a("s_lshr_b32 s74, s6, 3\ns_and_b32 s75, s6, 7\ns_and_b32 s76, s3, 3")
    a("s_getreg_b32 s78, hwreg(HW_REG_XCC_ID, 0, 4)")
    a("v_lshlrev_b32 v5, 4, v0\nv_mov_b32 v112, -1\nv_mov_b32 v113, -1\nv_mov_b32 v114, -1\nv_mov_b32 v115, -1")
    for k in range(LDSZ // 8192):
        a(f"ds_write_b128 v5, v[112:115] offset:{k*8192}")
    a("v_and_b32 v6, 15, v1\nv_lshrrev_b32 v7, 4, v1")
    a("s_cmp_lt_u32 s3, 4\ns_cbranch_scc1 L_aux")

    a("s_setprio 2")
    a("v_bfe_u32 v8, v1, 2, 2\nv_lshlrev_b32 v8, 8, v8\nv_lshl_or_b32 v8, v7, 6, v8\nv_and_b32 v9, 3, v1\nv_lshl_or_b32 v2, v9, 4, v8")
    a("s_lshl_b32 s7, s6, 18\ns_lshl_b32 s79, s76, 12\ns_add_u32 s7, s7, s79")
    a("v_add_u32 v2, s7, v2\nv_lshl_add_u32 v3, v1, 4, s7")
    a("s_waitcnt lgkmcnt(0)")
    srd(32, 10, 1 << 27); srd(36, 12, 1 << 27); srd(40, 30, WSZ)
    a("s_load_dword s77, s[30:31], 0")
    RING, NB = 128, 32
    BK, DK, ACC, BV, MLB, MLS, RMAX, S = 16, 32, 40, 44, 52, 56, 60, [64, 80]
    vm = ["code"]
    landed = [-1]
    def wait_vm(idx):
        if idx > landed[0]:
            a(f"s_waitcnt vmcnt({len(vm) - 1 - idx})"); landed[0] = idx
    ld_idx = {}
    cur_so = [None]
    def issue(i):
        ph, n = divmod(i, 64)
        b, isv = ph & 1, ph >> 1
        so = (b << 26) + (n >> 2) * 16384
        if cur_so[0] != so:
            a(f"s_mov_b32 s7, {hx(so)}"); cur_so[0] = so
        r = RING + (i % NB) * 4
        a(f"buffer_load_dwordx4 v[{r}:{r+3}], {'v3' if isv else 'v2'}, {sV if isv else sK}, s7 offen offset:{(n & 3) * 1024} {kvpol}")
        ld_idx[i] = len(vm); vm.append(("ld", i))

    items = []
    def add(cost, needs, fn): items.append((cost, needs, fn))
    def it_setup():
        half_masks(10, 6, 8)
        for t in range(4): mask64(80 + 2 * t, 0x000F000F000F000F << (4 * t))
        mask64(88, 0x00FF00FF00FF00FF)
        a(f"v_and_b32 v9, 3, v1\nv_lshlrev_b32 v9, 4, v9\nv_lshl_or_b32 v14, v7, 6, v9")
        a(f"v_and_b32 v15, 31, v1\nv_lshlrev_b32 v15, 4, v15")
        a(f"v_lshl_add_u32 v9, v7, 3, v6\nv_lshlrev_b32 v9, 4, v9\ns_lshl_b32 s79, s76, 9\nv_add_u32 v62, s79, v9")
        a(f"s_lshl_b32 s79, s6, 9\nv_add_u32 v63, s79, v15")
        a("v_mov_b32 v61, 0")
        a("s_waitcnt lgkmcnt(0)")
        a("s_mul_i32 s77, s77, 1664525\ns_add_u32 s77, s77, 1013904223")
        a(f"v_mov_b32 v{MLS+1}, s77\nv_mov_b32 v{MLS+3}, s77")
        a(f"s_lshl_b32 s90, s74, 9\ns_add_u32 s90, s90, {ML}")
        a("s_lshl_b32 s91, s75, 2\ns_add_u32 s91, s91, s76\ns_lshl_b32 s91, s91, 4\ns_add_u32 s91, s91, s90")
        a(f"s_mov_b32 s92, {hx(f2u(128 ** -0.5))}\ns_mov_b32 s93, {hx(LOG2E)}")
    def it_qfrag(b):
        def fn():
            L = spin_begin("q")
            a(f"ds_read_b128 v[112:115], v14 offset:{QF + b * 256}\ns_waitcnt lgkmcnt(0)")
            sent_check(range(112, 116), 116)
            spin_end(L, 1)
            if b == 0: stamp(1)
            for t in range(4):
                for r in range(4):
                    a(f"v_cndmask_b32 v{BK + 4*t + r}, 0, v{112 + r}, s[{80+2*t}:{81+2*t}]")
        return fn
    def it_k(i):
        b, n = divmod(i, 64); u, t = n >> 2, n & 3
        def fn():
            r = RING + (i % NB) * 4; d = DK + (u & 1) * 4
            a(f"v_mfma_f32_16x16x32_bf16 v[{d}:{d+3}], v[{r}:{r+3}], v[{BK+4*t}:{BK+4*t+3}], {'0' if t == 0 else f'v[{d}:{d+3}]'}")
        return fn
    def it_kred(b, u):
        def fn():
            d = DK + (u & 1) * 4; s = S[b] + u
            a(f"v_mov_b32_dpp v{s}, v{d} quad_perm:[0,0,0,0] {DPPM}")
            for r in range(1, 4):
                a(f"v_add_f32_dpp v{s}, v{d+r}, v{s} quad_perm:[{r},{r},{r},{r}] {DPPM}")
            bfr(s, s); a(f"v_mul_f32 v{s}, s92, v{s}"); bfr(s, s)
            a(f"v_mov_b32 v{RMAX}, v{s}" if u == 0 else f"v_max_f32 v{RMAX}, v{RMAX}, v{s}")
        return fn
    def it_max(b):
        def fn():
            a(f"v_max_f32_dpp v{RMAX}, v{RMAX}, v{RMAX} row_ror:8 {DPPM}\nv_max_f32_dpp v{RMAX}, v{RMAX}, v{RMAX} row_ror:4 {DPPM}")
            rows_allreduce("v_max_f32", RMAX, 112)
            a(f"v_mov_b32 v{MLS}, v{RMAX}\nv_mov_b32 v{MLS+2}, 0")
        return fn
    def it_sum(b, u0):
        def fn():
            for u in range(u0, u0 + 4): a(f"v_sub_f32 v{112+u-u0}, v{S[b]+u}, v{MLS}")
            for u in range(4): a(f"v_mul_f32 v{112+u}, s93, v{112+u}")
            for u in range(4): a(f"v_exp_f32 v{112+u}, v{112+u}")
            for u in range(4): a(f"v_add_f32 v{MLS+2}, v{MLS+2}, v{112+u}")
        return fn
    def it_mlpub(b):
        def fn():
            l = MLS + 2
            a(f"v_add_f32_dpp v{l}, v{l}, v{l} row_ror:8 {DPPM}\nv_add_f32_dpp v{l}, v{l}, v{l} row_ror:4 {DPPM}")
            rows_allreduce("v_add_f32", l, 112)
            a(f"s_add_u32 s79, s91, {b * 16384}\ns_mov_b64 exec, 1")
            a(f"buffer_store_dwordx4 v[{MLS}:{MLS+3}], v61, {sWS}, s79 offen sc0 sc1\ns_mov_b64 exec, -1")
            vm.append("mlst")
        return fn
    def ml_issue(b):
        a(f"s_add_u32 s94, s90, {b * 16384}")
        a(f"buffer_load_dwordx4 v[{MLB}:{MLB+3}], v15, {sWS}, s94 offen sc1")
        ld_idx[("ml", b)] = len(vm); vm.append("mlld")
    def it_mlget(b):
        def fn():
            Lok, chk = a.lab("mlok"), f"v_cmp_ne_u32 vcc, s77, v{MLB+1}\nv_cmp_ne_u32 s[96:97], s77, v{MLB+3}\ns_or_b64 vcc, vcc, s[96:97]"
            a(chk); a(f"s_cbranch_vccz {Lok}")
            L = spin_begin("ml")
            a(f"buffer_load_dwordx4 v[{MLB}:{MLB+3}], v15, {sWS}, s94 offen sc1\ns_waitcnt vmcnt(0)")
            a(chk); spin_end(L, 2)
            a(Lok + ":")
            M, Ls = MLB + 1, MLB + 2
            a(f"v_max_f32_dpp v{M}, v{MLB}, v{MLB} row_ror:8 {DPPM}")
            for k in (4, 2, 1): a(f"v_max_f32_dpp v{M}, v{M}, v{M} row_ror:{k} {DPPM}")
            rows_allreduce("v_max_f32", M, 112, both=False)
            a(f"v_sub_f32 v112, v{MLB}, v{M}\nv_mul_f32 v112, s93, v112\nv_exp_f32 v112, v112\nv_mul_f32 v{Ls}, v{Ls}, v112")
            for k in (8, 4, 2, 1): a(f"v_add_f32_dpp v{Ls}, v{Ls}, v{Ls} row_ror:{k} {DPPM}")
            rows_allreduce("v_add_f32", Ls, 112, both=False)
            a(f"v_rcp_f32 v{Ls}, v{Ls}")
        return fn
    def it_p(b, u0):
        def fn():
            R = [S[b] + u for u in range(u0, u0 + 4)]
            for s in R: a(f"v_sub_f32 v{s}, v{s}, v{MLB+1}")
            for s in R: a(f"v_mul_f32 v{s}, s93, v{s}")
            for s in R: a(f"v_exp_f32 v{s}, v{s}")
            for s in R: a(f"v_mul_f32 v{s}, v{s}, v{MLB+2}")
            for s in R: a(f"v_cvt_pk_bf16_f32 v{s}, v{s}, v{s}")
        return fn
    def v_bfrag(i):
        b, n = divmod(i - 128, 64); u, t = n >> 2, n & 3; bv = BV + (i & 1) * 4
        for r in range(4):
            a(f"v_and_b32_dpp v{bv+r}, v{S[b]+u}, v{10+r} row_newbcast:{4*t} {DPPM}")
    def v_mfma(i):
        n = (i - 128) % 64; r = RING + (i % NB) * 4; bv = BV + (i & 1) * 4
        a(f"v_mfma_f32_16x16x32_bf16 v[{ACC}:{ACC+3}], v[{r}:{r+3}], v[{bv}:{bv+3}], {'0' if n == 0 else f'v[{ACC}:{ACC+3}]'}")
    def it_opub(b):
        def fn():
            Ls = a.lab("olast")
            if b == 1: stamp(2)
            a(f"v_mov_b32 v112, 1\ns_mov_b64 exec, s[88:89]")
            a(f"ds_write_b128 v62, v[{ACC}:{ACC+3}] offset:{ORED + b * 2048}")
            a(f"s_mov_b64 exec, 1\nds_add_rtn_u32 v113, v61, v112 offset:{CNT + 4*b}\ns_mov_b64 exec, -1")
            for w in range(4): a(f"ds_read_b128 v[{96+4*w}:{99+4*w}], v15 offset:{ORED + b * 2048 + w * 512}")
            a(f"s_mov_b32 s95, {OPA + b * 0x20000}\ns_mov_b32 s96, {OPB + b * 0x20000}")
            a("s_waitcnt lgkmcnt(0)\nv_readfirstlane_b32 s79, v113")
            a("v_pk_add_f32 v[96:97], v[96:97], v[100:101]\nv_pk_add_f32 v[98:99], v[98:99], v[102:103]")
            a("v_pk_add_f32 v[104:105], v[104:105], v[108:109]\nv_pk_add_f32 v[106:107], v[106:107], v[110:111]")
            a(f"s_cmp_lg_u32 s79, 2\ns_cbranch_scc1 {Ls}")
            a("v_pk_add_f32 v[96:97], v[96:97], v[104:105]\nv_pk_add_f32 v[98:99], v[98:99], v[106:107]")
            if b == 0:
                L = spin_begin("clr")
                a(f"ds_read_b32 v114, v61 offset:{CLR}\ns_waitcnt lgkmcnt(0)\nv_cmp_eq_u32 vcc, -1, v114")
                spin_end(L, 2)
            a("s_mov_b32 exec_hi, 0")
            a(f"buffer_store_dwordx4 v[96:99], v63, {sWS}, s95 offen")
            a(f"buffer_store_dwordx4 v[96:99], v63, {sWS}, s96 offen sc0 sc1")
            a("s_mov_b64 exec, -1")
            if b == 1: stamp(3)
            a(Ls + ":")
        return fn

    for b in range(2):
        add(30, None, it_qfrag(b))
        for n in range(64):
            add(4, 64 * b + n, it_k(64 * b + n))
            if n & 3 == 0 and n: add(12, None, it_kred(b, (n >> 2) - 1))
            if b == 1 and 64 + n == ml0:
                add(40, ("ml", 0), it_mlget(0))
                for u0 in range(0, 16, 4): add(24, None, it_p(0, u0))
        add(16, None, it_kred(b, 15)); add(20, None, it_max(b))
        for u0 in range(0, 16, 4): add(20, None, it_sum(b, u0))
        add(20, None, it_mlpub(b))
    for b in range(2):
        for n in range(64):
            i = 128 + 64 * b + n
            add(4, None, (lambda i=i: v_bfrag(i))); add(4, i, (lambda i=i: v_mfma(i)))
            if b == 0 and i == ml1:
                add(40, ("ml", 1), it_mlget(1))
                for u0 in range(0, 16, 4): add(24, None, it_p(1, u0))
        add(40, None, it_opub(b))

    consumed = [-1]
    def run_items(bud, force=False):
        while items:
            cost, needs, fn = items[0]
            if needs is not None:
                if needs not in ld_idx: return
                if ld_idx[needs] > landed[0]:
                    if not force: return
                    wait_vm(ld_idx[needs])
            if bud <= 0 and not force: return
            items.pop(0); fn(); bud -= cost
            if isinstance(needs, int): consumed[0] = needs
    issued = 0
    step = 0
    while issued < 256:
        i = issued
        d = taildepth if i >= tailfrom else depth
        if i - d >= 0: wait_vm(ld_idx[i - d])
        while consumed[0] < i - NB:
            n0 = len(items); run_items(1); assert len(items) < n0, "ring stall"
        issue(i); issued += 1
        if i == depth - 1:
            a("s_barrier"); it_setup(); stamp(0)
        if i == ml0: ml_issue(0)
        if i == ml1: ml_issue(1)
        if i >= P - 1: run_items(budget)
    run_items(0, force=True)
    dump_stamps()
    a("s_endpgm")

    a("L_aux:")
    a("v_and_b32 v8, 31, v1\nv_lshlrev_b32 v8, 3, v8\nv_lshrrev_b32 v9, 5, v1\nv_mul_u32_u24 v9, 1280, v9\nv_add_u32 v2, v8, v9")
    a("s_mul_i32 s7, s75, 80\ns_mul_i32 s79, s76, 20\ns_add_u32 s7, s7, s79\nv_add_u32 v8, s7, v7")
    a("v_bfe_u32 v9, v1, 3, 1\nv_mul_u32_u24 v9, 1280, v9\nv_lshl_add_u32 v3, v8, 1, v9")
    a("s_lshl_b32 s7, s74, 8\nv_lshlrev_b32 v8, 13, v8\nv_lshl_add_u32 v9, v6, 4, s7\nv_add_u32 v5, v8, v9")
    a("s_waitcnt lgkmcnt(0)")
    srd(44, 8, 2560); srd(48, 14, 640 * 4096 * 2); srd(40, 30, WSZ)
    for i in range(5): a(f"buffer_load_dwordx2 v[{8+2*i}:{9+2*i}], v2, {sX}, 0 offen offset:{256*i}")
    for i in range(5): a(f"buffer_load_ushort v{18+i}, v3, {sX}, 0 offen offset:{8*i}")
    for i in range(5):
        a(f"s_mov_b32 s7, {i * 32768}\nbuffer_load_dwordx4 v[{24+4*i}:{27+4*i}], v5, {sWQ}, s7 offen {wpol}")
    a("s_load_dword s77, s[30:31], 0")
    srd(52, 16, 4096 * 640 * 2); srd(56, 20, 640 * 1728 * 2); srd(60, 22, 640 * 1728 * 2); srd(64, 24, 1728 * 640 * 2); srd(68, 26, 2560)
    a("s_barrier")
    a("v_and_b32 v68, 7, v1"); half_masks(64, 68, 69)
    mask64(88, 0xFF00FF00FF00FF00)
    a(f"s_mov_b32 s92, {hx(f2u(1/640))}\ns_mov_b32 s93, {hx(f2u(1e-5))}")
    a("s_waitcnt lgkmcnt(0)")
    stamp(0)
    a("s_mul_i32 s77, s77, 1664525\ns_add_u32 s77, s77, 1013904223")
    a("s_waitcnt vmcnt(10)")
    for i in range(10): a(f"v_lshlrev_b32 v{44+2*i}, 16, v{8+i}\nv_and_b32 v{45+2*i}, 0xffff0000, v{8+i}")
    def red32(v):
        for k in (8, 4, 2, 1): a(f"v_add_f32_dpp v{v}, v{v}, v{v} row_ror:{k} {DPPM}")
        rows_allreduce("v_add_f32", v, 71, both=False)
    a("v_pk_add_f32 v[8:9], v[44:45], v[46:47]")
    for i in range(2, 10): a(f"v_pk_add_f32 v[8:9], v[8:9], v[{44+2*i}:{45+2*i}]")
    a("v_add_f32 v8, v8, v9"); red32(8)
    a("v_mul_f32 v8, s92, v8\nv_mov_b32 v10, 0\nv_mov_b32 v11, 0")
    for i in range(20): a(f"v_sub_f32 v{44+i}, v{44+i}, v8")
    for i in range(20): a(f"v_fmac_f32 v{10+(i&1)}, v{44+i}, v{44+i}")
    a("v_add_f32 v10, v10, v11"); red32(10)
    def ln_finish(mean, var):
        bfr(var, var); bfr(mean, mean); a(f"v_add_f32 v{var}, s93, v{var}"); bfr(var, var); a(f"v_sqrt_f32 v{var}, v{var}"); bfr(var, var)
        a(f"v_rcp_f32 v{var}, v{var}")
    a("v_mul_f32 v10, s92, v10"); ln_finish(8, 10)
    a("v_readlane_b32 s80, v8, 0\nv_readlane_b32 s81, v8, 32\nv_readlane_b32 s82, v10, 0\nv_readlane_b32 s83, v10, 32")
    a("v_mov_b32 v8, s80\nv_mov_b32 v9, s81\nv_mov_b32 v10, s82\nv_mov_b32 v11, s83")
    a("v_cndmask_b32 v8, v8, v9, s[88:89]\nv_cndmask_b32 v10, v10, v11, s[88:89]")
    a("s_waitcnt vmcnt(5)")
    for i in range(5): a(f"v_lshlrev_b32 v{18+i}, 16, v{18+i}\nv_sub_f32 v{18+i}, v{18+i}, v8")
    for i in range(5): bfr(18 + i, 18 + i)
    for i in range(5): a(f"v_mul_f32 v{18+i}, v{18+i}, v10\nv_cvt_pk_bf16_f32 v{18+i}, v{18+i}, v{18+i}")
    for i in range(5):
        for r in range(4): a(f"v_and_b32 v{44+4*i+r}, v{18+i}, v{64+r}")
    for i in range(5):
        a(f"s_waitcnt vmcnt({4-i})")
        a(f"v_mfma_f32_16x16x32_bf16 v[72:75], v[{24+4*i}:{27+4*i}], v[{44+4*i}:{47+4*i}], {'0' if i == 0 else 'v[72:75]'}")
    a("v_lshlrev_b32 v8, 4, v0\nv_lshlrev_b32 v9, 4, v1\ns_lshl_b32 s7, s76, 2\nv_add_u32 v9, s7, v9")
    a("v_lshlrev_b32 v12, 3, v0\ns_lshl_b32 s80, s6, 11")
    a(f"s_add_u32 s80, s80, {QP}\ns_lshl_b32 s81, s74, 14\ns_add_u32 s81, s81, {QP}")
    a(f"ds_write_b128 v8, v[72:75] offset:{QRED}")
    L = spin_begin("qred")
    for w in range(4): a(f"ds_read_b32 v{76+w}, v9 offset:{QRED + 1024*w}")
    a("s_waitcnt lgkmcnt(0)"); sent_check(range(76, 80), 80); spin_end(L)
    a("v_add_f32 v76, v76, v77\nv_add_f32 v78, v78, v79\nv_add_f32 v76, v76, v78\nv_mov_b32 v77, s77")
    a(f"buffer_store_dwordx2 v[76:77], v12, {sWS}, s80 offen sc0 sc1")
    stamp(1)
    for k in range(1, 4): a(f"s_add_u32 s{81+k}, s81, {4096*k}")
    a("v_bfe_u32 v13, v1, 3, 1\nv_lshlrev_b32 v13, 8, v13\nv_lshl_or_b32 v13, v7, 6, v13\nv_lshl_add_u32 v13, v68, 1, v13")
    a("s_lshl_b32 s7, s76, 4\nv_add_u32 v13, s7, v13")
    mask64(86, 0x5555555555555555)
    a("s_sleep 6")
    L = spin_begin("qg")
    for k in range(8): a(f"buffer_load_dwordx2 v[{80+2*k}:{81+2*k}], v12, {sWS}, s{81+(k>>1)} offen offset:{2048*(k&1)} sc1")
    a("s_waitcnt vmcnt(0)")
    for k in range(8): a(f"v_xor_b32 v{81+2*k}, s77, v{81+2*k}")
    a("v_or3_b32 v81, v81, v83, v85\nv_or3_b32 v87, v87, v89, v91\nv_or3_b32 v81, v81, v93, v95\nv_or_b32 v81, v81, v87\nv_cmp_ne_u32 vcc, 0, v81")
    spin_end(L, 1)
    a("v_add_f32 v80, v80, v82\nv_add_f32 v84, v84, v86\nv_add_f32 v88, v88, v90\nv_add_f32 v92, v92, v94")
    a("v_add_f32 v80, v80, v84\nv_add_f32 v88, v88, v92\nv_add_f32 v80, v80, v88")
    a(f"v_mov_b32_dpp v81, v80 quad_perm:[1,1,3,3] {DPPM}\nv_cvt_pk_bf16_f32 v80, v80, v81\nv_min_u32 v80, -2, v80")
    a(f"s_mov_b64 exec, s[86:87]\nds_write_b32 v13, v80 offset:{QF}\ns_mov_b64 exec, -1")
    stamp(2)
    a("s_mov_b32 s84, 1\ns_mov_b32 s85, s73\ns_cmp_lt_u32 s73, 10\ns_cbranch_scc1 L_role")
    a("s_sub_u32 s7, s73, 10\ns_lshr_b32 s85, s7, 1\ns_lshl_b32 s85, s85, 3\ns_add_u32 s85, s85, s72")
    a("s_mov_b32 s84, 0\ns_cmp_lt_u32 s85, 27\ns_cbranch_scc0 L_role")
    a("s_mov_b32 s84, 2\ns_lshl_b32 s85, s85, 1\ns_and_b32 s7, s7, 1\ns_add_u32 s85, s85, s7")
    a("L_role:")
    a("s_cmp_lg_u32 s76, 0\ns_cbranch_scc1 L_noclr")
    a("v_and_b32 v8, 31, v1\nv_lshlrev_b32 v8, 4, v8\nv_lshrrev_b32 v9, 5, v1\nv_lshl_or_b32 v8, v9, 17, v8\ns_lshl_b32 s7, s6, 9\nv_add_u32 v8, s7, v8")
    a(f"s_mov_b32 s7, {OPA}\nbuffer_store_dwordx4 v[112:115], v8, {sWS}, s7 offen sc0 sc1")
    a(f"s_mov_b32 s7, {OPB}\nbuffer_store_dwordx4 v[112:115], v8, {sWS}, s7 offen sc0 sc1")
    a("s_cmp_lg_u32 s84, 1\ns_cbranch_scc1 L_clr2")
    a("v_and_b32 v9, 1, v7\nv_mul_u32_u24 v9, 20480, v9\nv_lshl_add_u32 v8, v6, 4, v9")
    a(f"s_mul_i32 s7, s72, 2560\ns_lshl_b32 s79, s85, 8\ns_add_u32 s7, s7, s79\ns_add_u32 s7, s7, {YP}")
    a(f"s_mov_b32 exec_hi, 0\nbuffer_store_dwordx4 v[112:115], v8, {sWS}, s7 offen sc0 sc1\ns_mov_b64 exec, -1")
    a("L_clr2:")
    a("s_cmp_lg_u32 s84, 2\ns_cbranch_scc1 L_clr3")
    a("v_and_b32 v8, 31, v1\nv_lshlrev_b32 v8, 4, v8\nv_lshrrev_b32 v9, 5, v1\nv_mul_u32_u24 v9, 138240, v9\nv_add_u32 v8, v8, v9")
    a(f"s_mul_i32 s7, s85, 2560\ns_add_u32 s7, s7, {DP}")
    for k in range(5): a(f"buffer_store_dwordx4 v[112:115], v8, {sWS}, s7 offen offset:{512*k} sc0 sc1")
    a("L_clr3:")
    a(f"v_mov_b32 v8, 0\nv_mov_b32 v10, s78\nv_mov_b32 v11, s77\ns_lshl_b32 s7, s6, 3\ns_add_u32 s7, s7, {TT}")
    a(f"s_waitcnt vmcnt(0)\ns_mov_b64 exec, 1\nds_write_b32 v8, v8 offset:{CLR}")
    a(f"buffer_store_dwordx2 v[10:11], v8, {sWS}, s7 offen sc0 sc1\ns_mov_b64 exec, -1")
    a("L_noclr:")
    a("s_mov_b32 s90, 0x05040100\ns_mov_b32 s91, 0x07060302")
    mask64(88, 0x0001000100010001)
    a("v_mov_b32 v61, 0")
    a("s_cmp_eq_u32 s84, 2\ns_cbranch_scc1 L_ffn\ns_cmp_eq_u32 s84, 1\ns_cbranch_scc1 L_wo")
    dump_stamps()
    a("s_endpgm")

    def table_check():
        a(f"v_lshlrev_b32 v8, 4, v1\ns_mov_b32 s7, {TT}")
        L = spin_begin("tt")
        a(f"buffer_load_dwordx4 v[64:67], v8, {sWS}, s7 offen sc1\nbuffer_load_dwordx4 v[68:71], v8, {sWS}, s7 offen offset:1024 sc1")
        a("s_waitcnt vmcnt(0)")
        for k in range(4): a(f"v_xor_b32 v{65+2*k}, s77, v{65+2*k}")
        a("v_or3_b32 v65, v65, v67, v69\nv_or_b32 v65, v65, v71\nv_cmp_ne_u32 vcc, 0, v65")
        spin_end(L, 16)
    def wait_own_v():
        L = spin_begin("own")
        a("ds_read_b32 v8, v60\ns_waitcnt lgkmcnt(0)\nv_cmp_ne_u32 vcc, 3, v8")
        spin_end(L, 2)
    def staged(nbatch, nld, issue_fn, finish_fn):
        for k in range(min(wthr, nbatch)): issue_fn(k, k % wthr)
        for k in range(nbatch):
            a(f"s_waitcnt vmcnt({nld * (min(nbatch, k + wthr) - k - 1)})")
            finish_fn(k, k % wthr)
            if k + wthr < nbatch: issue_fn(k + wthr, k % wthr)
    backoff = "first"

    a("L_wo:")
    a("s_lshl_b32 s7, s72, 2\ns_add_u32 s7, s7, s76\ns_lshl_b32 s7, s7, 7\nv_lshl_add_u32 v8, v7, 5, s7\nv_mul_u32_u24 v8, 1280, v8")
    a("s_lshl_b32 s7, s85, 7\nv_lshl_add_u32 v9, v6, 3, s7\nv_add_u32 v2, v8, v9")
    a("s_waitcnt vmcnt(0)")
    def wo_issue(k, slot):
        for p in range(2):
            a(f"s_mov_b32 s7, {(2*k + p) * 2560}")
            for e in range(2):
                r = 64 + slot * 8 + p * 4 + e * 2
                a(f"buffer_load_dwordx2 v[{r}:{r+1}], v2, {sWO}, s7 offen offset:{1280*e} {wpol}")
    def wo_finish(k, slot):
        for p in range(2):
            pair = 2 * k + p; r, i = pair >> 2, pair & 3; t = 64 + slot * 8 + p * 4
            for q in range(4):
                a(f"v_perm_b32 v{128 + (i*4 + q)*4 + r}, v{t + 2 + (q>>1)}, v{t + (q>>1)}, s{90 + (q&1)}")
    staged(8, 4, wo_issue, wo_finish)
    table_check()
    a(f"v_and_b32 v8, 31, v1\nv_lshlrev_b32 v8, 3, v8\ns_lshl_b32 s7, s72, 8\ns_add_u32 s7, s7, {TT}")
    a(f"buffer_load_dword v9, v8, {sWS}, s7 offen sc1\ns_waitcnt vmcnt(0)\nv_cmp_ne_u32 vcc, s78, v9")
    a(f"s_mov_b32 s94, {OPB}\ns_cmp_eq_u64 vcc, 0\ns_cselect_b32 s94, {OPA if fast else OPB}, s94")
    a("s_lshl_b32 s7, s72, 2\ns_add_u32 s7, s7, s76\ns_lshl_b32 s7, s7, 12")
    a("v_bfe_u32 v8, v1, 2, 2\nv_lshlrev_b32 v8, 10, v8\nv_lshl_or_b32 v8, v7, 7, v8\nv_and_b32 v9, 3, v1\nv_lshl_or_b32 v8, v9, 5, v8\nv_add_u32 v2, s7, v8")
    a(f"s_lshl_b32 s7, s76, 8\ns_add_u32 s7, s7, {YRED}\nv_lshl_add_u32 v3, v7, 4, s7")
    a(f"v_lshlrev_b32 v59, 4, v6\nv_add_u32 v5, {YRED}, v59")
    a(f"s_mul_i32 s95, s72, 2560\ns_lshl_b32 s7, s85, 8\ns_add_u32 s95, s95, s7\ns_add_u32 s95, s95, {YP}")
    a(f"v_mov_b32 v60, {CNT}\ns_mov_b32 s98, 0")
    stamp(3)
    a("L_wo_b:")
    wait_own_v()
    stamp(4)
    L = spin_begin("h1")
    for k, off in enumerate((0, 16, 512, 528)):
        a(f"buffer_load_dwordx4 v[{64+4*k}:{67+4*k}], v2, {sWS}, s94 offen offset:{off} sc1")
    a("s_waitcnt vmcnt(0)"); sent_check(range(64, 80), 8); spin_end(L, backoff)
    stamp(5)
    for k in range(4): a(f"v_pk_add_f32 v[{64+2*k}:{65+2*k}], v[{64+2*k}:{65+2*k}], v[{72+2*k}:{73+2*k}]")
    for ror in (8, 4):
        for k in range(8): a(f"v_add_f32_dpp v{64+k}, v{64+k}, v{64+k} row_ror:{ror} {DPPM}")
    for r in range(4): a(f"v_cvt_pk_bf16_f32 v{72+r}, v{64+r}, v{68+r}")
    def wo_b(i):
        for r in range(4): a(f"v_mov_b32_dpp v{80+4*i+r}, v{72+r} quad_perm:[{i},{i},{i},{i}] {DPPM}")
    wo_b(0); wo_b(1)
    for i in range(4):
        for q in range(4):
            A = 128 + (i * 4 + q) * 4; D = 96 + 4 * q
            a(f"v_mfma_f32_16x16x32_bf16 v[{D}:{D+3}], v[{A}:{A+3}], v[{80+4*i}:{83+4*i}], {'0' if i == 0 else f'v[{D}:{D+3}]'}")
            if q == 0 and i < 2: wo_b(i + 2)
    a("s_mov_b64 exec, s[88:89]")
    for q in range(4): a(f"ds_write_b128 v3, v[{96+4*q}:{99+4*q}] offset:{64*q}")
    a("s_mov_b64 exec, -1\ns_cmp_lg_u32 s76, 0\ns_cbranch_scc1 L_wo_next")
    L = spin_begin("yr")
    for w in range(4): a(f"ds_read_b128 v[{64+4*w}:{67+4*w}], v5 offset:{256*w}")
    a("s_waitcnt lgkmcnt(0)"); sent_check(range(64, 80), 8); spin_end(L)
    a("v_pk_add_f32 v[64:65], v[64:65], v[68:69]\nv_pk_add_f32 v[66:67], v[66:67], v[70:71]")
    a("v_pk_add_f32 v[72:73], v[72:73], v[76:77]\nv_pk_add_f32 v[74:75], v[74:75], v[78:79]")
    a("v_pk_add_f32 v[64:65], v[64:65], v[72:73]\nv_pk_add_f32 v[66:67], v[66:67], v[74:75]")
    a(f"s_mov_b64 exec, 0xffff\nbuffer_store_dwordx4 v[64:67], v59, {sWS}, s95 offen sc0 sc1\ns_mov_b64 exec, -1")
    stamp(6)
    a("L_wo_next:")
    a("s_add_u32 s94, s94, 0x20000\ns_add_u32 s95, s95, 20480\nv_add_u32 v3, 1024, v3\nv_add_u32 v5, 1024, v5\nv_add_u32 v60, 4, v60")
    a("s_add_u32 s98, s98, 1\ns_cmp_lt_u32 s98, 2\ns_waitcnt vmcnt(0)\ns_cbranch_scc1 L_wo_b")
    dump_stamps()
    a("s_endpgm")

    a("L_ffn:")
    def rowbase(d, q, t):
        a(f"v_lshrrev_b32 v{t}, 4, v{q}\nv_bfe_u32 v{d}, v{q}, 2, 2\nv_lshl_or_b32 v{d}, v{t}, 6, v{d}\nv_and_b32 v{t}, 3, v{q}\nv_lshl_or_b32 v{d}, v{t}, 4, v{d}")
    a("s_mul_i32 s7, s76, 40\nv_mul_u32_u24 v12, 10, v7\nv_add_u32 v12, s7, v12")
    a("s_lshl_b32 s7, s85, 6\nv_lshl_add_u32 v13, v6, 2, s7")
    for r in range(1, 4): a(f"s_mov_b32 s{80+r}, {r * 13824}")
    a("s_mov_b32 s80, 3456\ns_waitcnt vmcnt(0)")
    def gu_issue(k, slot):
        a(f"v_add_u32 v8, {k}, v12"); rowbase(9, 8, 10); a("v_mad_u32_u24 v9, v9, s80, v13")
        for m in range(2):
            for r in range(4):
                a(f"buffer_load_dword v{64 + slot*8 + m*4 + r}, v9, {sWU if m else sWG}, {'0' if r == 0 else f's{80+r}'} offen {wpol}")
    def gu_finish(k, slot):
        i, half = k >> 1, k & 1
        for m in range(2):
            for par in range(2):
                for rr in range(2):
                    t = 64 + slot * 8 + m * 4 + 2 * rr
                    a(f"v_perm_b32 v{128 + (i*4 + m*2 + par)*4 + 2*half + rr}, v{t+1}, v{t}, s{90+par}")
    staged(10, 8, gu_issue, gu_finish)
    a("s_lshl_b32 s7, s85, 5\nv_lshl_add_u32 v8, v7, 3, s7\nv_mul_u32_u24 v8, 1280, v8\ns_mul_i32 s7, s76, 320\nv_lshl_add_u32 v9, v6, 2, s7\nv_add_u32 v2, v8, v9")
    for r in range(1, 4): a(f"s_mov_b32 s{80+r}, {r * 2560}")
    def dn_issue(k, slot):
        for e in range(8):
            a(f"buffer_load_dword v{64 + slot*8 + e}, v2, {sWD}, {'0' if e < 2 else f's{80+(e>>1)}'} offen offset:{(e&1)*1280 + k*64} {wpol}")
    def dn_finish(k, slot):
        for par in range(2):
            for r in range(4):
                t = 64 + slot * 8 + 2 * r
                a(f"v_perm_b32 v{208 + (k*2 + par)*4 + r}, v{t+1}, v{t}, s{90+par}")
    staged(5, 8, dn_issue, dn_finish)
    table_check()
    a("v_add_u32 v8, v12, v6"); rowbase(9, 8, 10)
    a(f"v_cmp_gt_u32 vcc, 10, v6\ns_mov_b64 s[86:87], vcc\nv_mov_b32 v10, {hx(OOB)}")
    a("v_lshlrev_b32 v2, 4, v8\nv_cndmask_b32 v2, v10, v2, vcc")
    a("v_lshlrev_b32 v3, 1, v9\nv_cndmask_b32 v3, v10, v3, vcc")
    a(f"v_lshlrev_b32 v5, 2, v9\nv_add_u32 v5, {HTAB}, v5")
    a(f"s_lshl_b32 s7, s76, 5\ns_add_u32 s7, s7, {STAT}\nv_lshl_add_u32 v50, v7, 3, s7")
    a(f"v_lshlrev_b32 v51, 3, v6\nv_add_u32 v51, {STAT}, v51")
    a(f"s_lshl_b32 s7, s76, 8\ns_add_u32 s7, s7, {GRED}\nv_lshl_add_u32 v52, v7, 4, s7")
    a(f"v_and_b32 v8, 1, v1\nv_lshlrev_b32 v8, 6, v8\nv_lshl_or_b32 v8, v7, 4, v8\nv_bfe_u32 v9, v1, 1, 2\nv_lshl_or_b32 v8, v9, 2, v8\nv_add_u32 v53, {GRED}, v8")
    a("s_mul_i32 s7, s76, 640\nv_lshl_add_u32 v54, v7, 4, s7")
    a(f"s_mul_i32 s95, s85, 2560\ns_add_u32 s95, s95, {DP}")
    a("v_lshrrev_b32 v8, 3, v1\nv_mul_u32_u24 v9, 2560, v8\nv_and_b32 v11, 7, v1\nv_lshl_add_u32 v55, v11, 4, v9")
    a("s_lshl_b32 s7, s85, 7\nv_add_u32 v55, s7, v55\nv_cmp_gt_u32 vcc, 6, v8\nv_cndmask_b32 v56, v10, v55, vcc")
    a("v_and_b32 v8, 3, v1\nv_bfe_u32 v9, v1, 2, 1\nv_lshl_or_b32 v8, v8, 3, v9\nv_bfe_u32 v9, v1, 4, 1\nv_lshl_or_b32 v8, v9, 2, v8\nv_bfe_u32 v9, v1, 5, 1\nv_lshl_or_b32 v8, v9, 1, v8")
    a(f"s_lshl_b32 s7, s85, 5\nv_add_u32 v8, s7, v8\nv_lshlrev_b32 v57, 1, v8\nv_lshlrev_b32 v58, 2, v8\nv_add_u32 v58, {HTAB}, v58")
    a(f"v_mov_b32 v60, {CNT}\ns_mov_b32 s98, 0\ns_mov_b32 s94, {YP}\ns_mov_b32 s96, {DP}\ns_mov_b32 s97, 0")
    c1 = -2.0 * 0.7978845608028654 * 1.4426950408889634
    a(f"s_mov_b32 s100, {hx(f2u(c1 * 0.044715))}\nv_mov_b32 v59, {hx(f2u(c1))}")
    mask64(4, 0x00FF00FF00FF00FF)
    stamp(3)
    a("L_ffn_b:")
    for r in range(4): a(f"buffer_load_ushort v{44+r}, v3, {sX}, s97 offen offset:{8*r}")
    for k in range(1, 4): a(f"s_add_u32 s{80+k}, s94, {5120*k}")
    a("s_waitcnt vmcnt(0)")
    for r in range(4): a(f"v_lshlrev_b32 v{44+r}, 16, v{44+r}")
    wait_own_v()
    stamp(4)
    L = spin_begin("h2")
    for k in range(8):
        a(f"buffer_load_dwordx4 v[{64+4*k}:{67+4*k}], v2, {sWS}, {'s94' if k < 2 else f's{80+(k>>1)}'} offen offset:{2560*(k&1)} sc1")
    a("s_waitcnt vmcnt(0)"); sent_check(range(64, 96), 8); spin_end(L, backoff)
    stamp(5)
    for st in (16, 8, 4):
        for k in range(0, st, 2): a(f"v_pk_add_f32 v[{64+k}:{65+k}], v[{64+k}:{65+k}], v[{64+st+k}:{65+st+k}]")
    a("v_cvt_pk_bf16_f32 v68, v64, v65\nv_cvt_pk_bf16_f32 v69, v66, v67")
    a("v_lshlrev_b32 v64, 16, v68\nv_and_b32 v65, 0xffff0000, v68\nv_lshlrev_b32 v66, 16, v69\nv_and_b32 v67, 0xffff0000, v69")
    a("v_pk_add_f32 v[64:65], v[64:65], v[44:45]\nv_pk_add_f32 v[66:67], v[66:67], v[46:47]")
    a("v_cvt_pk_bf16_f32 v68, v64, v65\nv_cvt_pk_bf16_f32 v69, v66, v67")
    a("v_lshlrev_b32 v64, 16, v68\nv_and_b32 v65, 0xffff0000, v68\nv_lshlrev_b32 v66, 16, v69\nv_and_b32 v67, 0xffff0000, v69")
    a("v_pk_add_f32 v[70:71], v[64:65], v[66:67]\nv_pk_mul_f32 v[72:73], v[64:65], v[64:65]\nv_add_f32 v70, v70, v71")
    a("v_fmac_f32 v72, v66, v66\nv_fmac_f32 v73, v67, v67\nv_add_f32 v71, v72, v73")
    for k in (8, 4, 2, 1):
        a(f"v_add_f32_dpp v70, v70, v70 row_ror:{k} {DPPM}\nv_add_f32_dpp v71, v71, v71 row_ror:{k} {DPPM}")
    a("s_mov_b64 exec, s[88:89]\nds_write_b64 v50, v[70:71]\ns_mov_b64 exec, s[86:87]")
    for r in range(4): a(f"ds_write_b32 v5, v{64+r} offset:{16*r}")
    a("s_mov_b64 exec, -1")
    L = spin_begin("st")
    a("ds_read_b64 v[70:71], v51\ns_waitcnt lgkmcnt(0)"); sent_check((70, 71), 8); spin_end(L)
    for k in (8, 4, 2, 1):
        a(f"v_add_f32_dpp v70, v70, v70 row_ror:{k} {DPPM}\nv_add_f32_dpp v71, v71, v71 row_ror:{k} {DPPM}")
    a("v_mul_f32 v70, s92, v70\nv_mul_f32 v71, s92, v71\nv_fma_f32 v71, -v70, v70, v71\nv_max_f32 v71, 0, v71")
    ln_finish(70, 71)
    for r in range(4): a(f"v_sub_f32 v{64+r}, v{64+r}, v70")
    a("v_cvt_pk_bf16_f32 v68, v64, v65\nv_cvt_pk_bf16_f32 v69, v66, v67")
    a("v_lshlrev_b32 v64, 16, v68\nv_and_b32 v65, 0xffff0000, v68\nv_lshlrev_b32 v66, 16, v69\nv_and_b32 v67, 0xffff0000, v69")
    for r in range(4): a(f"v_mul_f32 v{64+r}, v{64+r}, v71")
    a("v_cvt_pk_bf16_f32 v68, v64, v65\nv_cvt_pk_bf16_f32 v69, v66, v67")
    def gu_b(i):
        for r in range(4): a(f"v_mov_b32_dpp v{72+4*i+r}, v{68+(r&1)} row_newbcast:{2*i+(r>>1)} {DPPM}")
    gu_b(0); gu_b(1)
    for i in range(5):
        for q in range(4):
            A = 128 + (i * 4 + q) * 4; D = 96 + 4 * q
            a(f"v_mfma_f32_16x16x32_bf16 v[{D}:{D+3}], v[{A}:{A+3}], v[{72+4*i}:{75+4*i}], {'0' if i == 0 else f'v[{D}:{D+3}]'}")
            if q == 0 and i < 3: gu_b(i + 2)
    a("s_mov_b64 exec, s[88:89]")
    for q in range(4): a(f"ds_write_b128 v52, v[{96+4*q}:{99+4*q}] offset:{64*q}")
    a("s_mov_b64 exec, -1")
    stamp(6)
    L = spin_begin("gr")
    for w in range(4): a(f"ds_read2_b32 v[{64+2*w}:{65+2*w}], v53 offset0:{64*w} offset1:{64*w+32}")
    a("s_waitcnt lgkmcnt(0)"); sent_check(range(64, 72), 8); spin_end(L)
    a("ds_read_b32 v48, v58")
    a("v_pk_add_f32 v[64:65], v[64:65], v[66:67]\nv_pk_add_f32 v[68:69], v[68:69], v[70:71]\nv_pk_add_f32 v[64:65], v[64:65], v[68:69]")
    a("v_cvt_pk_bf16_f32 v66, v64, v65\nv_lshlrev_b32 v64, 16, v66\nv_and_b32 v65, 0xffff0000, v66")
    a("v_mul_f32 v66, v64, v64\nv_fma_f32 v66, v66, s100, v59\nv_mul_f32 v66, v66, v64\nv_exp_f32 v66, v66\nv_add_f32 v66, 1.0, v66\nv_rcp_f32 v66, v66\nv_mul_f32 v64, v64, v66")
    bfr(64, 64)
    a(f"v_mul_f32 v64, v64, v65\nv_mov_b32_dpp v65, v64 quad_perm:[1,1,3,3] {DPPM}\nv_cvt_pk_bf16_f32 v64, v64, v65")
    for r in range(4): a(f"v_mov_b32_dpp v{68+r}, v64 row_newbcast:{2*r} {DPPM}")
    for k in range(10):
        a(f"v_mfma_f32_16x16x32_bf16 v[{72+4*k}:{75+4*k}], v[{208+4*k}:{211+4*k}], v[68:71], 0")
    a("s_mov_b64 exec, s[88:89]")
    for k in range(10):
        a(f"buffer_store_dwordx4 v[{72+4*k}:{75+4*k}], v54, {sWS}, s95 offen offset:{64*k} sc0 sc1")
    a("s_mov_b64 exec, -1")
    stamp(7)
    a("s_cmp_lg_u32 s76, 0\ns_cbranch_scc1 L_ffn_next\ns_cmp_ge_u32 s85, 20\ns_cbranch_scc1 L_ffn_next")
    if pre3: a(f"s_sleep {pre3}")
    L = spin_begin("h3")
    a("s_mov_b32 s7, s96")
    for k in range(7):
        a(f"buffer_load_dwordx4 v[{16+4*k}:{19+4*k}], {'v56' if k == 6 else 'v55'}, {sWS}, s7 offen sc1")
        if k < 6: a("s_add_u32 s7, s7, 20480")
    a("s_waitcnt vmcnt(0)"); sent_check(range(16, 44), 8); spin_end(L, backoff)
    stamp(8)
    for (d, s) in ((16, 20), (24, 28), (32, 36), (16, 24), (32, 40), (16, 32)):
        a(f"v_pk_add_f32 v[{d}:{d+1}], v[{d}:{d+1}], v[{s}:{s+1}]\nv_pk_add_f32 v[{d+2}:{d+3}], v[{d+2}:{d+3}], v[{s+2}:{s+3}]")
    a("v_permlane32_swap_b32 v16, v17\nv_permlane32_swap_b32 v18, v19\nv_add_f32 v16, v16, v17\nv_add_f32 v18, v18, v19")
    a(f"v_permlane16_swap_b32 v16, v18\nv_add_f32 v16, v16, v18\nv_add_f32_dpp v16, v16, v16 row_ror:8 {DPPM}")
    bfr(16, 16)
    a("s_waitcnt lgkmcnt(0)\nv_add_f32 v16, v16, v48\nv_cvt_pk_bf16_f32 v16, v16, v16")
    a(f"s_mov_b64 exec, s[4:5]\nbuffer_store_short v16, v57, {sOUT}, s97 offen\ns_mov_b64 exec, -1")
    stamp(9)
    a("s_cmp_lg_u32 s85, 0\ns_cbranch_scc1 L_ffn_next\ns_cmp_lg_u32 s98, 1\ns_cbranch_scc1 L_ffn_next")
    a(f"v_mov_b32 v8, s77\ns_mov_b64 exec, 1\nbuffer_store_dword v8, v61, {sWS}, 0 offen\ns_mov_b64 exec, -1")
    a("L_ffn_next:")
    a("s_add_u32 s94, s94, 20480\ns_add_u32 s95, s95, 138240\ns_add_u32 s96, s96, 138240\ns_add_u32 s97, s97, 1280")
    a("v_add_u32 v5, 2560, v5\nv_add_u32 v58, 2560, v58\nv_add_u32 v50, 128, v50\nv_add_u32 v51, 128, v51")
    a("v_add_u32 v52, 1024, v52\nv_add_u32 v53, 1024, v53\nv_add_u32 v60, 4, v60")
    a("s_add_u32 s98, s98, 1\ns_cmp_lt_u32 s98, 2\ns_cbranch_scc1 L_ffn_b")
    dump_stamps()
    a("L_exit:\ns_endpgm\nL_code_end:")

    hdr = open("cdna_kernels/" + NAME + ".s.ref").read().split("; Override launch")[0]
    out = [hdr.rstrip(), f"; @launch grid=(256,1,1) block=(512,1,1) lds={LDSZ}", '.amdgcn_target "amdgcn-amd-amdhsa--gfx950"']
    out += a.finish()
    out.append(f""".section .rodata,"a"
.p2align 6
.amdhsa_kernel {kname}
  .amdhsa_next_free_vgpr 256
  .amdhsa_next_free_sgpr 102
  .amdhsa_accum_offset 256
  .amdhsa_group_segment_fixed_size 0
  .amdhsa_kernarg_size 96
  .amdhsa_user_sgpr_count 2
  .amdhsa_user_sgpr_kernarg_segment_ptr 1
  .amdhsa_system_sgpr_workgroup_id_x 1
  .amdhsa_float_denorm_mode_32 3
.end_amdhsa_kernel""")
    return "\n".join(out) + "\n"

if __name__ == "__main__":
    kw = eval("dict(" + (sys.argv[2] if len(sys.argv) > 2 else "") + ")")
    open(sys.argv[1], "w").write(gen(**kw))
```

```python
import sys, struct
from asmlib import Asm

NAME = "sequential_preLN__mha_block_cached__geglu_ffn__decode"
def f2u(x): return struct.unpack("<I", struct.pack("<f", x))[0]
def hx(x): return "0x%08x" % (x & 0xffffffff)

ML, QP, OPA, OPB, YP, DP, DIAG, QPB, WSZ = 0x170000, 0x10000, 0x90000, 0xD0000, 0x110000, 0x120000, 0x1a0000, 0x200000, 0x280000
OOB = 0x7ff00000
PRG, MCNT, MRED = 4640, 4616, 4672
QRED, QF, CNT, CLR, STAT, ORED, YRED, GRED, HTAB, LDSZ = 0, 4096, 4608, 4624, 4864, 5120, 9216, 11264, 13312, 24576
sK, sV, sWS, sX, sWQ, sWO, sWG, sWU, sWD, sOUT = [f"s[{n}:{n+3}]" for n in range(32, 72, 4)]
DPPM = "row_mask:0xf bank_mask:0xf"
LOG2E = f2u(1.4426950408889634)
SPIN = 0x10000

def gen(depth=5, taildepth=8, tailfrom=230, P=40, budget=56, diag=False, pre3=8, wthr=2, fast=True, ml0=116, ml1=182, kvpol='nt', wpol='nt', wpol2='', skip='', gates=(208, 224, 240), qsleep=2, qpre=24, wo_w=1, gu_w=4, dn_w=4, cal=0):
    a = Asm()
    kname = NAME + "_kernel"
    def stamp(k):
        if diag: a(f"s_memrealtime s[{8+2*k}:{9+2*k}]")
    def dump_stamps():
        if not diag: return
        a("s_waitcnt lgkmcnt(0)")
        a("s_mov_b64 exec, 1")
        a("s_lshl_b32 s90, s6, 3\ns_add_u32 s90, s90, s3\ns_lshl_b32 s90, s90, 6")
        a(f"s_add_u32 s90, s90, {DIAG}")
        a("v_mov_b32 v5, 0")
        for k in range(11):
            a(f"v_mov_b32 v{112+k}, s{8+2*k}")
        a("v_mov_b32 v123, s78")
        for q in range(3):
            a(f"buffer_store_dwordx4 v[{112+4*q}:{115+4*q}], v5, {sWS}, s90 offen offset:{16*q}")
    def srd(n, p, size):
        a(f"s_mov_b32 s{n}, s{p}\ns_mov_b32 s{n+1}, s{p+1}\ns_mov_b32 s{n+2}, {hx(size)}\ns_mov_b32 s{n+3}, 0x20000")
    def bfr(d, s):
        a(f"v_cvt_pk_bf16_f32 v{d}, v{s}, v{s}\nv_and_b32 v{d}, 0xffff0000, v{d}")
    def mask64(n, v):
        a(f"s_mov_b32 s{n}, {hx(v)}\ns_mov_b32 s{n+1}, {hx(v >> 32)}")
    def spin_begin(base):
        L = a.lab(base); a(f"s_mov_b32 s79, {SPIN}"); a(L + ":"); return L
    def spin_end(L, sleep=0):
        Ld = L + "_d"
        a(f"s_cbranch_vccz {Ld}")
        if sleep == "first":
            a(f"s_cmp_lg_u32 s98, 0\ns_cbranch_scc1 {L}_n\ns_sleep 8\n{L}_n:")
        elif sleep: a(f"s_sleep {sleep}")
        a(f"s_sub_u32 s79, s79, 1\ns_cbranch_scc0 {L}")
        a(Ld + ":")
    def sent_check(regs, t):
        regs = list(regs)
        if len(regs) == 1:
            a(f"v_cmp_eq_u32 vcc, -1, v{regs[0]}"); return
        first = True
        while regs:
            if first:
                if len(regs) >= 3: a(f"v_max3_u32 v{t}, v{regs[0]}, v{regs[1]}, v{regs[2]}"); regs = regs[3:]
                else: a(f"v_max_u32 v{t}, v{regs[0]}, v{regs[1]}"); regs = regs[2:]
                first = False
            elif len(regs) >= 2: a(f"v_max3_u32 v{t}, v{t}, v{regs[0]}, v{regs[1]}"); regs = regs[2:]
            else: a(f"v_max_u32 v{t}, v{t}, v{regs[0]}"); regs = regs[1:]
        a(f"v_cmp_eq_u32 vcc, -1, v{t}")
    def rows_allreduce(op, v, t, both=True):
        a(f"v_mov_b32 v{t}, v{v}\nv_permlane16_swap_b32 v{v}, v{t}\n{op} v{v}, v{v}, v{t}")
        if both: a(f"v_mov_b32 v{t}, v{v}\nv_permlane32_swap_b32 v{v}, v{t}\n{op} v{v}, v{v}, v{t}")
    def half_masks(first, esrc, t0):
        a(f"v_and_b32 v{t0}, 1, v{esrc}\nv_lshlrev_b32 v{t0}, 4, v{t0}\nv_mov_b32 v{t0+1}, 0xffff\nv_lshlrev_b32 v{t0}, v{t0}, v{t0+1}")
        a(f"v_lshrrev_b32 v{t0+1}, 1, v{esrc}")
        for r in range(4):
            a(f"v_cmp_eq_u32 vcc, {r}, v{t0+1}\nv_cndmask_b32 v{first+r}, 0, v{t0}, vcc")

    a(f".text\n.globl {kname}\n.p2align 8\n.type {kname},@function\n{kname}:")
    a("s_cmp_ge_u32 s2, 256\ns_cbranch_scc1 L_exit")
    if cal: a("s_memrealtime s[100:101]")
    a("s_load_dwordx16 s[8:23], s[0:1], 0\ns_load_dwordx8 s[24:31], s[0:1], 64")
    a("s_getpc_b64 s[4:5]\nL_pc:")
    a("v_lshlrev_b32 v4, 7, v0\nv_min_u32 v4, L_code_end-L_pc-4, v4")
    a("global_load_dword v4, v4, s[4:5]")
    a("v_lshrrev_b32 v5, 6, v0\nv_and_b32 v1, 63, v0\nv_readfirstlane_b32 s3, v5")
    a("s_and_b32 s72, s2, 7\ns_lshr_b32 s73, s2, 3\ns_lshl_b32 s6, s72, 5\ns_add_u32 s6, s6, s73")
    a("s_lshr_b32 s74, s6, 3\ns_and_b32 s75, s6, 7\ns_and_b32 s76, s3, 3")
    a("s_getreg_b32 s78, hwreg(HW_REG_XCC_ID, 0, 4)")
    a("v_lshlrev_b32 v5, 4, v0\nv_mov_b32 v112, -1\nv_mov_b32 v113, -1\nv_mov_b32 v114, -1\nv_mov_b32 v115, -1")
    for k in range(LDSZ // 8192):
        a(f"ds_write_b128 v5, v[112:115] offset:{k*8192}")
    a("v_and_b32 v6, 15, v1\nv_lshrrev_b32 v7, 4, v1")
    a("s_cmp_lt_u32 s3, 4\ns_cbranch_scc1 L_aux")

    a("s_setprio 2")
    a("v_bfe_u32 v8, v1, 2, 2\nv_lshlrev_b32 v8, 8, v8\nv_lshl_or_b32 v8, v7, 6, v8\nv_and_b32 v9, 3, v1\nv_lshl_or_b32 v2, v9, 4, v8")
    a("s_lshl_b32 s7, s6, 18\ns_lshl_b32 s79, s76, 12\ns_add_u32 s7, s7, s79")
    a("v_add_u32 v2, s7, v2\nv_lshl_add_u32 v3, v1, 4, s7")
    a("s_waitcnt lgkmcnt(0)")
    srd(32, 10, 1 << 27); srd(36, 12, 1 << 27); srd(40, 30, WSZ)
    a("s_load_dword s77, s[30:31], 0")
    RING, NB = 96, 40
    BK, DK, ACC, BV, MLB, MLS, RMAX, S = 16, 32, 40, 44, 52, 56, 60, [64, 80]
    vm = ["code"]
    landed = [-1]
    def wait_vm(idx):
        if idx > landed[0]:
            a(f"s_waitcnt vmcnt({len(vm) - 1 - idx})"); landed[0] = idx
    ld_idx = {}
    cur_so = [None]
    def issue(i):
        ph, n = divmod(i, 64)
        b, isv = ph & 1, ph >> 1
        so = (b << 26) + (n >> 2) * 16384
        if cur_so[0] != so:
            a(f"s_mov_b32 s7, {hx(so)}"); cur_so[0] = so
        r = RING + (i % NB) * 4
        a(f"buffer_load_dwordx4 v[{r}:{r+3}], {'v3' if isv else 'v2'}, {sV if isv else sK}, s7 offen offset:{(n & 3) * 1024} {kvpol}")
        ld_idx[i] = len(vm); vm.append(("ld", i))

    items = []
    def add(cost, needs, fn): items.append((cost, needs, fn))
    def it_setup():
        half_masks(10, 6, 8)
        for t in range(4): mask64(80 + 2 * t, 0x000F000F000F000F << (4 * t))
        mask64(88, 0x00FF00FF00FF00FF)
        a(f"v_and_b32 v9, 3, v1\nv_lshlrev_b32 v9, 4, v9\nv_lshl_or_b32 v14, v7, 6, v9")
        a(f"v_and_b32 v15, 31, v1\nv_lshlrev_b32 v15, 4, v15")
        a(f"v_lshl_add_u32 v9, v7, 3, v6\nv_lshlrev_b32 v9, 4, v9\ns_lshl_b32 s79, s76, 9\nv_add_u32 v62, s79, v9")
        a(f"s_lshl_b32 s79, s6, 9\nv_add_u32 v63, s79, v15")
        a("v_mov_b32 v61, 0\nv_mov_b32 v5, 1")
        a("s_waitcnt lgkmcnt(0)")
        a("s_mul_i32 s77, s77, 1664525\ns_add_u32 s77, s77, 1013904223")
        a(f"s_lshl_b32 s90, s74, 10\ns_add_u32 s90, s90, {ML}")
        a(f"s_lshl_b32 s91, s6, 7\ns_add_u32 s91, s91, {ML}")
        a("v_bfe_u32 v9, v1, 2, 3\nv_lshlrev_b32 v9, 7, v9\nv_and_b32 v4, 3, v1\nv_lshl_or_b32 v0, v4, 4, v9\nv_lshlrev_b32 v4, 3, v4")
        a(f"s_lshl_b32 s99, s76, 3")
        a(f"s_mov_b32 s92, {hx(f2u(128 ** -0.5))}\ns_mov_b32 s93, {hx(LOG2E)}")
    def it_qfrag(b):
        def fn():
            L = spin_begin("q")
            a(f"ds_read_b128 v[{BV}:{BV+3}], v14 offset:{QF + b * 256}\ns_waitcnt lgkmcnt(0)")
            sent_check(range(BV, BV + 4), BV + 4)
            spin_end(L, 1)
            if b == 0: stamp(1)
            for t in range(4):
                for r in range(4):
                    a(f"v_cndmask_b32 v{BK + 4*t + r}, 0, v{BV + r}, s[{80+2*t}:{81+2*t}]")
        return fn
    def it_k(i):
        b, n = divmod(i, 64); u, t = n >> 2, n & 3
        def fn():
            r = RING + (i % NB) * 4; d = DK + (u & 1) * 4
            a(f"v_mfma_f32_16x16x32_bf16 v[{d}:{d+3}], v[{r}:{r+3}], v[{BK+4*t}:{BK+4*t+3}], {'0' if t == 0 else f'v[{d}:{d+3}]'}")
        return fn
    def it_kred(b, u):
        def fn():
            d = DK + (u & 1) * 4; s = S[b] + u
            a(f"v_mov_b32_dpp v{s}, v{d} quad_perm:[0,0,0,0] {DPPM}")
            for r in range(1, 4):
                a(f"v_add_f32_dpp v{s}, v{d+r}, v{s} quad_perm:[{r},{r},{r},{r}] {DPPM}")
            bfr(s, s); a(f"v_mul_f32 v{s}, s92, v{s}"); bfr(s, s)
            a(f"v_mov_b32 v{RMAX}, v{s}" if u == 0 else f"v_max_f32 v{RMAX}, v{RMAX}, v{s}")
        return fn
    def it_max(b):
        def fn():
            a(f"v_max_f32_dpp v{RMAX}, v{RMAX}, v{RMAX} row_ror:8 {DPPM}\nv_max_f32_dpp v{RMAX}, v{RMAX}, v{RMAX} row_ror:4 {DPPM}")
            rows_allreduce("v_max_f32", RMAX, BV)
            a(f"v_mov_b32 v{MLS}, v{RMAX}\nv_mov_b32 v{MLS+1}, 0")
        return fn
    def it_sum(b, u0):
        def fn():
            for u in range(u0, u0 + 4): a(f"v_sub_f32 v{BV+u-u0}, v{S[b]+u}, v{MLS}")
            for u in range(4): a(f"v_mul_f32 v{BV+u}, s93, v{BV+u}")
            for u in range(4): a(f"v_exp_f32 v{BV+u}, v{BV+u}")
            for u in range(4): a(f"v_add_f32 v{MLS+1}, v{MLS+1}, v{BV+u}")
        return fn
    def it_mlpub(b):
        def fn():
            l = MLS + 1
            Ls = a.lab("mlast")
            a(f"v_add_f32_dpp v{l}, v{l}, v{l} row_ror:8 {DPPM}\nv_add_f32_dpp v{l}, v{l}, v{l} row_ror:4 {DPPM}")
            rows_allreduce("v_add_f32", l, BV)
            a(f"v_mov_b32 v8, s99\ns_mov_b64 exec, 1\nds_write_b64 v8, v[{MLS}:{MLS+1}] offset:{MRED + 32*b}")
            a(f"ds_add_rtn_u32 v8, v61, v5 offset:{MCNT + 4*b}\ns_mov_b64 exec, -1")
            a(f"ds_read_b64 v[{BV}:{BV+1}], v4 offset:{MRED + 32*b}\ns_waitcnt lgkmcnt(0)\nv_readfirstlane_b32 s79, v8")
            a(f"s_cmp_lg_u32 s79, 2\ns_cbranch_scc1 {Ls}")
            if b == 0:
                L = spin_begin("clr")
                a(f"ds_read_b32 v8, v61 offset:{CLR}\ns_waitcnt lgkmcnt(0)\nv_cmp_eq_u32 vcc, -1, v8")
                spin_end(L, 2)
            a(f"v_mov_b32 v8, s78\nv_cndmask_b32 v{MLS}, v8, v{BV}, s[80:81]\nv_mov_b32 v{MLS+1}, s77\nv_mov_b32 v{MLS+2}, v{BV+1}\nv_mov_b32 v{MLS+3}, s77")
            a(f"s_add_u32 s79, s91, {b * 32768}\ns_mov_b64 exec, 0xff")
            a(f"buffer_store_dwordx4 v[{MLS}:{MLS+3}], v15, {sWS}, s79 offen sc0 sc1\ns_mov_b64 exec, -1")
            a(Ls + ":")
        return fn
    def ml_issue(b):
        a(f"s_add_u32 s94, s90, {b * 32768}")
        a(f"buffer_load_dwordx4 v[{MLB}:{MLB+3}], v0, {sWS}, s94 offen sc1")
        ld_idx[("ml", b)] = len(vm); vm.append("mlld")
    def it_mlget(b):
        def fn():
            Lok, chk = a.lab("mlok"), f"v_cmp_ne_u32 vcc, s77, v{MLB+1}\nv_cmp_ne_u32 s[96:97], s77, v{MLB+3}\ns_or_b64 vcc, vcc, s[96:97]"
            a(chk); a(f"s_cbranch_vccz {Lok}")
            L = spin_begin("ml")
            a(f"buffer_load_dwordx4 v[{MLB}:{MLB+3}], v0, {sWS}, s94 offen sc1\ns_waitcnt vmcnt(0)")
            a(chk); spin_end(L, 2)
            a(Lok + ":")
            M, Ls = MLB + 1, MLB + 2
            a(f"v_max_f32_dpp v{M}, v{MLB}, v{MLB} row_ror:8 {DPPM}")
            for k in (4, 2, 1): a(f"v_max_f32_dpp v{M}, v{M}, v{M} row_ror:{k} {DPPM}")
            rows_allreduce("v_max_f32", M, 8, both=False)
            a(f"v_sub_f32 v8, v{MLB}, v{M}\nv_mul_f32 v8, s93, v8\nv_exp_f32 v8, v8\nv_mul_f32 v{Ls}, v{Ls}, v8")
            for k in (8, 4, 2, 1): a(f"v_add_f32_dpp v{Ls}, v{Ls}, v{Ls} row_ror:{k} {DPPM}")
            rows_allreduce("v_add_f32", Ls, 8, both=False)
            a(f"v_rcp_f32 v{Ls}, v{Ls}")
        return fn
    def it_p(b, u0):
        def fn():
            R = [S[b] + u for u in range(u0, u0 + 4)]
            for s in R: a(f"v_sub_f32 v{s}, v{s}, v{MLB+1}")
            for s in R: a(f"v_mul_f32 v{s}, s93, v{s}")
            for s in R: a(f"v_exp_f32 v{s}, v{s}")
            for s in R: a(f"v_mul_f32 v{s}, v{s}, v{MLB+2}")
            for s in R: a(f"v_cvt_pk_bf16_f32 v{s}, v{s}, v{s}")
        return fn
    def v_bfrag(i):
        b, n = divmod(i - 128, 64); u, t = n >> 2, n & 3; bv = BV + (i & 1) * 4
        for r in range(4):
            a(f"v_and_b32_dpp v{bv+r}, v{S[b]+u}, v{10+r} row_newbcast:{4*t} {DPPM}")
    def v_mfma(i):
        n = (i - 128) % 64; r = RING + (i % NB) * 4; bv = BV + (i & 1) * 4
        a(f"v_mfma_f32_16x16x32_bf16 v[{ACC}:{ACC+3}], v[{r}:{r+3}], v[{bv}:{bv+3}], {'0' if n == 0 else f'v[{ACC}:{ACC+3}]'}")
    def it_opub(b):
        def fn():
            Ls = a.lab("olast")
            if b == 1: stamp(2)
            a("s_mov_b64 exec, s[88:89]")
            a(f"ds_write_b128 v62, v[{ACC}:{ACC+3}] offset:{ORED + b * 2048}")
            a(f"s_mov_b64 exec, 1\nds_add_rtn_u32 v8, v61, v5 offset:{CNT + 4*b}\ns_mov_b64 exec, -1")
            for w in range(4): a(f"ds_read_b128 v[{16+4*w}:{19+4*w}], v15 offset:{ORED + b * 2048 + w * 512}")
            a(f"s_mov_b32 s95, {OPA + b * 0x20000}\ns_mov_b32 s96, {OPB + b * 0x20000}")
            a("s_waitcnt lgkmcnt(0)\nv_readfirstlane_b32 s79, v8")
            a("v_pk_add_f32 v[16:17], v[16:17], v[20:21]\nv_pk_add_f32 v[18:19], v[18:19], v[22:23]")
            a("v_pk_add_f32 v[24:25], v[24:25], v[28:29]\nv_pk_add_f32 v[26:27], v[26:27], v[30:31]")
            a(f"s_cmp_lg_u32 s79, 2\ns_cbranch_scc1 {Ls}")
            a("v_pk_add_f32 v[16:17], v[16:17], v[24:25]\nv_pk_add_f32 v[18:19], v[18:19], v[26:27]")
            a("s_mov_b32 exec_hi, 0")
            a(f"buffer_store_dwordx4 v[16:19], v63, {sWS}, s95 offen")
            a(f"buffer_store_dwordx4 v[16:19], v63, {sWS}, s96 offen sc0 sc1")
            a("s_mov_b64 exec, -1")
            if b == 1: stamp(3)
            a(Ls + ":")
        return fn

    for b in range(2):
        add(30, None, it_qfrag(b))
        for n in range(64):
            add(4, 64 * b + n, it_k(64 * b + n))
            if n & 3 == 0 and n: add(12, None, it_kred(b, (n >> 2) - 1))
            if b == 1 and 64 + n == ml0:
                add(40, ("ml", 0), it_mlget(0))
                for u0 in range(0, 16, 4): add(24, None, it_p(0, u0))
        add(16, None, it_kred(b, 15)); add(20, None, it_max(b))
        for u0 in range(0, 16, 4): add(20, None, it_sum(b, u0))
        add(20, None, it_mlpub(b))
    for b in range(2):
        for n in range(64):
            i = 128 + 64 * b + n
            add(4, None, (lambda i=i: v_bfrag(i))); add(4, i, (lambda i=i: v_mfma(i)))
            if b == 0 and i == ml1:
                add(40, ("ml", 1), it_mlget(1))
                for u0 in range(0, 16, 4): add(24, None, it_p(1, u0))
        add(40, None, it_opub(b))

    consumed = [-1]
    def run_items(bud, force=False):
        while items:
            cost, needs, fn = items[0]
            if needs is not None:
                if needs not in ld_idx: return
                if ld_idx[needs] > landed[0]:
                    if not force: return
                    wait_vm(ld_idx[needs])
            if bud <= 0 and not force: return
            items.pop(0); fn(); bud -= cost
            if isinstance(needs, int): consumed[0] = needs
    issued = 0
    step = 0
    while issued < 256:
        i = issued
        d = taildepth if i >= tailfrom else depth
        if i - d >= 0: wait_vm(ld_idx[i - d])
        while consumed[0] < i - NB:
            n0 = len(items); run_items(1); assert len(items) < n0, "ring stall"
        issue(i); issued += 1
        if i == depth - 1:
            a("s_barrier"); wait_vm(0); it_setup(); stamp(0)
        if i in gates:
            a(f"s_mov_b64 exec, 1\nds_write_b32 v61, v5 offset:{PRG + 4*gates.index(i)}\ns_mov_b64 exec, -1")
        if i in (32, 64, 96, 128, 160, 192, 224): stamp(3 + i // 32)
        if i == ml0: ml_issue(0)
        if i == ml1: ml_issue(1)
        if i >= P - 1: run_items(budget)
    run_items(0, force=True)
    if cal:
        a(f"L_cal:\ns_sleep 4\ns_memrealtime s[96:97]\ns_waitcnt lgkmcnt(0)\ns_sub_u32 s96, s96, s100\ns_cmp_lt_u32 s96, {cal}\ns_cbranch_scc1 L_cal")
    dump_stamps()
    a("s_endpgm")

    a("L_aux:")
    a("v_and_b32 v8, 31, v1\nv_lshlrev_b32 v8, 3, v8\nv_lshrrev_b32 v9, 5, v1\nv_mul_u32_u24 v9, 1280, v9\nv_add_u32 v2, v8, v9")
    a("s_mul_i32 s7, s75, 80\ns_mul_i32 s79, s76, 20\ns_add_u32 s7, s7, s79\nv_add_u32 v8, s7, v7")
    a("v_bfe_u32 v9, v1, 3, 1\nv_mul_u32_u24 v9, 1280, v9\nv_lshl_add_u32 v3, v8, 1, v9")
    a("s_lshl_b32 s7, s74, 8\nv_lshlrev_b32 v8, 13, v8\nv_lshl_add_u32 v9, v6, 4, s7\nv_add_u32 v5, v8, v9")
    a("s_waitcnt lgkmcnt(0)")
    srd(44, 8, 2560); srd(48, 14, 640 * 4096 * 2); srd(40, 30, WSZ)
    for i in range(5): a(f"buffer_load_dwordx2 v[{8+2*i}:{9+2*i}], v2, {sX}, 0 offen offset:{256*i}")
    for i in range(5): a(f"buffer_load_ushort v{18+i}, v3, {sX}, 0 offen offset:{8*i}")
    for i in range(5):
        a(f"s_mov_b32 s7, {i * 32768}\nbuffer_load_dwordx4 v[{24+4*i}:{27+4*i}], v5, {sWQ}, s7 offen {wpol}")
    a("s_load_dword s77, s[30:31], 0")
    srd(52, 16, 4096 * 640 * 2); srd(56, 20, 640 * 1728 * 2); srd(60, 22, 640 * 1728 * 2); srd(64, 24, 1728 * 640 * 2); srd(68, 26, 2560)
    a("s_barrier")
    a("v_and_b32 v68, 7, v1"); half_masks(64, 68, 69)
    mask64(88, 0xFF00FF00FF00FF00)
    a(f"s_mov_b32 s92, {hx(f2u(1/640))}\ns_mov_b32 s93, {hx(f2u(1e-5))}")
    a("s_waitcnt lgkmcnt(0)")
    stamp(0)
    a("s_mul_i32 s77, s77, 1664525\ns_add_u32 s77, s77, 1013904223")
    a("s_waitcnt vmcnt(10)")
    for i in range(10): a(f"v_lshlrev_b32 v{44+2*i}, 16, v{8+i}\nv_and_b32 v{45+2*i}, 0xffff0000, v{8+i}")
    def red32(v):
        for k in (8, 4, 2, 1): a(f"v_add_f32_dpp v{v}, v{v}, v{v} row_ror:{k} {DPPM}")
        rows_allreduce("v_add_f32", v, 71, both=False)
    a("v_pk_add_f32 v[8:9], v[44:45], v[46:47]")
    for i in range(2, 10): a(f"v_pk_add_f32 v[8:9], v[8:9], v[{44+2*i}:{45+2*i}]")
    a("v_add_f32 v8, v8, v9"); red32(8)
    a("v_mul_f32 v8, s92, v8\nv_mov_b32 v10, 0\nv_mov_b32 v11, 0")
    for i in range(20): a(f"v_sub_f32 v{44+i}, v{44+i}, v8")
    for i in range(20): a(f"v_fmac_f32 v{10+(i&1)}, v{44+i}, v{44+i}")
    a("v_add_f32 v10, v10, v11"); red32(10)
    def ln_finish(mean, var):
        bfr(var, var); bfr(mean, mean); a(f"v_add_f32 v{var}, s93, v{var}"); bfr(var, var); a(f"v_sqrt_f32 v{var}, v{var}"); bfr(var, var)
        a(f"v_rcp_f32 v{var}, v{var}")
    a("v_mul_f32 v10, s92, v10"); ln_finish(8, 10)
    a("v_readlane_b32 s80, v8, 0\nv_readlane_b32 s81, v8, 32\nv_readlane_b32 s82, v10, 0\nv_readlane_b32 s83, v10, 32")
    a("v_mov_b32 v8, s80\nv_mov_b32 v9, s81\nv_mov_b32 v10, s82\nv_mov_b32 v11, s83")
    a("v_cndmask_b32 v8, v8, v9, s[88:89]\nv_cndmask_b32 v10, v10, v11, s[88:89]")
    a("s_waitcnt vmcnt(5)")
    for i in range(5): a(f"v_lshlrev_b32 v{18+i}, 16, v{18+i}\nv_sub_f32 v{18+i}, v{18+i}, v8")
    for i in range(5): bfr(18 + i, 18 + i)
    for i in range(5): a(f"v_mul_f32 v{18+i}, v{18+i}, v10\nv_cvt_pk_bf16_f32 v{18+i}, v{18+i}, v{18+i}")
    for i in range(5):
        for r in range(4): a(f"v_and_b32 v{44+4*i+r}, v{18+i}, v{64+r}")
    for i in range(5):
        a(f"s_waitcnt vmcnt({4-i})")
        a(f"v_mfma_f32_16x16x32_bf16 v[72:75], v[{24+4*i}:{27+4*i}], v[{44+4*i}:{47+4*i}], {'0' if i == 0 else 'v[72:75]'}")
    a("v_lshlrev_b32 v8, 4, v0\nv_and_b32 v11, 31, v1\ns_lshl_b32 s7, s76, 2\nv_lshl_add_u32 v9, v11, 5, s7")
    a("s_lshl_b32 s7, s76, 9\nv_lshl_add_u32 v12, v11, 4, s7\ns_lshl_b32 s80, s6, 11")
    a(f"s_add_u32 s80, s80, {QP}\ns_lshl_b32 s81, s74, 14\ns_add_u32 s81, s81, {QP}\ns_add_u32 s82, s81, 4096")
    a(f"ds_write_b128 v8, v[72:75] offset:{QRED}")
    for w in range(1, 4): a(f"v_add_u32 v{8+8*w}, {1024*w}, v9")
    L = spin_begin("qred")
    for w in range(4): a(f"ds_read2_b32 v[{76+2*w}:{77+2*w}], v{9 if w == 0 else 8+8*w} offset0:0 offset1:4")
    a("s_waitcnt lgkmcnt(0)"); sent_check(range(76, 84), 84); spin_end(L)
    a("v_pk_add_f32 v[76:77], v[76:77], v[78:79]\nv_pk_add_f32 v[80:81], v[80:81], v[82:83]\nv_pk_add_f32 v[76:77], v[76:77], v[80:81]")
    a("v_mov_b32 v78, v77\nv_mov_b32 v77, s77\nv_mov_b32 v79, s77\ns_mov_b32 exec_hi, 0")
    a(f"buffer_store_dwordx4 v[76:79], v12, {sWS}, s80 offen")
    a(f"s_add_u32 s80, s80, {QPB - QP}\nbuffer_store_dwordx4 v[76:79], v12, {sWS}, s80 offen sc0 sc1\ns_mov_b64 exec, -1")
    stamp(1)
    a(f"v_lshrrev_b32 v14, 5, v1\nv_lshl_add_u32 v12, v14, 13, v12\nv_add_u32 v14, {QPB - QP}, v12")
    a("v_bfe_u32 v13, v1, 2, 1\nv_lshlrev_b32 v13, 8, v13\nv_bfe_u32 v15, v1, 3, 2\nv_lshl_or_b32 v13, v15, 6, v13\nv_and_b32 v15, 3, v1\nv_lshl_or_b32 v13, v15, 2, v13")
    a("s_lshl_b32 s7, s76, 4\nv_add_u32 v13, s7, v13")
    if qpre: a(f"s_sleep {qpre}")
    L = spin_begin("qg")
    a("s_and_b32 s7, s79, 7\ns_cmp_eq_u32 s7, 1\ns_cselect_b64 vcc, -1, 0\nv_cndmask_b32 v15, v12, v14, vcc")
    for k in range(4): a(f"buffer_load_dwordx4 v[{80+4*k}:{83+4*k}], v15, {sWS}, s{81+(k>>1)} offen offset:{2048*(k&1)} sc1")
    a("s_waitcnt vmcnt(0)")
    for k in range(8): a(f"v_xor_b32 v{81+2*k}, s77, v{81+2*k}")
    a("v_or3_b32 v81, v81, v83, v85\nv_or3_b32 v87, v87, v89, v91\nv_or3_b32 v81, v81, v93, v95\nv_or_b32 v81, v81, v87\nv_cmp_ne_u32 vcc, 0, v81")
    spin_end(L, qsleep)
    a("v_add_f32 v80, v80, v84\nv_add_f32 v82, v82, v86\nv_add_f32 v88, v88, v92\nv_add_f32 v90, v90, v94\nv_add_f32 v80, v80, v88\nv_add_f32 v82, v82, v90")
    a("v_mov_b32 v81, v80\nv_mov_b32 v83, v82\nv_permlane32_swap_b32 v80, v81\nv_permlane32_swap_b32 v82, v83\nv_add_f32 v80, v80, v81\nv_add_f32 v82, v82, v83")
    a(f"v_cvt_pk_bf16_f32 v80, v80, v82\nv_min_u32 v80, -2, v80\nds_write_b32 v13, v80 offset:{QF}")
    stamp(2)
    a("s_mov_b32 s84, 1\ns_mov_b32 s85, s73\ns_cmp_lt_u32 s73, 10\ns_cbranch_scc1 L_role")
    a("s_sub_u32 s7, s73, 10\ns_lshr_b32 s85, s7, 1\ns_lshl_b32 s85, s85, 3\ns_add_u32 s85, s85, s72")
    a("s_mov_b32 s84, 0\ns_cmp_lt_u32 s85, 27\ns_cbranch_scc0 L_role")
    a("s_mov_b32 s84, 2\ns_lshl_b32 s85, s85, 1\ns_and_b32 s7, s7, 1\ns_add_u32 s85, s85, s7")
    a("L_role:")
    a("s_cmp_lg_u32 s76, 0\ns_cbranch_scc1 L_noclr")
    a("v_and_b32 v8, 31, v1\nv_lshlrev_b32 v8, 4, v8\nv_lshrrev_b32 v9, 5, v1\nv_lshl_or_b32 v8, v9, 17, v8\ns_lshl_b32 s7, s6, 9\nv_add_u32 v8, s7, v8")
    a(f"s_mov_b32 s7, {OPA}\nbuffer_store_dwordx4 v[112:115], v8, {sWS}, s7 offen sc0 sc1")
    a(f"s_mov_b32 s7, {OPB}\nbuffer_store_dwordx4 v[112:115], v8, {sWS}, s7 offen sc0 sc1")
    a("s_cmp_lg_u32 s84, 1\ns_cbranch_scc1 L_clr2")
    a("v_and_b32 v9, 1, v7\nv_mul_u32_u24 v9, 20480, v9\nv_lshl_add_u32 v8, v6, 4, v9")
    a(f"s_mul_i32 s7, s72, 2560\ns_lshl_b32 s79, s85, 8\ns_add_u32 s7, s7, s79\ns_add_u32 s7, s7, {YP}")
    a(f"s_mov_b32 exec_hi, 0\nbuffer_store_dwordx4 v[112:115], v8, {sWS}, s7 offen sc0 sc1\ns_mov_b64 exec, -1")
    a("L_clr2:")
    a("s_cmp_lg_u32 s84, 2\ns_cbranch_scc1 L_clr3")
    a("v_and_b32 v8, 31, v1\nv_lshlrev_b32 v8, 4, v8\nv_lshrrev_b32 v9, 5, v1\nv_mul_u32_u24 v9, 138240, v9\nv_add_u32 v8, v8, v9")
    a(f"s_mul_i32 s7, s85, 2560\ns_add_u32 s7, s7, {DP}")
    for k in range(5): a(f"buffer_store_dwordx4 v[112:115], v8, {sWS}, s7 offen offset:{512*k} sc0 sc1")
    a("L_clr3:")
    a(f"v_mov_b32 v8, 0\ns_waitcnt vmcnt(0)\nds_write_b32 v8, v8 offset:{CLR}")
    a("L_noclr:")
    a("s_mov_b32 s90, 0x05040100\ns_mov_b32 s91, 0x07060302")
    mask64(88, 0x0001000100010001)
    a("v_mov_b32 v61, 0")
    a("s_cmp_eq_u32 s84, 2\ns_cbranch_scc1 L_ffn\ns_cmp_eq_u32 s84, 1\ns_cbranch_scc1 L_wo")
    dump_stamps()
    a("s_endpgm")

    def proof(wgs):
        for k, r in enumerate(wgs): a(f"v_lshlrev_b32 v{r}, 7, v{r}")
        a(f"s_mov_b32 s7, {ML + 64}")
        L = spin_begin("pf")
        for k, r in enumerate(wgs): a(f"buffer_load_dwordx2 v[{64+2*k}:{65+2*k}], v{r}, {sWS}, s7 offen sc1")
        a("s_waitcnt vmcnt(0)\nv_cmp_ne_u32 vcc, s77, v65")
        for k in range(1, len(wgs)): a(f"v_cmp_ne_u32 s[80:81], s77, v{65+2*k}\ns_or_b64 vcc, vcc, s[80:81]")
        spin_end(L, 16)
    def wait_lds(addr, val, sleep):
        L = spin_begin("own")
        a(f"ds_read_b32 v8, v61 offset:{addr}\ns_waitcnt lgkmcnt(0)\nv_cmp_ne_u32 vcc, {val}, v8")
        spin_end(L, sleep)
    def staged(nbatch, nld, win, load_fn, finish_fn):
        n = nbatch * nld
        done = 0
        for i in range(n + win):
            if i >= win:
                a(f"s_waitcnt vmcnt({min(n, i) - (i - win) - 1})")
                if (i - win + 1) % nld == 0: finish_fn((i - win) // nld, ((i - win) // nld) & 1)
            if i < n: load_fn(i // nld, i % nld, (i // nld) & 1)
    backoff = "first"

    a("L_wo:")
    a("s_lshl_b32 s7, s72, 2\ns_add_u32 s7, s7, s76\ns_lshl_b32 s7, s7, 7\nv_lshl_add_u32 v8, v7, 5, s7\nv_mul_u32_u24 v8, 1280, v8")
    a("s_lshl_b32 s7, s85, 7\nv_lshl_add_u32 v9, v6, 3, s7\nv_add_u32 v2, v8, v9")
    a("s_waitcnt vmcnt(0)")
    def wo_load(k, n, slot):
        p, e = n >> 1, n & 1
        if e == 0: a(f"s_mov_b32 s7, {(2*k + p) * 2560}")
        r = 64 + slot * 8 + p * 4 + e * 2
        a(f"buffer_load_dwordx2 v[{r}:{r+1}], v2, {sWO}, s7 offen offset:{1280*e} {wpol}")
    def wo_finish(k, slot):
        for p in range(2):
            pair = 2 * k + p; r, i = pair >> 2, pair & 3; t = 64 + slot * 8 + p * 4
            for q in range(4):
                a(f"v_perm_b32 v{128 + (i*4 + q)*4 + r}, v{t + 2 + (q>>1)}, v{t + (q>>1)}, s{90 + (q&1)}")
    if 'o' not in skip: staged(8, 4, wo_w, wo_load, wo_finish)
    stamp(3)
    wait_lds(PRG, 1, 8)
    a("s_lshl_b32 s7, s72, 2\ns_add_u32 s7, s7, s76\ns_lshl_b32 s7, s7, 3\nv_and_b32 v9, 7, v1\nv_add_u32 v9, s7, v9")
    proof([9])
    a("v_cmp_ne_u32 vcc, s78, v64")
    a(f"s_mov_b32 s94, {OPB}\ns_cmp_eq_u64 vcc, 0\ns_cselect_b32 s94, {OPA if fast else OPB}, s94")
    a("s_lshl_b32 s7, s72, 2\ns_add_u32 s7, s7, s76\ns_lshl_b32 s7, s7, 12")
    a("v_bfe_u32 v8, v1, 2, 2\nv_lshlrev_b32 v8, 10, v8\nv_lshl_or_b32 v8, v7, 7, v8\nv_and_b32 v9, 3, v1\nv_lshl_or_b32 v8, v9, 5, v8\nv_add_u32 v2, s7, v8")
    a(f"s_lshl_b32 s7, s76, 8\ns_add_u32 s7, s7, {YRED}\nv_lshl_add_u32 v3, v7, 4, s7")
    a(f"v_lshlrev_b32 v59, 4, v6\nv_add_u32 v5, {YRED}, v59")
    a(f"s_mul_i32 s95, s72, 2560\ns_lshl_b32 s7, s85, 8\ns_add_u32 s95, s95, s7\ns_add_u32 s95, s95, {YP}")
    a("s_mov_b32 s98, 0")
    a("L_wo_b:")
    stamp(4)
    L = spin_begin("h1")
    for k, off in enumerate((0, 16, 512, 528)):
        a(f"buffer_load_dwordx4 v[{64+4*k}:{67+4*k}], v2, {sWS}, s94 offen offset:{off} sc1")
    a("s_waitcnt vmcnt(0)"); sent_check(range(64, 80), 8); spin_end(L, backoff)
    stamp(5)
    for k in range(4): a(f"v_pk_add_f32 v[{64+2*k}:{65+2*k}], v[{64+2*k}:{65+2*k}], v[{72+2*k}:{73+2*k}]")
    for ror in (8, 4):
        for k in range(8): a(f"v_add_f32_dpp v{64+k}, v{64+k}, v{64+k} row_ror:{ror} {DPPM}")
    for r in range(4): a(f"v_cvt_pk_bf16_f32 v{72+r}, v{64+r}, v{68+r}")
    def wo_b(i):
        for r in range(4): a(f"v_mov_b32_dpp v{80+4*i+r}, v{72+r} quad_perm:[{i},{i},{i},{i}] {DPPM}")
    wo_b(0); wo_b(1)
    for i in range(4):
        for q in range(4):
            A = 128 + (i * 4 + q) * 4; D = 96 + 4 * q
            a(f"v_mfma_f32_16x16x32_bf16 v[{D}:{D+3}], v[{A}:{A+3}], v[{80+4*i}:{83+4*i}], {'0' if i == 0 else f'v[{D}:{D+3}]'}")
            if q == 0 and i < 2: wo_b(i + 2)
    a("s_mov_b64 exec, s[88:89]")
    for q in range(4): a(f"ds_write_b128 v3, v[{96+4*q}:{99+4*q}] offset:{64*q}")
    a("s_mov_b64 exec, -1\ns_cmp_lg_u32 s76, 0\ns_cbranch_scc1 L_wo_next")
    L = spin_begin("yr")
    for w in range(4): a(f"ds_read_b128 v[{64+4*w}:{67+4*w}], v5 offset:{256*w}")
    a("s_waitcnt lgkmcnt(0)"); sent_check(range(64, 80), 8); spin_end(L)
    a("v_pk_add_f32 v[64:65], v[64:65], v[68:69]\nv_pk_add_f32 v[66:67], v[66:67], v[70:71]")
    a("v_pk_add_f32 v[72:73], v[72:73], v[76:77]\nv_pk_add_f32 v[74:75], v[74:75], v[78:79]")
    a("v_pk_add_f32 v[64:65], v[64:65], v[72:73]\nv_pk_add_f32 v[66:67], v[66:67], v[74:75]")
    a(f"s_mov_b64 exec, 0xffff\nbuffer_store_dwordx4 v[64:67], v59, {sWS}, s95 offen sc0 sc1\ns_mov_b64 exec, -1")
    stamp(6)
    a("L_wo_next:")
    a("s_add_u32 s94, s94, 0x20000\ns_add_u32 s95, s95, 20480\nv_add_u32 v3, 1024, v3\nv_add_u32 v5, 1024, v5")
    a("s_add_u32 s98, s98, 1\ns_cmp_ge_u32 s98, 2\ns_cbranch_scc1 L_wo_end\ns_waitcnt vmcnt(0)")
    wait_lds(CNT + 4, 3, 2)
    a("s_branch L_wo_b\nL_wo_end:")
    dump_stamps()
    a("s_endpgm")

    a("L_ffn:")
    def rowbase(d, q, t):
        a(f"v_lshrrev_b32 v{t}, 4, v{q}\nv_bfe_u32 v{d}, v{q}, 2, 2\nv_lshl_or_b32 v{d}, v{t}, 6, v{d}\nv_and_b32 v{t}, 3, v{q}\nv_lshl_or_b32 v{d}, v{t}, 4, v{d}")
    a("s_mul_i32 s7, s76, 40\nv_mul_u32_u24 v12, 10, v7\nv_add_u32 v12, s7, v12")
    a("s_lshl_b32 s7, s85, 6\nv_lshl_add_u32 v13, v6, 2, s7")
    for r in range(1, 4): a(f"s_mov_b32 s{80+r}, {r * 13824}")
    a("s_mov_b32 s80, 3456\ns_waitcnt vmcnt(0)")
    def gu_load(k, n, slot):
        m, r = n >> 2, n & 3
        if n == 0:
            a(f"v_add_u32 v8, {k}, v12"); rowbase(9, 8, 10); a("v_mad_u32_u24 v9, v9, s80, v13")
        a(f"buffer_load_dword v{64 + slot*8 + n}, v9, {sWU if m else sWG}, {'0' if r == 0 else f's{80+r}'} offen {wpol2}")
    def gu_finish(k, slot):
        i, half = k >> 1, k & 1
        for m in range(2):
            for par in range(2):
                for rr in range(2):
                    t = 64 + slot * 8 + m * 4 + 2 * rr
                    a(f"v_perm_b32 v{128 + (i*4 + m*2 + par)*4 + 2*half + rr}, v{t+1}, v{t}, s{90+par}")
    if 'g' not in skip: staged(10, 8, gu_w, gu_load, gu_finish)
    a("s_mul_i32 s99, s76, 3\ns_cmp_eq_u32 s76, 3\ns_subb_u32 s99, s99, 0")
    a("s_lshl_b32 s7, s85, 5\nv_lshl_add_u32 v8, v7, 3, s7\nv_mul_u32_u24 v8, 1280, v8\ns_lshl_b32 s7, s99, 7\nv_lshl_add_u32 v9, v6, 3, s7\nv_add_u32 v2, v8, v9")
    for r in range(1, 4): a(f"s_mov_b32 s{80+r}, {r * 2560}")
    def dn_stage(k0, nb):
        def ld(k, e, slot):
            r = 64 + slot * 16 + 2 * e
            a(f"buffer_load_dwordx2 v[{r}:{r+1}], v2, {sWD}, {'0' if e < 2 else f's{80+(e>>1)}'} offen offset:{(e&1)*1280 + (k0+k)*128} {wpol}")
        def fin(k, slot):
            for q in range(4):
                for r in range(4):
                    t = 64 + slot * 16 + 4 * r + (q >> 1)
                    a(f"v_perm_b32 v{208 + ((k0+k)*4 + q)*4 + r}, v{t+2}, v{t}, s{90+(q&1)}")
        staged(nb, 8, dn_w, ld, fin)
    if 'd' not in skip:
        dn_stage(0, 2)
        a("s_cmp_ge_u32 s76, 2\ns_cbranch_scc1 L_dn2")
        dn_stage(2, 1)
        a("L_dn2:")
    stamp(3)
    wait_lds(PRG + 4, 1, 8)
    a("v_and_b32 v8, 7, v1\nv_lshrrev_b32 v9, 3, v1\nv_lshl_add_u32 v44, v8, 5, v9\nv_and_b32 v9, 1, v9\nv_lshl_add_u32 v45, v8, 5, v9\nv_add_u32 v45, 8, v45")
    a("v_min_u32 v8, 53, v1\nv_bfe_u32 v9, v8, 1, 3\nv_lshrrev_b32 v10, 4, v8\nv_and_b32 v8, 1, v8\nv_lshl_add_u32 v8, v10, 1, v8\nv_lshl_add_u32 v8, v9, 5, v8\nv_add_u32 v46, 10, v8")
    proof([44, 45, 46])
    a("v_add_u32 v8, v12, v6"); rowbase(9, 8, 10)
    a(f"v_cmp_gt_u32 vcc, 10, v6\ns_mov_b64 s[86:87], vcc\nv_mov_b32 v10, {hx(OOB)}")
    a("v_lshlrev_b32 v2, 4, v8\nv_cndmask_b32 v2, v10, v2, vcc")
    a("v_lshlrev_b32 v3, 1, v9\nv_cndmask_b32 v3, v10, v3, vcc")
    a(f"v_lshlrev_b32 v5, 2, v9\nv_add_u32 v5, {HTAB}, v5")
    a(f"s_lshl_b32 s7, s76, 5\ns_add_u32 s7, s7, {STAT}\nv_lshl_add_u32 v50, v7, 3, s7")
    a(f"v_lshlrev_b32 v51, 3, v6\nv_add_u32 v51, {STAT}, v51")
    a(f"s_lshl_b32 s7, s76, 8\ns_add_u32 s7, s7, {GRED}\nv_lshl_add_u32 v52, v7, 4, s7")
    a(f"v_and_b32 v8, 1, v1\nv_lshlrev_b32 v8, 6, v8\nv_lshl_or_b32 v8, v7, 4, v8\nv_bfe_u32 v9, v1, 1, 2\nv_lshl_or_b32 v8, v9, 2, v8\nv_add_u32 v53, {GRED}, v8")
    a("s_lshl_b32 s7, s99, 8\nv_lshl_add_u32 v54, v7, 6, s7\nv_lshl_add_u32 v54, v6, 4, v54")
    for q in range(4): a(f"v_and_b32 v8, 3, v1\nv_cmp_eq_u32 vcc, {q}, v8\nv_cndmask_b32 v{12+q}, 0, -1, vcc")
    a(f"s_mul_i32 s95, s85, 2560\ns_add_u32 s95, s95, {DP}")
    a("v_lshrrev_b32 v8, 3, v1\nv_mul_u32_u24 v9, 2560, v8\nv_and_b32 v11, 7, v1\nv_lshl_add_u32 v55, v11, 4, v9")
    a("s_lshl_b32 s7, s85, 7\nv_add_u32 v55, s7, v55\nv_cmp_gt_u32 vcc, 6, v8\nv_cndmask_b32 v56, v10, v55, vcc")
    a("v_and_b32 v8, 3, v1\nv_bfe_u32 v9, v1, 2, 1\nv_lshl_or_b32 v8, v9, 4, v8\nv_bfe_u32 v9, v1, 4, 1\nv_lshl_or_b32 v8, v9, 3, v8\nv_bfe_u32 v9, v1, 5, 1\nv_lshl_or_b32 v8, v9, 2, v8")
    a(f"s_lshl_b32 s7, s85, 5\nv_add_u32 v8, s7, v8\nv_lshlrev_b32 v57, 1, v8\nv_lshlrev_b32 v58, 2, v8\nv_add_u32 v58, {HTAB}, v58")
    a(f"s_mov_b32 s98, 0\ns_mov_b32 s94, {YP}\ns_mov_b32 s96, {DP}\ns_mov_b32 s97, 0")
    c1 = -2.0 * 0.7978845608028654 * 1.4426950408889634
    a(f"s_mov_b32 s100, {hx(f2u(c1 * 0.044715))}\nv_mov_b32 v59, {hx(f2u(c1))}")
    mask64(4, 0x00FF00FF00FF00FF); mask64(0, 0x000F000F000F000F)
    a("L_ffn_b:")
    for r in range(4): a(f"buffer_load_ushort v{44+r}, v3, {sX}, s97 offen offset:{8*r}")
    for k in range(1, 4): a(f"s_add_u32 s{80+k}, s94, {5120*k}")
    a("s_waitcnt vmcnt(0)")
    for r in range(4): a(f"v_lshlrev_b32 v{44+r}, 16, v{44+r}")
    a("s_cmp_eq_u32 s98, 0\ns_cbranch_scc1 L_ffn_go")
    wait_lds(CNT + 4, 3, 2)
    a("L_ffn_go:")
    stamp(4)
    L = spin_begin("h2")
    for k in range(8):
        a(f"buffer_load_dwordx4 v[{64+4*k}:{67+4*k}], v2, {sWS}, {'s94' if k < 2 else f's{80+(k>>1)}'} offen offset:{2560*(k&1)} sc1")
    a("s_waitcnt vmcnt(0)"); sent_check(range(64, 96), 8); spin_end(L, backoff)
    stamp(5)
    for st in (16, 8, 4):
        for k in range(0, st, 2): a(f"v_pk_add_f32 v[{64+k}:{65+k}], v[{64+k}:{65+k}], v[{64+st+k}:{65+st+k}]")
    a("v_cvt_pk_bf16_f32 v68, v64, v65\nv_cvt_pk_bf16_f32 v69, v66, v67")
    a("v_lshlrev_b32 v64, 16, v68\nv_and_b32 v65, 0xffff0000, v68\nv_lshlrev_b32 v66, 16, v69\nv_and_b32 v67, 0xffff0000, v69")
    a("v_pk_add_f32 v[64:65], v[64:65], v[44:45]\nv_pk_add_f32 v[66:67], v[66:67], v[46:47]")
    a("v_cvt_pk_bf16_f32 v68, v64, v65\nv_cvt_pk_bf16_f32 v69, v66, v67")
    a("v_lshlrev_b32 v64, 16, v68\nv_and_b32 v65, 0xffff0000, v68\nv_lshlrev_b32 v66, 16, v69\nv_and_b32 v67, 0xffff0000, v69")
    a("v_pk_add_f32 v[70:71], v[64:65], v[66:67]\nv_pk_mul_f32 v[72:73], v[64:65], v[64:65]\nv_add_f32 v70, v70, v71")
    a("v_fmac_f32 v72, v66, v66\nv_fmac_f32 v73, v67, v67\nv_add_f32 v71, v72, v73")
    for k in (8, 4, 2, 1):
        a(f"v_add_f32_dpp v70, v70, v70 row_ror:{k} {DPPM}\nv_add_f32_dpp v71, v71, v71 row_ror:{k} {DPPM}")
    a("s_mov_b64 exec, s[88:89]\nds_write_b64 v50, v[70:71]\ns_mov_b64 exec, s[86:87]")
    for r in range(4): a(f"ds_write_b32 v5, v{64+r} offset:{16*r}")
    a("s_mov_b64 exec, -1")
    L = spin_begin("st")
    a("ds_read_b64 v[70:71], v51\ns_waitcnt lgkmcnt(0)"); sent_check((70, 71), 8); spin_end(L)
    for k in (8, 4, 2, 1):
        a(f"v_add_f32_dpp v70, v70, v70 row_ror:{k} {DPPM}\nv_add_f32_dpp v71, v71, v71 row_ror:{k} {DPPM}")
    a("v_mul_f32 v70, s92, v70\nv_mul_f32 v71, s92, v71\nv_fma_f32 v71, -v70, v70, v71\nv_max_f32 v71, 0, v71")
    ln_finish(70, 71)
    for r in range(4): a(f"v_sub_f32 v{64+r}, v{64+r}, v70")
    a("v_cvt_pk_bf16_f32 v68, v64, v65\nv_cvt_pk_bf16_f32 v69, v66, v67")
    a("v_lshlrev_b32 v64, 16, v68\nv_and_b32 v65, 0xffff0000, v68\nv_lshlrev_b32 v66, 16, v69\nv_and_b32 v67, 0xffff0000, v69")
    for r in range(4): a(f"v_mul_f32 v{64+r}, v{64+r}, v71")
    a("v_cvt_pk_bf16_f32 v68, v64, v65\nv_cvt_pk_bf16_f32 v69, v66, v67")
    def gu_b(i):
        for r in range(4): a(f"v_mov_b32_dpp v{72+4*i+r}, v{68+(r&1)} row_newbcast:{2*i+(r>>1)} {DPPM}")
    gu_b(0); gu_b(1)
    for i in range(5):
        for q in range(4):
            A = 128 + (i * 4 + q) * 4; D = 96 + 4 * q
            a(f"v_mfma_f32_16x16x32_bf16 v[{D}:{D+3}], v[{A}:{A+3}], v[{72+4*i}:{75+4*i}], {'0' if i == 0 else f'v[{D}:{D+3}]'}")
            if q == 0 and i < 3: gu_b(i + 2)
    a("s_mov_b64 exec, s[88:89]")
    for q in range(4): a(f"ds_write_b128 v52, v[{96+4*q}:{99+4*q}] offset:{64*q}")
    a("s_mov_b64 exec, -1")
    stamp(6)
    L = spin_begin("gr")
    for w in range(4): a(f"ds_read2_b32 v[{64+2*w}:{65+2*w}], v53 offset0:{64*w} offset1:{64*w+32}")
    a("s_waitcnt lgkmcnt(0)"); sent_check(range(64, 72), 8); spin_end(L)
    a("ds_read_b32 v48, v58")
    a("v_pk_add_f32 v[64:65], v[64:65], v[66:67]\nv_pk_add_f32 v[68:69], v[68:69], v[70:71]\nv_pk_add_f32 v[64:65], v[64:65], v[68:69]")
    a("v_cvt_pk_bf16_f32 v66, v64, v65\nv_lshlrev_b32 v64, 16, v66\nv_and_b32 v65, 0xffff0000, v66")
    a("v_mul_f32 v66, v64, v64\nv_fma_f32 v66, v66, s100, v59\nv_mul_f32 v66, v66, v64\nv_exp_f32 v66, v66\nv_add_f32 v66, 1.0, v66\nv_rcp_f32 v66, v66\nv_mul_f32 v64, v64, v66")
    bfr(64, 64)
    a(f"v_mul_f32 v64, v64, v65\nv_mov_b32_dpp v65, v64 quad_perm:[1,1,3,3] {DPPM}\nv_cvt_pk_bf16_f32 v64, v64, v65")
    def dn_b(q):
        for r in range(4): a(f"v_and_b32_dpp v{68+4*q+r}, v64, v{12+q} row_newbcast:{2*r} {DPPM}")
    dn_b(0); dn_b(1)
    for q in range(4):
        for k in range(3):
            A = 208 + (k * 4 + q) * 4; D = 84 + 4 * k
            a(f"v_mfma_f32_16x16x32_bf16 v[{D}:{D+3}], v[{A}:{A+3}], v[{68+4*q}:{71+4*q}], {'0' if q == 0 else f'v[{D}:{D+3}]'}")
            if k == 0 and q < 2: dn_b(q + 2)
    a("s_cmp_ge_u32 s76, 2\ns_mov_b64 exec, s[0:1]")
    for k in range(3):
        if k == 2: a("s_cbranch_scc1 L_dn3")
        a(f"buffer_store_dwordx4 v[{84+4*k}:{87+4*k}], v54, {sWS}, s95 offen offset:{256*k} sc0 sc1")
    a("L_dn3:\ns_mov_b64 exec, -1")
    stamp(7)
    a("s_cmp_lg_u32 s76, 0\ns_cbranch_scc1 L_ffn_next\ns_cmp_ge_u32 s85, 20\ns_cbranch_scc1 L_ffn_next")
    wait_lds(PRG + 8, 1, 8)
    if pre3: a(f"s_sleep {pre3}")
    L = spin_begin("h3")
    a("s_mov_b32 s7, s96")
    for k in range(7):
        a(f"buffer_load_dwordx4 v[{16+4*k}:{19+4*k}], {'v56' if k == 6 else 'v55'}, {sWS}, s7 offen sc1")
        if k < 6: a("s_add_u32 s7, s7, 20480")
    a("s_waitcnt vmcnt(0)"); sent_check(range(16, 44), 8); spin_end(L, backoff)
    stamp(8)
    for (d, s) in ((16, 20), (24, 28), (32, 36), (16, 24), (32, 40), (16, 32)):
        a(f"v_pk_add_f32 v[{d}:{d+1}], v[{d}:{d+1}], v[{s}:{s+1}]\nv_pk_add_f32 v[{d+2}:{d+3}], v[{d+2}:{d+3}], v[{s+2}:{s+3}]")
    a("v_permlane32_swap_b32 v16, v17\nv_permlane32_swap_b32 v18, v19\nv_add_f32 v16, v16, v17\nv_add_f32 v18, v18, v19")
    a(f"v_permlane16_swap_b32 v16, v18\nv_add_f32 v16, v16, v18\nv_add_f32_dpp v16, v16, v16 row_ror:8 {DPPM}")
    bfr(16, 16)
    a("s_waitcnt lgkmcnt(0)\nv_add_f32 v16, v16, v48\nv_cvt_pk_bf16_f32 v16, v16, v16")
    a(f"s_mov_b64 exec, s[4:5]\nbuffer_store_short v16, v57, {sOUT}, s97 offen\ns_mov_b64 exec, -1")
    stamp(9)
    a("s_cmp_lg_u32 s85, 0\ns_cbranch_scc1 L_ffn_next\ns_cmp_lg_u32 s98, 1\ns_cbranch_scc1 L_ffn_next")
    a(f"v_mov_b32 v8, s77\ns_mov_b64 exec, 1\nbuffer_store_dword v8, v61, {sWS}, 0 offen\ns_mov_b64 exec, -1")
    a("L_ffn_next:")
    a("s_add_u32 s94, s94, 20480\ns_add_u32 s95, s95, 138240\ns_add_u32 s96, s96, 138240\ns_add_u32 s97, s97, 1280")
    a("v_add_u32 v5, 2560, v5\nv_add_u32 v58, 2560, v58\nv_add_u32 v50, 128, v50\nv_add_u32 v51, 128, v51")
    a("v_add_u32 v52, 1024, v52\nv_add_u32 v53, 1024, v53")
    a("s_add_u32 s98, s98, 1\ns_cmp_lt_u32 s98, 2\ns_cbranch_scc1 L_ffn_b")
    dump_stamps()
    a("L_exit:\ns_endpgm\nL_code_end:")

    hdr = open("cdna_kernels/" + NAME + ".s.ref").read().split("; Override launch")[0]
    out = [hdr.rstrip(), f"; @launch grid=(256,1,1) block=(512,1,1) lds={LDSZ}", '.amdgcn_target "amdgcn-amd-amdhsa--gfx950"']
    out += a.finish()
    out.append(f""".section .rodata,"a"
.p2align 6
.amdhsa_kernel {kname}
  .amdhsa_next_free_vgpr 256
  .amdhsa_next_free_sgpr 102
  .amdhsa_accum_offset 256
  .amdhsa_group_segment_fixed_size 0
  .amdhsa_kernarg_size 96
  .amdhsa_user_sgpr_count 2
  .amdhsa_user_sgpr_kernarg_segment_ptr 1
  .amdhsa_system_sgpr_workgroup_id_x 1
  .amdhsa_float_denorm_mode_32 3
.end_amdhsa_kernel""")
    return "\n".join(out) + "\n"

if __name__ == "__main__":
    kw = eval("dict(" + (sys.argv[2] if len(sys.argv) > 2 else "") + ")")
    open(sys.argv[1], "w").write(gen(**kw))
```

```python
import sys, struct
from asmlib import Asm

NAME = "sequential_preLN__mha_block_cached__geglu_ffn__decode"
def f2u(x): return struct.unpack("<I", struct.pack("<f", x))[0]
def hx(x): return "0x%08x" % (x & 0xffffffff)

REF = 0x1000
ML, QP, OPA, OPB, YP, DP, DIAG, QPB, WSZ = 0x170000, 0x10000, 0x90000, 0xD0000, 0x110000, 0x120000, 0x1a0000, 0x200000, 0x280000
OOB = 0x7ff00000
PRG, MCNT, MRED = 4640, 4616, 4672
QRED, QF, CNT, CLR, STAT, ORED, YRED, GRED, HTAB, LDSZ = 0, 4096, 4608, 4624, 4864, 5120, 9216, 11264, 13312, 24576
sK, sV, sWS, sX, sWQ, sWO, sWG, sWU, sWD, sOUT = [f"s[{n}:{n+3}]" for n in range(32, 72, 4)]
DPPM = "row_mask:0xf bank_mask:0xf"
LOG2E = f2u(1.4426950408889634)
SPIN = 0x10000

def gen(depth=5, taildepth=8, tailfrom=246, P=39, budget=56, diag=False, pre3=10, wthr=2, fast=True, ml0=124, ml1=194, kvpol='nt', wpol='nt', wpol2='nt', skip='', gates=(150, 222, 258, 271), qsleep=2, qpre=24, wo_w=2, gu_w=4, dn_w=4, cal=0, ctl=None, E=24, dl=11, dw=12, nref=8, gb=20, gs=24, bias=0, first=1, gg=(4, 8, 7), hrot=0, touch=0, qB=6):
    a = Asm()
    kname = NAME + "_kernel"
    def stamp(k):
        if diag: a(f"s_memrealtime s[{8+2*k}:{9+2*k}]")
    def dump_stamps():
        if not diag: return
        a("s_waitcnt lgkmcnt(0)")
        a("s_mov_b64 exec, 1")
        a("s_lshl_b32 s90, s6, 3\ns_add_u32 s90, s90, s3\ns_lshl_b32 s90, s90, 6")
        a(f"s_add_u32 s90, s90, {DIAG}")
        a("v_mov_b32 v5, 0")
        for k in range(11):
            a(f"v_mov_b32 v{112+k}, s{8+2*k}")
        a("v_mov_b32 v123, s78")
        for q in range(3):
            a(f"buffer_store_dwordx4 v[{112+4*q}:{115+4*q}], v5, {sWS}, s90 offen offset:{16*q}")
    def srd(n, p, size):
        a(f"s_mov_b32 s{n}, s{p}\ns_mov_b32 s{n+1}, s{p+1}\ns_mov_b32 s{n+2}, {hx(size)}\ns_mov_b32 s{n+3}, 0x20000")
    def bfr(d, s):
        a(f"v_cvt_pk_bf16_f32 v{d}, v{s}, v{s}\nv_and_b32 v{d}, 0xffff0000, v{d}")
    def mask64(n, v):
        a(f"s_mov_b32 s{n}, {hx(v)}\ns_mov_b32 s{n+1}, {hx(v >> 32)}")
    def spin_begin(base):
        L = a.lab(base); a(f"s_mov_b32 s79, {SPIN}"); a(L + ":"); return L
    def spin_end(L, sleep=0):
        Ld = L + "_d"
        a(f"s_cbranch_vccz {Ld}")
        if sleep == "first":
            a(f"s_cmp_lg_u32 s98, 0\ns_cbranch_scc1 {L}_n\ns_sleep 8\n{L}_n:")
        elif sleep: a(f"s_sleep {sleep}")
        a(f"s_sub_u32 s79, s79, 1\ns_cbranch_scc0 {L}")
        a(Ld + ":")
    def sent_check(regs, t):
        regs = list(regs)
        if len(regs) == 1:
            a(f"v_cmp_eq_u32 vcc, -1, v{regs[0]}"); return
        first = True
        while regs:
            if first:
                if len(regs) >= 3: a(f"v_max3_u32 v{t}, v{regs[0]}, v{regs[1]}, v{regs[2]}"); regs = regs[3:]
                else: a(f"v_max_u32 v{t}, v{regs[0]}, v{regs[1]}"); regs = regs[2:]
                first = False
            elif len(regs) >= 2: a(f"v_max3_u32 v{t}, v{t}, v{regs[0]}, v{regs[1]}"); regs = regs[2:]
            else: a(f"v_max_u32 v{t}, v{t}, v{regs[0]}"); regs = regs[1:]
        a(f"v_cmp_eq_u32 vcc, -1, v{t}")
    def rows_allreduce(op, v, t, both=True):
        a(f"v_mov_b32 v{t}, v{v}\nv_permlane16_swap_b32 v{v}, v{t}\n{op} v{v}, v{v}, v{t}")
        if both: a(f"v_mov_b32 v{t}, v{v}\nv_permlane32_swap_b32 v{v}, v{t}\n{op} v{v}, v{v}, v{t}")
    def half_masks(first, esrc, t0):
        a(f"v_and_b32 v{t0}, 1, v{esrc}\nv_lshlrev_b32 v{t0}, 4, v{t0}\nv_mov_b32 v{t0+1}, 0xffff\nv_lshlrev_b32 v{t0}, v{t0}, v{t0+1}")
        a(f"v_lshrrev_b32 v{t0+1}, 1, v{esrc}")
        for r in range(4):
            a(f"v_cmp_eq_u32 vcc, {r}, v{t0+1}\nv_cndmask_b32 v{first+r}, 0, v{t0}, vcc")

    a(f".text\n.globl {kname}\n.p2align 8\n.type {kname},@function\n{kname}:")
    a("s_cmp_ge_u32 s2, 256\ns_cbranch_scc1 L_exit")
    if cal: a("s_memrealtime s[100:101]")
    a("s_load_dwordx16 s[8:23], s[0:1], 0\ns_load_dwordx8 s[24:31], s[0:1], 64")
    a("s_getpc_b64 s[4:5]\nL_pc:")
    a("v_lshlrev_b32 v4, 7, v0\nv_min_u32 v4, L_code_end-L_pc-4, v4")
    a("global_load_dword v4, v4, s[4:5]")
    a("v_lshrrev_b32 v5, 6, v0\nv_and_b32 v1, 63, v0\nv_readfirstlane_b32 s3, v5")
    a("s_and_b32 s72, s2, 7\ns_lshr_b32 s73, s2, 3\ns_lshl_b32 s6, s72, 5\ns_add_u32 s6, s6, s73")
    a("s_lshr_b32 s74, s6, 3\ns_and_b32 s75, s6, 7\ns_and_b32 s76, s3, 3")
    a("s_getreg_b32 s78, hwreg(HW_REG_XCC_ID, 0, 4)")
    a("v_lshlrev_b32 v5, 4, v0\nv_mov_b32 v112, -1\nv_mov_b32 v113, -1\nv_mov_b32 v114, -1\nv_mov_b32 v115, -1")
    for k in range(LDSZ // 8192):
        a(f"ds_write_b128 v5, v[112:115] offset:{k*8192}")
    a("v_and_b32 v6, 15, v1\nv_lshrrev_b32 v7, 4, v1")
    a("s_cmp_lt_u32 s3, 4\ns_cbranch_scc1 L_aux")

    a("s_setprio 2")
    a("v_bfe_u32 v8, v1, 2, 2\nv_lshlrev_b32 v8, 8, v8\nv_lshl_or_b32 v8, v7, 6, v8\nv_and_b32 v9, 3, v1\nv_lshl_or_b32 v2, v9, 4, v8")
    a("s_cmp_lt_u32 s75, 2\ns_cselect_b32 s71, 0x80000000, 0\ns_lshl_b32 s70, s75, 18\ns_lshr_b32 s72, s75, 2\ns_lshl_b32 s72, s72, 18")
    a("s_and_b32 s79, s75, 3\ns_mul_i32 s79, s79, 20480\ns_add_u32 s72, s72, s79\ns_lshl_b32 s7, s74, 21\ns_lshl_b32 s79, s76, 10\ns_add_u32 s7, s7, s79")
    a("v_add_u32 v2, s7, v2\nv_lshl_add_u32 v3, v1, 4, s7")
    a("s_waitcnt lgkmcnt(0)")
    srd(32, 10, 1 << 27); srd(36, 12, 1 << 27); srd(40, 30, WSZ)
    a("s_load_dword s77, s[30:31], 0")
    RING, NB, PH, NG = 100, 39, 68, 17
    BK, DK, ACC, BV, MLB, MLS, RMAX, S, NINF = 16, 32, 40, 44, 52, 56, 60, [64, 81], 98
    vm = ["code"]
    landed = [-1]
    def wait_vm(idx):
        if idx > landed[0]:
            a(f"s_waitcnt vmcnt({len(vm) - 1 - idx})"); landed[0] = idx
    ld_idx = {}
    def kind(n):
        k, r = divmod(n, 17)
        if r == 16: return ("hole", k)
        m = 16 * k + r
        return ("opt" if (m & 3) == ((m >> 2) & 3) else "own", m)
    def issue(i):
        ph, n = divmod(i, PH)
        b, isv = ph & 1, ph >> 1
        kd, m = kind(n)
        so = "s73"
        if kd == "hole": a(f"s_add_u32 s73, s72, {hx((b << 26) + ((m + hrot) & 3) * 65536)}")
        else:
            a(f"s_add_u32 s7, s70, {hx(b << 26)}" if m == 0 else "s_addk_i32 s7, 0x1000")
            if kd == "opt": a("s_or_b32 s73, s7, s71")
            else: so = "s7"
        r = RING + (i % NB) * 4
        a(f"buffer_load_dwordx4 v[{r}:{r+3}], {'v3' if isv else 'v2'}, {sV if isv else sK}, {so} offen {kvpol}")
        ld_idx[i] = len(vm); vm.append(("ld", i))

    items = []
    got = set()
    def add(cost, needs, fn): items.append((cost, needs, fn))
    def it_setup():
        half_masks(10, 6, 8)
        for t in range(4): mask64(80 + 2 * t, 0x000F000F000F000F << (4 * t))
        mask64(88, 0x00FF00FF00FF00FF)
        a(f"v_and_b32 v9, 3, v1\nv_lshlrev_b32 v9, 4, v9\nv_lshl_or_b32 v14, v7, 6, v9")
        a(f"v_and_b32 v15, 31, v1\nv_lshlrev_b32 v15, 4, v15")
        a(f"v_lshl_add_u32 v9, v7, 3, v6\nv_lshlrev_b32 v9, 4, v9\ns_lshl_b32 s79, s76, 9\nv_add_u32 v62, s79, v9")
        a(f"s_lshl_b32 s79, s6, 9\nv_add_u32 v63, s79, v15")
        a(f"v_mov_b32 v61, 0\nv_mov_b32 v5, 1\nv_mov_b32 v{NINF}, 0xff800000")
        a("s_waitcnt lgkmcnt(0)")
        a("s_mul_i32 s77, s77, 1664525\ns_add_u32 s77, s77, 1013904223")
        a(f"s_lshr_b32 s90, s6, 5\ns_lshl_b32 s90, s90, 12\ns_add_u32 s90, s90, {ML}")
        a(f"s_lshl_b32 s91, s6, 7\ns_add_u32 s91, s91, {ML}")
        a("v_bfe_u32 v9, v1, 2, 3\nv_lshlrev_b32 v9, 7, v9\nv_and_b32 v4, 3, v1\nv_lshl_or_b32 v0, v4, 4, v9\ns_and_b32 s79, s74, 3\ns_lshl_b32 s79, s79, 10\nv_add_u32 v0, s79, v0")
        a("v_and_b32 v8, 31, v1\nv_min_u32 v8, 9, v8\nv_and_b32 v9, 3, v8\nv_lshrrev_b32 v8, 2, v8\nv_lshl_add_u32 v8, v9, 3, v8\nv_lshlrev_b32 v8, 7, v8\nv_add_u32 v8, 320, v8")
        a("v_cmp_gt_u32 vcc, 32, v1\nv_cndmask_b32 v99, v8, v0, vcc\nv_lshlrev_b32 v4, 3, v4")
        a("s_lshl_b32 s99, s76, 3\ns_ashr_i32 s98, s71, 31")
        if ctl:
            a(f"s_sub_u32 s65, s2, {256 - nref}\ns_cselect_b32 s64, 0, 1\ns_cmp_eq_u32 s76, 0\ns_cselect_b32 s64, s64, 0\ns_mul_i32 s65, s65, 4352\ns_add_u32 s65, s65, {REF}")
            a(f"s_add_u32 s66, s40, {REF}\ns_addc_u32 s67, s41, 0\ns_mov_b32 s62, 0\ns_mov_b32 s63, 0")
        a(f"s_mov_b32 s92, {hx(f2u(128 ** -0.5))}\ns_mov_b32 s93, {hx(LOG2E)}")
    def it_qfrag(b):
        def fn():
            L = spin_begin("q")
            a(f"ds_read_b128 v[{BV}:{BV+3}], v14 offset:{QF + b * 256}\ns_waitcnt lgkmcnt(0)")
            sent_check(range(BV, BV + 4), BV + 4)
            spin_end(L, 1)
            if b == 0: stamp(1)
            for t in range(4):
                for r in range(4):
                    a(f"v_cndmask_b32 v{BK + 4*t + r}, 0, v{BV + r}, s[{80+2*t}:{81+2*t}]")
        return fn
    def it_k(i):
        b, n = divmod(i, PH); u, t = n >> 2, n & 3
        def fn():
            r = RING + (i % NB) * 4; d = DK + (u & 1) * 4
            a(f"v_mfma_f32_16x16x32_bf16 v[{d}:{d+3}], v[{r}:{r+3}], v[{BK+4*t}:{BK+4*t+3}], {'0' if t == 0 else f'v[{d}:{d+3}]'}")
        return fn
    def it_kred(b, u):
        def fn():
            d = DK + (u & 1) * 4; s = S[b] + u
            a(f"v_mov_b32_dpp v{s}, v{d} quad_perm:[0,0,0,0] {DPPM}")
            for r in range(1, 4):
                a(f"v_add_f32_dpp v{s}, v{d+r}, v{s} quad_perm:[{r},{r},{r},{r}] {DPPM}")
            bfr(s, s); a(f"v_mul_f32 v{s}, s92, v{s}"); bfr(s, s)
            om = sum(0x000F000F << (4 * t) for t in range(4) if kind(4 * u + t)[0] == "opt")
            if om: a(f"s_and_b32 s0, s98, {hx(om)}\ns_mov_b32 s1, s0\nv_cndmask_b32 v{s}, v{s}, v{NINF}, s[0:1]")
            a(f"v_mov_b32 v{RMAX}, v{s}" if u == 0 else f"v_max_f32 v{RMAX}, v{RMAX}, v{s}")
        return fn
    def it_max(b):
        def fn():
            a(f"v_max_f32_dpp v{RMAX}, v{RMAX}, v{RMAX} row_ror:8 {DPPM}\nv_max_f32_dpp v{RMAX}, v{RMAX}, v{RMAX} row_ror:4 {DPPM}")
            rows_allreduce("v_max_f32", RMAX, BV)
            a(f"v_mov_b32 v{MLS}, v{RMAX}\nv_mov_b32 v{MLS+1}, 0")
        return fn
    def it_sum(b, u0):
        def fn():
            n = min(4, NG - u0)
            for u in range(n): a(f"v_sub_f32 v{BV+u}, v{S[b]+u0+u}, v{MLS}")
            for u in range(n): a(f"v_mul_f32 v{BV+u}, s93, v{BV+u}")
            for u in range(n): a(f"v_exp_f32 v{BV+u}, v{BV+u}")
            for u in range(n): a(f"v_add_f32 v{MLS+1}, v{MLS+1}, v{BV+u}")
        return fn
    def it_mlpub(b):
        def fn():
            l = MLS + 1
            Ls = a.lab("mlast")
            a(f"v_add_f32_dpp v{l}, v{l}, v{l} row_ror:8 {DPPM}\nv_add_f32_dpp v{l}, v{l}, v{l} row_ror:4 {DPPM}")
            rows_allreduce("v_add_f32", l, BV)
            a(f"v_mov_b32 v8, s99\ns_mov_b64 exec, 1\nds_write_b64 v8, v[{MLS}:{MLS+1}] offset:{MRED + 32*b}")
            a(f"ds_add_rtn_u32 v8, v61, v5 offset:{MCNT + 4*b}\ns_mov_b64 exec, -1")
            a(f"ds_read_b64 v[{BV}:{BV+1}], v4 offset:{MRED + 32*b}\ns_waitcnt lgkmcnt(0)\nv_readfirstlane_b32 s79, v8")
            a(f"s_cmp_lg_u32 s79, 2\ns_cbranch_scc1 {Ls}")
            if b == 0:
                L = spin_begin("clr")
                a(f"ds_read_b32 v8, v61 offset:{CLR}\ns_waitcnt lgkmcnt(0)\nv_cmp_eq_u32 vcc, -1, v8")
                spin_end(L, 2)
            a(f"v_mov_b32 v8, s78\nv_cndmask_b32 v{MLS}, v8, v{BV}, s[80:81]\nv_mov_b32 v{MLS+1}, s77\nv_mov_b32 v{MLS+2}, v{BV+1}\nv_mov_b32 v{MLS+3}, s77")
            a(f"s_add_u32 s79, s91, {b * 32768}\ns_mov_b64 exec, 0xff")
            a(f"buffer_store_dwordx4 v[{MLS}:{MLS+3}], v15, {sWS}, s79 offen sc0 sc1\ns_mov_b64 exec, -1")
            a(Ls + ":")
        return fn
    def ml_issue(b):
        a(f"s_add_u32 s94, s90, {b * 32768}")
        a(f"buffer_load_dwordx4 v[{MLB}:{MLB+3}], {'v0' if b else 'v99'}, {sWS}, s94 offen sc1")
        ld_idx[("ml", b)] = len(vm); vm.append("mlld")
    def it_mlget(b):
        def fn():
            Lok, chk = a.lab("mlok"), f"v_cmp_ne_u32 vcc, s77, v{MLB+1}\nv_cmp_ne_u32 s[96:97], s77, v{MLB+3}\ns_or_b64 vcc, vcc, s[96:97]"
            a(chk); a(f"s_cbranch_vccz {Lok}")
            L = spin_begin("ml")
            a(f"buffer_load_dwordx4 v[{MLB}:{MLB+3}], {'v0' if b else 'v99'}, {sWS}, s94 offen sc1\ns_waitcnt vmcnt(0)")
            a(chk); spin_end(L, 2)
            a(Lok + ":")
            got.add(b)
            if b == 0: a(f"v_cmp_ne_u32 vcc, s78, v{MLB}\ns_mov_b32 s30, {'vcc_hi' if fast else '1'}")
            M, Ls = MLB + 1, MLB + 2
            a(f"v_max_f32_dpp v{M}, v{MLB}, v{MLB} row_ror:8 {DPPM}")
            for k in (4, 2, 1): a(f"v_max_f32_dpp v{M}, v{M}, v{M} row_ror:{k} {DPPM}")
            rows_allreduce("v_max_f32", M, 8, both=False)
            a(f"v_sub_f32 v8, v{MLB}, v{M}\nv_mul_f32 v8, s93, v8\nv_exp_f32 v8, v8\nv_mul_f32 v{Ls}, v{Ls}, v8")
            for k in (8, 4, 2, 1): a(f"v_add_f32_dpp v{Ls}, v{Ls}, v{Ls} row_ror:{k} {DPPM}")
            rows_allreduce("v_add_f32", Ls, 8, both=False)
            a(f"v_rcp_f32 v{Ls}, v{Ls}\nv_readfirstlane_b32 s4, v{M}\nv_readfirstlane_b32 s5, v{Ls}")
        return fn
    def it_p(b, u0):
        def fn():
            R = [S[b] + u for u in range(u0, min(u0 + 4, NG))]
            for s in R: a(f"v_subrev_f32 v{s}, s4, v{s}")
            for s in R: a(f"v_mul_f32 v{s}, s93, v{s}")
            for s in R: a(f"v_exp_f32 v{s}, v{s}")
            for s in R: a(f"v_mul_f32 v{s}, s5, v{s}")
            for s in R: a(f"v_cvt_pk_bf16_f32 v{s}, v{s}, v{s}")
        return fn
    def v_bfrag(i):
        b, n = divmod(i - 2 * PH, PH); u, t = n >> 2, n & 3; bv = BV + (i & 1) * 4
        for r in range(4):
            a(f"v_and_b32_dpp v{bv+r}, v{S[b]+u}, v{10+r} row_newbcast:{4*t} {DPPM}")
    def v_mfma(i):
        n = i % PH; r = RING + (i % NB) * 4; bv = BV + (i & 1) * 4
        a(f"v_mfma_f32_16x16x32_bf16 v[{ACC}:{ACC+3}], v[{r}:{r+3}], v[{bv}:{bv+3}], {'0' if n == 0 else f'v[{ACC}:{ACC+3}]'}")
    def it_opub(b):
        def fn():
            Ls = a.lab("olast")
            if b == 1: stamp(2)
            a("s_mov_b64 exec, s[88:89]")
            a(f"ds_write_b128 v62, v[{ACC}:{ACC+3}] offset:{ORED + b * 2048}")
            a(f"s_mov_b64 exec, 1\nds_add_rtn_u32 v8, v61, v5 offset:{CNT + 4*b}\ns_mov_b64 exec, -1")
            for w in range(4): a(f"ds_read_b128 v[{16+4*w}:{19+4*w}], v15 offset:{ORED + b * 2048 + w * 512}")
            a(f"s_mov_b32 s95, {OPA + b * 0x20000}")
            a("s_waitcnt lgkmcnt(0)\nv_readfirstlane_b32 s79, v8")
            a("v_pk_add_f32 v[16:17], v[16:17], v[20:21]\nv_pk_add_f32 v[18:19], v[18:19], v[22:23]")
            a("v_pk_add_f32 v[24:25], v[24:25], v[28:29]\nv_pk_add_f32 v[26:27], v[26:27], v[30:31]")
            a(f"s_cmp_lg_u32 s79, 2\ns_cbranch_scc1 {Ls}")
            a("v_pk_add_f32 v[16:17], v[16:17], v[24:25]\nv_pk_add_f32 v[18:19], v[18:19], v[26:27]")
            a(f"s_mov_b32 exec_hi, 0\ns_cmp_lg_u32 s30, 0\ns_cbranch_scc1 {Ls}_far")
            a(f"buffer_store_dwordx4 v[16:19], v63, {sWS}, s95 offen\ns_branch {Ls}_e\n{Ls}_far:")
            a(f"buffer_store_dwordx4 v[16:19], v63, {sWS}, s95 offen sc0 sc1\n{Ls}_e:\ns_mov_b64 exec, -1")
            if b == 1: stamp(3)
            a(Ls + ":")
        return fn

    for b in range(2):
        add(30, None, it_qfrag(b))
        for n in range(PH):
            add(4, PH * b + n, it_k(PH * b + n))
            if n & 3 == 0 and n: add(12, None, it_kred(b, (n >> 2) - 1))
            if b == 1 and PH + n == ml0:
                add(40, ("ml", 0), it_mlget(0))
                for u0 in range(0, NG, 4): add(24, None, it_p(0, u0))
        add(16, None, it_kred(b, NG - 1)); add(20, None, it_max(b))
        for u0 in range(0, NG, 4): add(20, None, it_sum(b, u0))
        add(20, None, it_mlpub(b))
    for b in range(2):
        for n in range(PH):
            i = (2 + b) * PH + n
            add(4, None, (lambda i=i: v_bfrag(i))); add(4, i, (lambda i=i: v_mfma(i)))
            if b == 0 and i == ml1:
                add(40, ("ml", 1), it_mlget(1))
                for u0 in range(0, NG, 4): add(24, None, it_p(1, u0))
        add(40, None, it_opub(b))

    consumed = [-1]
    def run_items(bud, force=False):
        while items:
            cost, needs, fn = items[0]
            if needs is not None:
                if needs not in ld_idx: return
                if ld_idx[needs] > landed[0]:
                    if not force: return
                    wait_vm(ld_idx[needs])
            if bud <= 0 and not force: return
            items.pop(0); fn(); bud -= cost
            if isinstance(needs, int): consumed[0] = needs
    issued = 0
    step = 0
    while issued < 4 * PH:
        i = issued
        if ctl and i >= first * E + dl + dw:
            wait_vm(ld_idx[i - ctl[0]])
            n = [len(vm) - 1 - ld_idx[i - d] for d in ctl]
            go = a.lab("go")
            a(f"s_cmpk_gt_u32 s62, {i}\ns_cbranch_scc1 {go}\ns_waitcnt vmcnt({n[1]})")
            a(f"s_cmpk_le_u32 s63, {i}\ns_cbranch_scc1 {go}\ns_waitcnt vmcnt({n[2]})\n{go}:")
        else:
            d = taildepth if i >= tailfrom else depth
            if i - d >= 0: wait_vm(ld_idx[i - d])
        while consumed[0] < i - NB:
            n0 = len(items); run_items(1); assert len(items) < n0, "ring stall"
        issue(i); issued += 1
        if i == depth - 1:
            if touch:
                a(f"s_add_u32 s79, s70, {hx(1 << 26)}\ns_mov_b64 exec, 1")
                for sr, so in ((sK, "s79"), (sV, "s70"), (sV, "s79")):
                    a(f"buffer_load_dword v{RMAX}, v3, {sr}, {so} offen {kvpol}"); vm.append("touch")
                a("s_mov_b64 exec, -1")
            a("s_barrier"); wait_vm(0); it_setup(); stamp(0)
        if ctl:
            k, m = divmod(i, E)
            if k >= first and k * E + dl + dw < 4 * PH:
                if m == 0: a("s_memrealtime s[60:61]")
                if m == 1:
                    sk = a.lab("ref")
                    a(f"s_cmp_eq_u32 s64, 0\ns_cbranch_scc1 {sk}\ns_waitcnt lgkmcnt(0)\nv_mov_b32 v6, s60\nv_mov_b32 v7, s77\nv_mov_b32 v8, s60\nv_mov_b32 v9, s77\ns_mov_b64 exec, 0xff")
                    a(f"buffer_store_dwordx4 v[6:9], v15, {sWS}, s65 offen offset:{128*k} sc0 sc1\ns_mov_b64 exec, -1\n{sk}:")
                if m == dl:
                    for q in range(nref): a(f"s_load_dwordx2 s[{44+2*q}:{45+2*q}], s[66:67], {q*4352 + 128*k}")
                if m == dl + dw:
                    a(f"s_waitcnt lgkmcnt(0)\ns_mov_b32 s68, {bias * nref}")
                    for q in range(nref):
                        a(f"s_sub_u32 s69, s60, s{44+2*q}\ns_cmp_eq_u32 s{45+2*q}, s77\ns_cselect_b32 s69, s69, {-14*dl}\ns_add_u32 s68, s68, s69")
                    a(f"s_max_i32 s69, s68, 0\ns_min_u32 s69, s69, 0x4000\ns_mul_i32 s69, s69, {int(gb*655.36/nref)}\ns_lshr_b32 s69, s69, 16\ns_add_u32 s62, s69, {i+1}")
                    a(f"s_sub_i32 s69, 0, s68\ns_max_i32 s69, s69, 0\ns_min_u32 s69, s69, 0x4000\ns_mul_i32 s69, s69, {int(gs*655.36/nref)}\ns_lshr_b32 s69, s69, 16\ns_add_u32 s63, s69, {i+1}")
        for gi in [k for k, g in enumerate(gates) if g == i]:
            assert 0 in got
            a(f"s_mov_b64 exec, 1\nds_write_b32 v61, v5 offset:{PRG + 4*gi}\ns_mov_b64 exec, -1")
        if i in (34, 68, 102, 136, 170, 204, 238): stamp(3 + i // 34)
        if i == ml0: ml_issue(0)
        if i == ml1: ml_issue(1)
        if i >= P - 1: run_items(budget)
    run_items(0, force=True)
    if cal:
        a(f"L_cal:\ns_sleep 4\ns_memrealtime s[96:97]\ns_waitcnt lgkmcnt(0)\ns_sub_u32 s96, s96, s100\ns_cmp_lt_u32 s96, {cal}\ns_cbranch_scc1 L_cal")
    dump_stamps()
    a("s_endpgm")

    a("L_aux:")
    a("v_and_b32 v8, 31, v1\nv_lshlrev_b32 v8, 3, v8\nv_lshrrev_b32 v9, 5, v1\nv_mul_u32_u24 v9, 1280, v9\nv_add_u32 v2, v8, v9")
    a("s_mul_i32 s7, s75, 80\ns_mul_i32 s79, s76, 20\ns_add_u32 s7, s7, s79\nv_add_u32 v8, s7, v7")
    a("v_bfe_u32 v9, v1, 3, 1\nv_mul_u32_u24 v9, 1280, v9\nv_lshl_add_u32 v3, v8, 1, v9")
    a("s_lshl_b32 s7, s74, 8\nv_lshlrev_b32 v8, 13, v8\nv_lshl_add_u32 v9, v6, 4, s7\nv_add_u32 v5, v8, v9")
    a("s_waitcnt lgkmcnt(0)")
    srd(44, 8, 2560); srd(48, 14, 640 * 4096 * 2); srd(40, 30, WSZ)
    for i in range(5): a(f"buffer_load_dwordx2 v[{8+2*i}:{9+2*i}], v2, {sX}, 0 offen offset:{256*i}")
    for i in range(5): a(f"buffer_load_ushort v{18+i}, v3, {sX}, 0 offen offset:{8*i}")
    for i in range(5):
        a(f"s_mov_b32 s7, {i * 32768}\nbuffer_load_dwordx4 v[{24+4*i}:{27+4*i}], v5, {sWQ}, s7 offen {wpol}")
    a("s_load_dword s77, s[30:31], 0")
    srd(52, 16, 4096 * 640 * 2); srd(56, 20, 640 * 1728 * 2); srd(60, 22, 640 * 1728 * 2); srd(64, 24, 1728 * 640 * 2); srd(68, 26, 2560)
    a("s_barrier")
    a("v_and_b32 v68, 7, v1"); half_masks(64, 68, 69)
    mask64(88, 0xFF00FF00FF00FF00)
    a(f"s_mov_b32 s92, {hx(f2u(1/640))}\ns_mov_b32 s93, {hx(f2u(1e-5))}")
    a("s_waitcnt lgkmcnt(0)")
    stamp(0)
    a("s_mul_i32 s77, s77, 1664525\ns_add_u32 s77, s77, 1013904223")
    a("s_waitcnt vmcnt(10)")
    for i in range(10): a(f"v_lshlrev_b32 v{44+2*i}, 16, v{8+i}\nv_and_b32 v{45+2*i}, 0xffff0000, v{8+i}")
    def red32(v):
        for k in (8, 4, 2, 1): a(f"v_add_f32_dpp v{v}, v{v}, v{v} row_ror:{k} {DPPM}")
        rows_allreduce("v_add_f32", v, 71, both=False)
    a("v_pk_add_f32 v[8:9], v[44:45], v[46:47]")
    for i in range(2, 10): a(f"v_pk_add_f32 v[8:9], v[8:9], v[{44+2*i}:{45+2*i}]")
    a("v_add_f32 v8, v8, v9"); red32(8)
    a("v_mul_f32 v8, s92, v8\nv_mov_b32 v10, 0\nv_mov_b32 v11, 0")
    for i in range(20): a(f"v_sub_f32 v{44+i}, v{44+i}, v8")
    for i in range(20): a(f"v_fmac_f32 v{10+(i&1)}, v{44+i}, v{44+i}")
    a("v_add_f32 v10, v10, v11"); red32(10)
    def ln_finish(mean, var):
        bfr(var, var); bfr(mean, mean); a(f"v_add_f32 v{var}, s93, v{var}"); bfr(var, var); a(f"v_sqrt_f32 v{var}, v{var}"); bfr(var, var)
        a(f"v_rcp_f32 v{var}, v{var}")
    a("v_mul_f32 v10, s92, v10"); ln_finish(8, 10)
    a("v_readlane_b32 s80, v8, 0\nv_readlane_b32 s81, v8, 32\nv_readlane_b32 s82, v10, 0\nv_readlane_b32 s83, v10, 32")
    a("v_mov_b32 v8, s80\nv_mov_b32 v9, s81\nv_mov_b32 v10, s82\nv_mov_b32 v11, s83")
    a("v_cndmask_b32 v8, v8, v9, s[88:89]\nv_cndmask_b32 v10, v10, v11, s[88:89]")
    a("s_waitcnt vmcnt(5)")
    for i in range(5): a(f"v_lshlrev_b32 v{18+i}, 16, v{18+i}\nv_sub_f32 v{18+i}, v{18+i}, v8")
    for i in range(5): bfr(18 + i, 18 + i)
    for i in range(5): a(f"v_mul_f32 v{18+i}, v{18+i}, v10\nv_cvt_pk_bf16_f32 v{18+i}, v{18+i}, v{18+i}")
    for i in range(5):
        for r in range(4): a(f"v_and_b32 v{44+4*i+r}, v{18+i}, v{64+r}")
    for i in range(5):
        a(f"s_waitcnt vmcnt({4-i})")
        a(f"v_mfma_f32_16x16x32_bf16 v[72:75], v[{24+4*i}:{27+4*i}], v[{44+4*i}:{47+4*i}], {'0' if i == 0 else 'v[72:75]'}")
    a("v_lshlrev_b32 v8, 4, v0\nv_and_b32 v11, 31, v1\ns_lshl_b32 s7, s76, 2\nv_lshl_add_u32 v9, v11, 5, s7")
    a("s_lshl_b32 s7, s76, 9\nv_lshl_add_u32 v12, v11, 4, s7\ns_lshl_b32 s80, s6, 11")
    a(f"s_add_u32 s80, s80, {QP}\ns_lshl_b32 s81, s74, 14\ns_add_u32 s81, s81, {QP}\ns_add_u32 s82, s81, 4096")
    a(f"ds_write_b128 v8, v[72:75] offset:{QRED}")
    for w in range(1, 4): a(f"v_add_u32 v{8+8*w}, {1024*w}, v9")
    L = spin_begin("qred")
    for w in range(4): a(f"ds_read2_b32 v[{76+2*w}:{77+2*w}], v{9 if w == 0 else 8+8*w} offset0:0 offset1:4")
    a("s_waitcnt lgkmcnt(0)"); sent_check(range(76, 84), 84); spin_end(L)
    a("v_pk_add_f32 v[76:77], v[76:77], v[78:79]\nv_pk_add_f32 v[80:81], v[80:81], v[82:83]\nv_pk_add_f32 v[76:77], v[76:77], v[80:81]")
    a("s_add_u32 s83, s77, s78\ns_add_u32 s83, s83, 1\nv_mov_b32 v78, v77\nv_mov_b32 v77, s83\nv_mov_b32 v79, s83\ns_mov_b32 exec_hi, 0")
    a(f"buffer_store_dwordx4 v[76:79], v12, {sWS}, s80 offen\ns_mov_b64 exec, -1\ns_add_u32 s80, s80, {QPB - QP}")
    stamp(1)
    a(f"v_lshrrev_b32 v14, 5, v1\nv_lshl_add_u32 v12, v14, 13, v12\nv_add_u32 v14, {QPB - QP}, v12")
    a("v_bfe_u32 v13, v1, 2, 1\nv_lshlrev_b32 v13, 8, v13\nv_bfe_u32 v15, v1, 3, 2\nv_lshl_or_b32 v13, v15, 6, v13\nv_and_b32 v15, 3, v1\nv_lshl_or_b32 v13, v15, 2, v13")
    a("s_lshl_b32 s7, s76, 4\nv_add_u32 v13, s7, v13")
    if qpre: a(f"s_sleep {qpre}")
    L = spin_begin("qg")
    a(f"s_cmp_lg_u32 s79, {SPIN - qB}\ns_cbranch_scc1 L_qnear\nv_mov_b32 v77, s77\nv_mov_b32 v79, s77\ns_mov_b32 exec_hi, 0")
    a(f"buffer_store_dwordx4 v[76:79], v12, {sWS}, s80 offen sc0 sc1\ns_mov_b64 exec, -1\nL_qnear:")
    a(f"s_cmp_lt_u32 s79, {SPIN - qB}\ns_cselect_b32 s7, s79, 0\ns_bitcmp1_b32 s7, 0\ns_cselect_b64 vcc, -1, 0\ns_cselect_b32 s7, s77, s83\nv_cndmask_b32 v15, v12, v14, vcc")
    for k in range(4): a(f"buffer_load_dwordx4 v[{80+4*k}:{83+4*k}], v15, {sWS}, s{81+(k>>1)} offen offset:{2048*(k&1)} sc1")
    a("s_waitcnt vmcnt(0)")
    for k in range(8): a(f"v_xor_b32 v{81+2*k}, s7, v{81+2*k}")
    a("v_or3_b32 v81, v81, v83, v85\nv_or3_b32 v87, v87, v89, v91\nv_or3_b32 v81, v81, v93, v95\nv_or_b32 v81, v81, v87\nv_cmp_ne_u32 vcc, 0, v81")
    spin_end(L, qsleep)
    a("v_add_f32 v80, v80, v84\nv_add_f32 v82, v82, v86\nv_add_f32 v88, v88, v92\nv_add_f32 v90, v90, v94\nv_add_f32 v80, v80, v88\nv_add_f32 v82, v82, v90")
    a("v_mov_b32 v81, v80\nv_mov_b32 v83, v82\nv_permlane32_swap_b32 v80, v81\nv_permlane32_swap_b32 v82, v83\nv_add_f32 v80, v80, v81\nv_add_f32 v82, v82, v83")
    a(f"v_cvt_pk_bf16_f32 v80, v80, v82\nv_min_u32 v80, -2, v80\nds_write_b32 v13, v80 offset:{QF}")
    stamp(2)
    a("s_lshr_b32 s7, s73, 3\ns_cmp_lt_u32 s75, 2\ns_cbranch_scc1 L_role2")
    a("s_sub_u32 s85, s75, 2\ns_lshl_b32 s85, s85, 2\ns_add_u32 s85, s85, s7\ns_cmp_lt_u32 s85, 10\ns_cselect_b32 s84, 1, 0\ns_branch L_role")
    a("L_role2:\ns_lshl_b32 s85, s7, 3\ns_add_u32 s85, s85, s72\ns_cmp_lt_u32 s85, 27\ns_cselect_b32 s84, 2, 0\ns_lshl_b32 s85, s85, 1\ns_add_u32 s85, s85, s75")
    a("L_role:")
    a("s_cmp_lg_u32 s76, 0\ns_cbranch_scc1 L_noclr")
    a("v_and_b32 v8, 31, v1\nv_lshlrev_b32 v8, 4, v8\nv_lshrrev_b32 v9, 5, v1\nv_lshl_or_b32 v8, v9, 17, v8\ns_lshl_b32 s7, s6, 9\nv_add_u32 v8, s7, v8")
    a(f"s_mov_b32 s7, {OPA}\nbuffer_store_dwordx4 v[112:115], v8, {sWS}, s7 offen sc0 sc1")
    a("s_cmp_lg_u32 s84, 1\ns_cbranch_scc1 L_clr2")
    a("v_and_b32 v9, 1, v7\nv_mul_u32_u24 v9, 20480, v9\nv_lshl_add_u32 v8, v6, 4, v9")
    a(f"s_mul_i32 s7, s72, 2560\ns_lshl_b32 s79, s85, 8\ns_add_u32 s7, s7, s79\ns_add_u32 s7, s7, {YP}")
    a(f"s_mov_b32 exec_hi, 0\nbuffer_store_dwordx4 v[112:115], v8, {sWS}, s7 offen sc0 sc1\ns_mov_b64 exec, -1")
    a("L_clr2:")
    a("s_cmp_lg_u32 s84, 2\ns_cbranch_scc1 L_clr3")
    a("v_and_b32 v8, 31, v1\nv_lshlrev_b32 v8, 4, v8\nv_lshrrev_b32 v9, 5, v1\nv_mul_u32_u24 v9, 138240, v9\nv_add_u32 v8, v8, v9")
    a(f"s_mul_i32 s7, s85, 2560\ns_add_u32 s7, s7, {DP}")
    for k in range(5): a(f"buffer_store_dwordx4 v[112:115], v8, {sWS}, s7 offen offset:{512*k} sc0 sc1")
    a("L_clr3:")
    a(f"v_mov_b32 v8, 0\ns_waitcnt vmcnt(0)\nds_write_b32 v8, v8 offset:{CLR}")
    a("L_noclr:")
    a("s_mov_b32 s90, 0x05040100\ns_mov_b32 s91, 0x07060302")
    mask64(88, 0x0001000100010001)
    a("v_mov_b32 v61, 0")
    a("s_cmp_eq_u32 s84, 2\ns_cbranch_scc1 L_ffn\ns_cmp_eq_u32 s84, 1\ns_cbranch_scc1 L_wo")
    dump_stamps()
    a("s_endpgm")

    def proof(r):
        a(f"v_lshlrev_b32 v{r}, 7, v{r}\ns_mov_b32 s7, {ML + 64}")
        L = spin_begin("pf")
        a(f"buffer_load_dwordx2 v[64:65], v{r}, {sWS}, s7 offen sc1\ns_waitcnt vmcnt(0)\nv_cmp_ne_u32 vcc, s77, v65")
        spin_end(L, 16)
    def wait_lds(addr, val, sleep):
        L = spin_begin("own")
        a(f"ds_read_b32 v8, v61 offset:{addr}\ns_waitcnt lgkmcnt(0)\nv_cmp_ne_u32 vcc, {val}, v8")
        spin_end(L, sleep)
    def staged(nbatch, nld, win, load_fn, finish_fn):
        n = nbatch * nld
        done = 0
        for i in range(n + win):
            if i >= win:
                a(f"s_waitcnt vmcnt({min(n, i) - (i - win) - 1})")
                if (i - win + 1) % nld == 0: finish_fn((i - win) // nld, ((i - win) // nld) & 1)
            if i < n: load_fn(i // nld, i % nld, (i // nld) & 1)
    def gather(name, loads, regs, gate, grp):
        L = a.lab(name)
        a(f"s_mov_b32 s79, {SPIN}\ns_cmp_lg_u32 s98, 0\ns_cbranch_scc1 {L}")
        wait_lds(gate, 1, 8)
        a(f"s_mov_b32 s79, {SPIN}\n{L}_g:")
        for k, ld in enumerate(loads): a(ld + ("\ns_waitcnt vmcnt(0)" if (k + 1) % grp == 0 or k + 1 == len(loads) else ""))
        a(f"s_branch {L}_c\n{L}:")
        for ld in loads: a(ld)
        a(f"s_waitcnt vmcnt(0)\n{L}_c:")
        sent_check(regs, 8)
        a(f"s_cbranch_vccz {L}_d\ns_sub_u32 s79, s79, 1\ns_cbranch_scc1 {L}_d\ns_cmp_lg_u32 s98, 0\ns_cbranch_scc1 {L}\ns_sleep 16\ns_branch {L}_g\n{L}_d:")

    a("L_wo:")
    a("s_lshl_b32 s7, s72, 2\ns_add_u32 s7, s7, s76\ns_lshl_b32 s7, s7, 7\nv_lshl_add_u32 v8, v7, 5, s7\nv_mul_u32_u24 v8, 1280, v8")
    a("s_lshl_b32 s7, s85, 7\nv_lshl_add_u32 v9, v6, 3, s7\nv_add_u32 v2, v8, v9")
    a("s_waitcnt vmcnt(0)")
    def wo_load(k, n, slot):
        p, e = n >> 1, n & 1
        if e == 0: a(f"s_mov_b32 s7, {(2*k + p) * 2560}")
        r = 64 + slot * 8 + p * 4 + e * 2
        a(f"buffer_load_dwordx2 v[{r}:{r+1}], v2, {sWO}, s7 offen offset:{1280*e} {wpol}")
    def wo_finish(k, slot):
        for p in range(2):
            pair = 2 * k + p; r, i = pair >> 2, pair & 3; t = 64 + slot * 8 + p * 4
            for q in range(4):
                a(f"v_perm_b32 v{128 + (i*4 + q)*4 + r}, v{t + 2 + (q>>1)}, v{t + (q>>1)}, s{90 + (q&1)}")
    if 'o' not in skip: staged(8, 4, wo_w, wo_load, wo_finish)
    stamp(3)
    wait_lds(PRG, 1, 8)
    a("s_lshl_b32 s7, s72, 2\ns_add_u32 s7, s7, s76\ns_lshl_b32 s7, s7, 3\nv_and_b32 v9, 7, v1\nv_add_u32 v9, s7, v9")
    proof(9)
    a(f"s_mov_b32 s94, {OPA}")
    a("s_lshl_b32 s7, s72, 2\ns_add_u32 s7, s7, s76\ns_lshl_b32 s7, s7, 12")
    a("v_bfe_u32 v8, v1, 2, 2\nv_lshlrev_b32 v8, 10, v8\nv_lshl_or_b32 v8, v7, 7, v8\nv_and_b32 v9, 3, v1\nv_lshl_or_b32 v8, v9, 5, v8\nv_add_u32 v2, s7, v8")
    a(f"s_lshl_b32 s7, s76, 8\ns_add_u32 s7, s7, {YRED}\nv_lshl_add_u32 v3, v7, 4, s7")
    a(f"v_lshlrev_b32 v59, 4, v6\nv_add_u32 v5, {YRED}, v59")
    a(f"s_mul_i32 s95, s72, 2560\ns_lshl_b32 s7, s85, 8\ns_add_u32 s95, s95, s7\ns_add_u32 s95, s95, {YP}")
    a("s_mov_b32 s98, 0")
    a("L_wo_b:")
    stamp(4)
    gather("h1", [f"buffer_load_dwordx4 v[{64+4*k}:{67+4*k}], v2, {sWS}, s94 offen offset:{off} sc1" for k, off in enumerate((0, 16, 512, 528))], range(64, 80), PRG + 4, gg[0])
    stamp(5)
    for k in range(4): a(f"v_pk_add_f32 v[{64+2*k}:{65+2*k}], v[{64+2*k}:{65+2*k}], v[{72+2*k}:{73+2*k}]")
    for ror in (8, 4):
        for k in range(8): a(f"v_add_f32_dpp v{64+k}, v{64+k}, v{64+k} row_ror:{ror} {DPPM}")
    for r in range(4): a(f"v_cvt_pk_bf16_f32 v{72+r}, v{64+r}, v{68+r}")
    def wo_b(i):
        for r in range(4): a(f"v_mov_b32_dpp v{80+4*i+r}, v{72+r} quad_perm:[{i},{i},{i},{i}] {DPPM}")
    wo_b(0); wo_b(1)
    for i in range(4):
        for q in range(4):
            A = 128 + (i * 4 + q) * 4; D = 96 + 4 * q
            a(f"v_mfma_f32_16x16x32_bf16 v[{D}:{D+3}], v[{A}:{A+3}], v[{80+4*i}:{83+4*i}], {'0' if i == 0 else f'v[{D}:{D+3}]'}")
            if q == 0 and i < 2: wo_b(i + 2)
    a("s_mov_b64 exec, s[88:89]")
    for q in range(4): a(f"ds_write_b128 v3, v[{96+4*q}:{99+4*q}] offset:{64*q}")
    a("s_mov_b64 exec, -1\ns_cmp_lg_u32 s76, 0\ns_cbranch_scc1 L_wo_next")
    L = spin_begin("yr")
    for w in range(4): a(f"ds_read_b128 v[{64+4*w}:{67+4*w}], v5 offset:{256*w}")
    a("s_waitcnt lgkmcnt(0)"); sent_check(range(64, 80), 8); spin_end(L)
    a("v_pk_add_f32 v[64:65], v[64:65], v[68:69]\nv_pk_add_f32 v[66:67], v[66:67], v[70:71]")
    a("v_pk_add_f32 v[72:73], v[72:73], v[76:77]\nv_pk_add_f32 v[74:75], v[74:75], v[78:79]")
    a("v_pk_add_f32 v[64:65], v[64:65], v[72:73]\nv_pk_add_f32 v[66:67], v[66:67], v[74:75]")
    a(f"s_mov_b64 exec, 0xffff\nbuffer_store_dwordx4 v[64:67], v59, {sWS}, s95 offen sc0 sc1\ns_mov_b64 exec, -1")
    stamp(6)
    a("L_wo_next:")
    a("s_add_u32 s94, s94, 0x20000\ns_add_u32 s95, s95, 20480\nv_add_u32 v3, 1024, v3\nv_add_u32 v5, 1024, v5")
    a("s_add_u32 s98, s98, 1\ns_cmp_ge_u32 s98, 2\ns_cbranch_scc1 L_wo_end\ns_waitcnt vmcnt(0)")
    wait_lds(CNT + 4, 3, 2)
    a("s_branch L_wo_b\nL_wo_end:")
    dump_stamps()
    a("s_endpgm")

    a("L_ffn:")
    def rowbase(d, q, t):
        a(f"v_lshrrev_b32 v{t}, 4, v{q}\nv_bfe_u32 v{d}, v{q}, 2, 2\nv_lshl_or_b32 v{d}, v{t}, 6, v{d}\nv_and_b32 v{t}, 3, v{q}\nv_lshl_or_b32 v{d}, v{t}, 4, v{d}")
    a("s_mul_i32 s7, s76, 40\nv_mul_u32_u24 v12, 10, v7\nv_add_u32 v12, s7, v12")
    a("s_lshl_b32 s7, s85, 6\nv_lshl_add_u32 v13, v6, 2, s7")
    a("s_waitcnt vmcnt(0)")
    a("s_mul_i32 s99, s76, 3\ns_cmp_eq_u32 s76, 3\ns_subb_u32 s99, s99, 0")
    a("s_lshl_b32 s7, s85, 5\nv_lshl_add_u32 v8, v7, 3, s7\nv_mul_u32_u24 v8, 1280, v8\ns_lshl_b32 s7, s99, 7\nv_lshl_add_u32 v9, v6, 3, s7\nv_add_u32 v2, v8, v9")
    for r in range(1, 4): a(f"s_mov_b32 s{80+r}, {r * 2560}")
    def dn_stage(k0, nb):
        def ld(k, e, slot):
            r = 64 + slot * 16 + 2 * e
            a(f"buffer_load_dwordx2 v[{r}:{r+1}], v2, {sWD}, {'0' if e < 2 else f's{80+(e>>1)}'} offen offset:{(e&1)*1280 + (k0+k)*128} {wpol}")
        def fin(k, slot):
            for q in range(4):
                for r in range(4):
                    t = 64 + slot * 16 + 4 * r + (q >> 1)
                    a(f"v_perm_b32 v{208 + ((k0+k)*4 + q)*4 + r}, v{t+2}, v{t}, s{90+(q&1)}")
        staged(nb, 8, dn_w, ld, fin)
    if 'd' not in skip:
        dn_stage(0, 2)
        a("s_cmp_ge_u32 s76, 2\ns_cbranch_scc1 L_dn2")
        dn_stage(2, 1)
        a("L_dn2:")
    for r in range(1, 4): a(f"s_mov_b32 s{80+r}, {r * 13824}")
    a("s_mov_b32 s80, 3456\ns_waitcnt vmcnt(0)")
    def gu_load(k, n, slot):
        m, r = n >> 2, n & 3
        if n == 0:
            a(f"v_add_u32 v8, {k}, v12"); rowbase(9, 8, 10); a("v_mad_u32_u24 v9, v9, s80, v13")
        a(f"buffer_load_dword v{64 + slot*8 + n}, v9, {sWU if m else sWG}, {'0' if r == 0 else f's{80+r}'} offen {wpol2}")
    def gu_finish(k, slot):
        i, half = k >> 1, k & 1
        for m in range(2):
            for par in range(2):
                for rr in range(2):
                    t = 64 + slot * 8 + m * 4 + 2 * rr
                    a(f"v_perm_b32 v{128 + (i*4 + m*2 + par)*4 + 2*half + rr}, v{t+1}, v{t}, s{90+par}")
    if 'g' not in skip: staged(10, 8, gu_w, gu_load, gu_finish)
    stamp(3)
    wait_lds(PRG, 1, 8)
    a("s_mul_i32 s7, s76, 5\ns_lshr_b32 s7, s7, 1\nv_lshrrev_b32 v8, 3, v1\nv_min_u32 v8, 2, v8\nv_add_u32 v8, s7, v8")
    a("v_and_b32 v9, 3, v8\nv_lshrrev_b32 v8, 2, v8\nv_lshl_add_u32 v8, v9, 3, v8\nv_and_b32 v9, 7, v1\nv_lshl_add_u32 v8, v9, 5, v8\nv_add_u32 v44, 2, v8")
    proof(44)
    a("s_cmp_lg_u32 s76, 0\ns_cbranch_scc1 L_pf2\ns_cmp_ge_u32 s85, 20\ns_cbranch_scc1 L_pf2")
    a("v_min_u32 v8, 53, v1\nv_bfe_u32 v9, v8, 1, 3\nv_lshrrev_b32 v10, 4, v8\nv_and_b32 v8, 1, v8\nv_lshl_add_u32 v8, v10, 3, v8\nv_lshl_add_u32 v44, v9, 5, v8")
    proof(44)
    a("L_pf2:")
    a("v_add_u32 v8, v12, v6"); rowbase(9, 8, 10)
    a(f"v_cmp_gt_u32 vcc, 10, v6\ns_mov_b64 s[86:87], vcc\nv_mov_b32 v10, {hx(OOB)}")
    a("v_lshlrev_b32 v2, 4, v8\nv_cndmask_b32 v2, v10, v2, vcc")
    a("v_lshlrev_b32 v3, 1, v9\nv_cndmask_b32 v3, v10, v3, vcc")
    a(f"v_lshlrev_b32 v5, 2, v9\nv_add_u32 v5, {HTAB}, v5")
    a(f"s_lshl_b32 s7, s76, 5\ns_add_u32 s7, s7, {STAT}\nv_lshl_add_u32 v50, v7, 3, s7")
    a(f"v_lshlrev_b32 v51, 3, v6\nv_add_u32 v51, {STAT}, v51")
    a(f"s_lshl_b32 s7, s76, 8\ns_add_u32 s7, s7, {GRED}\nv_lshl_add_u32 v52, v7, 4, s7")
    a(f"v_and_b32 v8, 1, v1\nv_lshlrev_b32 v8, 6, v8\nv_lshl_or_b32 v8, v7, 4, v8\nv_bfe_u32 v9, v1, 1, 2\nv_lshl_or_b32 v8, v9, 2, v8\nv_add_u32 v53, {GRED}, v8")
    a("s_lshl_b32 s7, s99, 8\nv_lshl_add_u32 v54, v7, 6, s7\nv_lshl_add_u32 v54, v6, 4, v54")
    for q in range(4): a(f"v_and_b32 v8, 3, v1\nv_cmp_eq_u32 vcc, {q}, v8\nv_cndmask_b32 v{12+q}, 0, -1, vcc")
    a(f"s_mul_i32 s95, s85, 2560\ns_add_u32 s95, s95, {DP}")
    a("v_lshrrev_b32 v8, 3, v1\nv_mul_u32_u24 v9, 2560, v8\nv_and_b32 v11, 7, v1\nv_lshl_add_u32 v55, v11, 4, v9")
    a("s_lshl_b32 s7, s85, 7\nv_add_u32 v55, s7, v55\nv_cmp_gt_u32 vcc, 6, v8\nv_cndmask_b32 v56, v10, v55, vcc")
    a("v_and_b32 v8, 3, v1\nv_bfe_u32 v9, v1, 2, 1\nv_lshl_or_b32 v8, v9, 4, v8\nv_bfe_u32 v9, v1, 4, 1\nv_lshl_or_b32 v8, v9, 3, v8\nv_bfe_u32 v9, v1, 5, 1\nv_lshl_or_b32 v8, v9, 2, v8")
    a(f"s_lshl_b32 s7, s85, 5\nv_add_u32 v8, s7, v8\nv_lshlrev_b32 v57, 1, v8\nv_lshlrev_b32 v58, 2, v8\nv_add_u32 v58, {HTAB}, v58")
    a(f"s_mov_b32 s98, 0\ns_mov_b32 s94, {YP}\ns_mov_b32 s96, {DP}\ns_mov_b32 s97, 0")
    c1 = -2.0 * 0.7978845608028654 * 1.4426950408889634
    a(f"s_mov_b32 s100, {hx(f2u(c1 * 0.044715))}\nv_mov_b32 v59, {hx(f2u(c1))}")
    mask64(4, 0x00FF00FF00FF00FF); mask64(0, 0x000F000F000F000F)
    a("L_ffn_b:")
    for r in range(4): a(f"buffer_load_ushort v{44+r}, v3, {sX}, s97 offen offset:{8*r}")
    for k in range(1, 4): a(f"s_add_u32 s{80+k}, s94, {5120*k}")
    a("s_waitcnt vmcnt(0)")
    for r in range(4): a(f"v_lshlrev_b32 v{44+r}, 16, v{44+r}")
    a("s_cmp_eq_u32 s98, 0\ns_cbranch_scc1 L_ffn_go")
    wait_lds(CNT + 4, 3, 2)
    a("L_ffn_go:")
    stamp(4)
    gather("h2", [f"buffer_load_dwordx4 v[{64+4*k}:{67+4*k}], v2, {sWS}, {'s94' if k < 2 else f's{80+(k>>1)}'} offen offset:{2560*(k&1)} sc1" for k in range(8)], range(64, 96), PRG + 8, gg[1])
    stamp(5)
    for st in (16, 8, 4):
        for k in range(0, st, 2): a(f"v_pk_add_f32 v[{64+k}:{65+k}], v[{64+k}:{65+k}], v[{64+st+k}:{65+st+k}]")
    a("v_cvt_pk_bf16_f32 v68, v64, v65\nv_cvt_pk_bf16_f32 v69, v66, v67")
    a("v_lshlrev_b32 v64, 16, v68\nv_and_b32 v65, 0xffff0000, v68\nv_lshlrev_b32 v66, 16, v69\nv_and_b32 v67, 0xffff0000, v69")
    a("v_pk_add_f32 v[64:65], v[64:65], v[44:45]\nv_pk_add_f32 v[66:67], v[66:67], v[46:47]")
    a("v_cvt_pk_bf16_f32 v68, v64, v65\nv_cvt_pk_bf16_f32 v69, v66, v67")
    a("v_lshlrev_b32 v64, 16, v68\nv_and_b32 v65, 0xffff0000, v68\nv_lshlrev_b32 v66, 16, v69\nv_and_b32 v67, 0xffff0000, v69")
    a("v_pk_add_f32 v[70:71], v[64:65], v[66:67]\nv_pk_mul_f32 v[72:73], v[64:65], v[64:65]\nv_add_f32 v70, v70, v71")
    a("v_fmac_f32 v72, v66, v66\nv_fmac_f32 v73, v67, v67\nv_add_f32 v71, v72, v73")
    for k in (8, 4, 2, 1):
        a(f"v_add_f32_dpp v70, v70, v70 row_ror:{k} {DPPM}\nv_add_f32_dpp v71, v71, v71 row_ror:{k} {DPPM}")
    a("s_mov_b64 exec, s[88:89]\nds_write_b64 v50, v[70:71]\ns_mov_b64 exec, s[86:87]")
    for r in range(4): a(f"ds_write_b32 v5, v{64+r} offset:{16*r}")
    a("s_mov_b64 exec, -1")
    L = spin_begin("st")
    a("ds_read_b64 v[70:71], v51\ns_waitcnt lgkmcnt(0)"); sent_check((70, 71), 8); spin_end(L)
    for k in (8, 4, 2, 1):
        a(f"v_add_f32_dpp v70, v70, v70 row_ror:{k} {DPPM}\nv_add_f32_dpp v71, v71, v71 row_ror:{k} {DPPM}")
    a("v_mul_f32 v70, s92, v70\nv_mul_f32 v71, s92, v71\nv_fma_f32 v71, -v70, v70, v71\nv_max_f32 v71, 0, v71")
    ln_finish(70, 71)
    for r in range(4): a(f"v_sub_f32 v{64+r}, v{64+r}, v70")
    a("v_cvt_pk_bf16_f32 v68, v64, v65\nv_cvt_pk_bf16_f32 v69, v66, v67")
    a("v_lshlrev_b32 v64, 16, v68\nv_and_b32 v65, 0xffff0000, v68\nv_lshlrev_b32 v66, 16, v69\nv_and_b32 v67, 0xffff0000, v69")
    for r in range(4): a(f"v_mul_f32 v{64+r}, v{64+r}, v71")
    a("v_cvt_pk_bf16_f32 v68, v64, v65\nv_cvt_pk_bf16_f32 v69, v66, v67")
    def gu_b(i):
        for r in range(4): a(f"v_mov_b32_dpp v{72+4*i+r}, v{68+(r&1)} row_newbcast:{2*i+(r>>1)} {DPPM}")
    gu_b(0); gu_b(1)
    for i in range(5):
        for q in range(4):
            A = 128 + (i * 4 + q) * 4; D = 96 + 4 * q
            a(f"v_mfma_f32_16x16x32_bf16 v[{D}:{D+3}], v[{A}:{A+3}], v[{72+4*i}:{75+4*i}], {'0' if i == 0 else f'v[{D}:{D+3}]'}")
            if q == 0 and i < 3: gu_b(i + 2)
    a("s_mov_b64 exec, s[88:89]")
    for q in range(4): a(f"ds_write_b128 v52, v[{96+4*q}:{99+4*q}] offset:{64*q}")
    a("s_mov_b64 exec, -1")
    stamp(6)
    L = spin_begin("gr")
    for w in range(4): a(f"ds_read2_b32 v[{64+2*w}:{65+2*w}], v53 offset0:{64*w} offset1:{64*w+32}")
    a("s_waitcnt lgkmcnt(0)"); sent_check(range(64, 72), 8); spin_end(L)
    a("ds_read_b32 v48, v58")
    a("v_pk_add_f32 v[64:65], v[64:65], v[66:67]\nv_pk_add_f32 v[68:69], v[68:69], v[70:71]\nv_pk_add_f32 v[64:65], v[64:65], v[68:69]")
    a("v_cvt_pk_bf16_f32 v66, v64, v65\nv_lshlrev_b32 v64, 16, v66\nv_and_b32 v65, 0xffff0000, v66")
    a("v_mul_f32 v66, v64, v64\nv_fma_f32 v66, v66, s100, v59\nv_mul_f32 v66, v66, v64\nv_exp_f32 v66, v66\nv_add_f32 v66, 1.0, v66\nv_rcp_f32 v66, v66\nv_mul_f32 v64, v64, v66")
    bfr(64, 64)
    a(f"v_mul_f32 v64, v64, v65\nv_mov_b32_dpp v65, v64 quad_perm:[1,1,3,3] {DPPM}\nv_cvt_pk_bf16_f32 v64, v64, v65")
    def dn_b(q):
        for r in range(4): a(f"v_and_b32_dpp v{68+4*q+r}, v64, v{12+q} row_newbcast:{2*r} {DPPM}")
    dn_b(0); dn_b(1)
    for q in range(4):
        for k in range(3):
            A = 208 + (k * 4 + q) * 4; D = 84 + 4 * k
            a(f"v_mfma_f32_16x16x32_bf16 v[{D}:{D+3}], v[{A}:{A+3}], v[{68+4*q}:{71+4*q}], {'0' if q == 0 else f'v[{D}:{D+3}]'}")
            if k == 0 and q < 2: dn_b(q + 2)
    a("s_cmp_ge_u32 s76, 2\ns_mov_b64 exec, s[0:1]")
    for k in range(3):
        if k == 2: a("s_cbranch_scc1 L_dn3")
        a(f"buffer_store_dwordx4 v[{84+4*k}:{87+4*k}], v54, {sWS}, s95 offen offset:{256*k} sc0 sc1")
    a("L_dn3:\ns_mov_b64 exec, -1")
    stamp(7)
    a("s_cmp_lg_u32 s76, 0\ns_cbranch_scc1 L_ffn_next\ns_cmp_ge_u32 s85, 20\ns_cbranch_scc1 L_ffn_next")
    if pre3: a(f"s_sleep {pre3}")
    gather("h3", [(f"s_add_u32 s7, s96, {20480*k}\n" if k else "") + f"buffer_load_dwordx4 v[{16+4*k}:{19+4*k}], {'v56' if k == 6 else 'v55'}, {sWS}, {'s7' if k else 's96'} offen sc1" for k in range(7)], range(16, 44), PRG + 12, gg[2])
    stamp(8)
    for (d, s) in ((16, 20), (24, 28), (32, 36), (16, 24), (32, 40), (16, 32)):
        a(f"v_pk_add_f32 v[{d}:{d+1}], v[{d}:{d+1}], v[{s}:{s+1}]\nv_pk_add_f32 v[{d+2}:{d+3}], v[{d+2}:{d+3}], v[{s+2}:{s+3}]")
    a("v_permlane32_swap_b32 v16, v17\nv_permlane32_swap_b32 v18, v19\nv_add_f32 v16, v16, v17\nv_add_f32 v18, v18, v19")
    a(f"v_permlane16_swap_b32 v16, v18\nv_add_f32 v16, v16, v18\nv_add_f32_dpp v16, v16, v16 row_ror:8 {DPPM}")
    bfr(16, 16)
    a("s_waitcnt lgkmcnt(0)\nv_add_f32 v16, v16, v48\nv_cvt_pk_bf16_f32 v16, v16, v16")
    a(f"s_mov_b64 exec, s[4:5]\nbuffer_store_short v16, v57, {sOUT}, s97 offen\ns_mov_b64 exec, -1")
    stamp(9)
    a("s_cmp_lg_u32 s85, 0\ns_cbranch_scc1 L_ffn_next\ns_cmp_lg_u32 s98, 1\ns_cbranch_scc1 L_ffn_next")
    a(f"v_mov_b32 v8, s77\ns_mov_b64 exec, 1\nbuffer_store_dword v8, v61, {sWS}, 0 offen\ns_mov_b64 exec, -1")
    a("L_ffn_next:")
    a("s_add_u32 s94, s94, 20480\ns_add_u32 s95, s95, 138240\ns_add_u32 s96, s96, 138240\ns_add_u32 s97, s97, 1280")
    a("v_add_u32 v5, 2560, v5\nv_add_u32 v58, 2560, v58\nv_add_u32 v50, 128, v50\nv_add_u32 v51, 128, v51")
    a("v_add_u32 v52, 1024, v52\nv_add_u32 v53, 1024, v53")
    a("s_add_u32 s98, s98, 1\ns_cmp_lt_u32 s98, 2\ns_cbranch_scc1 L_ffn_b")
    dump_stamps()
    a("L_exit:\ns_endpgm\nL_code_end:")

    hdr = open("cdna_kernels/" + NAME + ".s.ref").read().split("; Override launch")[0]
    out = [hdr.rstrip(), f"; @launch grid=(256,1,1) block=(512,1,1) lds={LDSZ}", '.amdgcn_target "amdgcn-amd-amdhsa--gfx950"']
    out += a.finish()
    out.append(f""".section .rodata,"a"
.p2align 6
.amdhsa_kernel {kname}
  .amdhsa_next_free_vgpr 256
  .amdhsa_next_free_sgpr 102
  .amdhsa_accum_offset 256
  .amdhsa_group_segment_fixed_size 0
  .amdhsa_kernarg_size 96
  .amdhsa_user_sgpr_count 2
  .amdhsa_user_sgpr_kernarg_segment_ptr 1
  .amdhsa_system_sgpr_workgroup_id_x 1
  .amdhsa_float_denorm_mode_32 3
.end_amdhsa_kernel""")
    return "\n".join(out) + "\n"

if __name__ == "__main__":
    kw = eval("dict(" + (sys.argv[2] if len(sys.argv) > 2 else "") + ")")
    open(sys.argv[1], "w").write(gen(**kw))
```

```python
import sys, struct
from asmlib import Asm

NAME = "sequential_preLN__mha_block_cached__geglu_ffn__decode"
def f2u(x): return struct.unpack("<I", struct.pack("<f", x))[0]
def hx(x): return "0x%08x" % (x & 0xffffffff)

REF = 0x1000
ML, QP, OPA, OPB, YP, DP, DIAG, QPB, WSZ = 0x170000, 0x10000, 0x90000, 0xD0000, 0x110000, 0x120000, 0x1a0000, 0x200000, 0x280000
OOB = 0x7ff00000
PRG, MCNT, MRED = 4640, 4616, 4672
QRED, QF, CNT, CLR, STAT, ORED, YRED, GRED, HTAB, LDSZ = 0, 4096, 4608, 4624, 4864, 5120, 9216, 11264, 13312, 24576
sK, sV, sWS, sX, sWQ, sWO, sWG, sWU, sWD, sOUT = [f"s[{n}:{n+3}]" for n in range(32, 72, 4)]
DPPM = "row_mask:0xf bank_mask:0xf"
LOG2E = f2u(1.4426950408889634)
SPIN = 0x10000

def gen(depth=5, taildepth=8, tailfrom=246, P=39, budget=56, diag=False, pre3=10, wthr=2, fast=True, ml0=124, ml1=194, kvpol='nt', wpol='nt', wpol2='nt', skip='', gates=(150, 222, 258, 271), qsleep=2, qpre=24, wo_w=2, gu_w=4, dn_w=4, cal=0, ctl=None, E=24, dl=11, dw=12, nref=8, gb=20, gs=24, bias=0, first=1, gg=(4, 8, 7), hrot=0, touch=0, qB=6, probe=None):
    a = Asm()
    kname = NAME + "_kernel"
    if probe: diag = True
    def stamp(k):
        if diag and k == 0: a("s_mov_b32 s8, s100")
        elif diag: a(f"s_memrealtime s[{8+2*k}:{9+2*k}]")
    def dump_stamps():
        if not diag: return
        a("s_waitcnt lgkmcnt(0)")
        a("s_mov_b64 exec, 1")
        a("s_lshl_b32 s90, s6, 3\ns_add_u32 s90, s90, s3\ns_lshl_b32 s90, s90, 6")
        a(f"s_add_u32 s90, s90, {DIAG}")
        a("v_mov_b32 v5, 0")
        for k in range(11):
            a(f"v_mov_b32 v{112+k}, s{8+2*k}")
        a("v_mov_b32 v123, s78")
        for q in range(3):
            a(f"buffer_store_dwordx4 v[{112+4*q}:{115+4*q}], v5, {sWS}, s90 offen offset:{16*q} sc0 sc1")
    def srd(n, p, size):
        a(f"s_mov_b32 s{n}, s{p}\ns_mov_b32 s{n+1}, s{p+1}\ns_mov_b32 s{n+2}, {hx(size)}\ns_mov_b32 s{n+3}, 0x20000")
    def bfr(d, s):
        a(f"v_cvt_pk_bf16_f32 v{d}, v{s}, v{s}\nv_and_b32 v{d}, 0xffff0000, v{d}")
    def mask64(n, v):
        a(f"s_mov_b32 s{n}, {hx(v)}\ns_mov_b32 s{n+1}, {hx(v >> 32)}")
    def spin_begin(base):
        L = a.lab(base); a(f"s_mov_b32 s79, {SPIN}"); a(L + ":"); return L
    def spin_end(L, sleep=0):
        Ld = L + "_d"
        a(f"s_cbranch_vccz {Ld}")
        if sleep == "first":
            a(f"s_cmp_lg_u32 s98, 0\ns_cbranch_scc1 {L}_n\ns_sleep 8\n{L}_n:")
        elif sleep: a(f"s_sleep {sleep}")
        a(f"s_sub_u32 s79, s79, 1\ns_cbranch_scc0 {L}")
        a(Ld + ":")
    def sent_check(regs, t):
        regs = list(regs)
        if len(regs) == 1:
            a(f"v_cmp_eq_u32 vcc, -1, v{regs[0]}"); return
        first = True
        while regs:
            if first:
                if len(regs) >= 3: a(f"v_max3_u32 v{t}, v{regs[0]}, v{regs[1]}, v{regs[2]}"); regs = regs[3:]
                else: a(f"v_max_u32 v{t}, v{regs[0]}, v{regs[1]}"); regs = regs[2:]
                first = False
            elif len(regs) >= 2: a(f"v_max3_u32 v{t}, v{t}, v{regs[0]}, v{regs[1]}"); regs = regs[2:]
            else: a(f"v_max_u32 v{t}, v{t}, v{regs[0]}"); regs = regs[1:]
        a(f"v_cmp_eq_u32 vcc, -1, v{t}")
    def rows_allreduce(op, v, t, both=True):
        a(f"v_mov_b32 v{t}, v{v}\nv_permlane16_swap_b32 v{v}, v{t}\n{op} v{v}, v{v}, v{t}")
        if both: a(f"v_mov_b32 v{t}, v{v}\nv_permlane32_swap_b32 v{v}, v{t}\n{op} v{v}, v{v}, v{t}")
    def half_masks(first, esrc, t0):
        a(f"v_and_b32 v{t0}, 1, v{esrc}\nv_lshlrev_b32 v{t0}, 4, v{t0}\nv_mov_b32 v{t0+1}, 0xffff\nv_lshlrev_b32 v{t0}, v{t0}, v{t0+1}")
        a(f"v_lshrrev_b32 v{t0+1}, 1, v{esrc}")
        for r in range(4):
            a(f"v_cmp_eq_u32 vcc, {r}, v{t0+1}\nv_cndmask_b32 v{first+r}, 0, v{t0}, vcc")

    a(f".text\n.globl {kname}\n.p2align 8\n.type {kname},@function\n{kname}:")
    a("s_cmp_ge_u32 s2, 256\ns_cbranch_scc1 L_exit")
    if cal or diag: a("s_memrealtime s[100:101]")
    a("s_load_dwordx16 s[8:23], s[0:1], 0\ns_load_dwordx8 s[24:31], s[0:1], 64")
    a("s_getpc_b64 s[4:5]\nL_pc:")
    a("v_lshlrev_b32 v4, 7, v0\nv_min_u32 v4, L_code_end-L_pc-4, v4")
    a("global_load_dword v4, v4, s[4:5]")
    a("v_lshrrev_b32 v5, 6, v0\nv_and_b32 v1, 63, v0\nv_readfirstlane_b32 s3, v5")
    a("s_and_b32 s72, s2, 7\ns_lshr_b32 s73, s2, 3\ns_lshl_b32 s6, s72, 5\ns_add_u32 s6, s6, s73")
    a("s_lshr_b32 s74, s6, 3\ns_and_b32 s75, s6, 7\ns_and_b32 s76, s3, 3")
    a("s_getreg_b32 s78, hwreg(HW_REG_XCC_ID, 0, 4)")
    a("v_lshlrev_b32 v5, 4, v0\nv_mov_b32 v112, -1\nv_mov_b32 v113, -1\nv_mov_b32 v114, -1\nv_mov_b32 v115, -1")
    for k in range(LDSZ // 8192):
        a(f"ds_write_b128 v5, v[112:115] offset:{k*8192}")
    a("v_and_b32 v6, 15, v1\nv_lshrrev_b32 v7, 4, v1")
    a("s_cmp_lt_u32 s3, 4\ns_cbranch_scc1 L_aux")

    a("s_setprio 2")
    a("v_bfe_u32 v8, v1, 2, 2\nv_lshlrev_b32 v8, 8, v8\nv_lshl_or_b32 v8, v7, 6, v8\nv_and_b32 v9, 3, v1\nv_lshl_or_b32 v2, v9, 4, v8")
    a("s_cmp_lt_u32 s75, 2\ns_cselect_b32 s71, 0x80000000, 0\ns_lshl_b32 s70, s75, 18\ns_lshr_b32 s72, s75, 2\ns_lshl_b32 s72, s72, 18")
    a("s_and_b32 s79, s75, 3\ns_mul_i32 s79, s79, 20480\ns_add_u32 s72, s72, s79\ns_lshl_b32 s7, s74, 21\ns_lshl_b32 s79, s76, 10\ns_add_u32 s7, s7, s79")
    a("v_add_u32 v2, s7, v2\nv_lshl_add_u32 v3, v1, 4, s7")
    a("s_waitcnt lgkmcnt(0)")
    srd(32, 10, 1 << 27); srd(36, 12, 1 << 27); srd(40, 30, WSZ)
    a("s_load_dword s77, s[30:31], 0")
    RING, NB, PH, NG = 100, 39, 68, 17
    BK, DK, ACC, BV, MLB, MLS, RMAX, S, NINF = 16, 32, 40, 44, 52, 56, 60, [64, 81], 98
    vm = ["code"]
    landed = [-1]
    def wait_vm(idx):
        if idx > landed[0]:
            a(f"s_waitcnt vmcnt({len(vm) - 1 - idx})"); landed[0] = idx
    ld_idx = {}
    def kind(n):
        k, r = divmod(n, 17)
        if r == 16: return ("hole", k)
        m = 16 * k + r
        return ("opt" if (m & 3) == ((m >> 2) & 3) else "own", m)
    def issue(i):
        ph, n = divmod(i, PH)
        b, isv = ph & 1, ph >> 1
        kd, m = kind(n)
        so = "s73"
        if kd == "hole": a(f"s_add_u32 s73, s72, {hx((b << 26) + ((m + hrot) & 3) * 65536)}")
        else:
            a(f"s_add_u32 s7, s70, {hx(b << 26)}" if m == 0 else "s_addk_i32 s7, 0x1000")
            if kd == "opt": a("s_or_b32 s73, s7, s71")
            else: so = "s7"
        r = RING + (i % NB) * 4
        a(f"buffer_load_dwordx4 v[{r}:{r+3}], {'v3' if isv else 'v2'}, {sV if isv else sK}, {so} offen {kvpol}")
        ld_idx[i] = len(vm); vm.append(("ld", i))

    items = []
    got = set()
    def add(cost, needs, fn): items.append((cost, needs, fn))
    def it_setup():
        half_masks(10, 6, 8)
        for t in range(4): mask64(80 + 2 * t, 0x000F000F000F000F << (4 * t))
        mask64(88, 0x00FF00FF00FF00FF)
        a(f"v_and_b32 v9, 3, v1\nv_lshlrev_b32 v9, 4, v9\nv_lshl_or_b32 v14, v7, 6, v9")
        a(f"v_and_b32 v15, 31, v1\nv_lshlrev_b32 v15, 4, v15")
        a(f"v_lshl_add_u32 v9, v7, 3, v6\nv_lshlrev_b32 v9, 4, v9\ns_lshl_b32 s79, s76, 9\nv_add_u32 v62, s79, v9")
        a(f"s_lshl_b32 s79, s6, 9\nv_add_u32 v63, s79, v15")
        a(f"v_mov_b32 v61, 0\nv_mov_b32 v5, 1\nv_mov_b32 v{NINF}, 0xff800000")
        a("s_waitcnt lgkmcnt(0)")
        a("s_mul_i32 s77, s77, 1664525\ns_add_u32 s77, s77, 1013904223")
        a(f"s_lshr_b32 s90, s6, 5\ns_lshl_b32 s90, s90, 12\ns_add_u32 s90, s90, {ML}")
        a(f"s_lshl_b32 s91, s6, 7\ns_add_u32 s91, s91, {ML}")
        a("v_bfe_u32 v9, v1, 2, 3\nv_lshlrev_b32 v9, 7, v9\nv_and_b32 v4, 3, v1\nv_lshl_or_b32 v0, v4, 4, v9\ns_and_b32 s79, s74, 3\ns_lshl_b32 s79, s79, 10\nv_add_u32 v0, s79, v0")
        a("v_and_b32 v8, 31, v1\nv_min_u32 v8, 9, v8\nv_and_b32 v9, 3, v8\nv_lshrrev_b32 v8, 2, v8\nv_lshl_add_u32 v8, v9, 3, v8\nv_lshlrev_b32 v8, 7, v8\nv_add_u32 v8, 320, v8")
        a("v_cmp_gt_u32 vcc, 32, v1\nv_cndmask_b32 v99, v8, v0, vcc\nv_lshlrev_b32 v4, 3, v4")
        a("s_lshl_b32 s99, s76, 3\ns_ashr_i32 s98, s71, 31")
        if ctl:
            a(f"s_sub_u32 s65, s2, {256 - nref}\ns_cselect_b32 s64, 0, 1\ns_cmp_eq_u32 s76, 0\ns_cselect_b32 s64, s64, 0\ns_mul_i32 s65, s65, 4352\ns_add_u32 s65, s65, {REF}")
            a(f"s_add_u32 s66, s40, {REF}\ns_addc_u32 s67, s41, 0\ns_mov_b32 s62, 0\ns_mov_b32 s63, 0")
        a(f"s_mov_b32 s92, {hx(f2u(128 ** -0.5))}\ns_mov_b32 s93, {hx(LOG2E)}")
    def it_qfrag(b):
        def fn():
            L = spin_begin("q")
            a(f"ds_read_b128 v[{BV}:{BV+3}], v14 offset:{QF + b * 256}\ns_waitcnt lgkmcnt(0)")
            sent_check(range(BV, BV + 4), BV + 4)
            spin_end(L, 1)
            if b == 0: stamp(1)
            for t in range(4):
                for r in range(4):
                    a(f"v_cndmask_b32 v{BK + 4*t + r}, 0, v{BV + r}, s[{80+2*t}:{81+2*t}]")
        return fn
    def it_k(i):
        b, n = divmod(i, PH); u, t = n >> 2, n & 3
        def fn():
            r = RING + (i % NB) * 4; d = DK + (u & 1) * 4
            a(f"v_mfma_f32_16x16x32_bf16 v[{d}:{d+3}], v[{r}:{r+3}], v[{BK+4*t}:{BK+4*t+3}], {'0' if t == 0 else f'v[{d}:{d+3}]'}")
        return fn
    def it_kred(b, u):
        def fn():
            d = DK + (u & 1) * 4; s = S[b] + u
            a(f"v_mov_b32_dpp v{s}, v{d} quad_perm:[0,0,0,0] {DPPM}")
            for r in range(1, 4):
                a(f"v_add_f32_dpp v{s}, v{d+r}, v{s} quad_perm:[{r},{r},{r},{r}] {DPPM}")
            bfr(s, s); a(f"v_mul_f32 v{s}, s92, v{s}"); bfr(s, s)
            om = sum(0x000F000F << (4 * t) for t in range(4) if kind(4 * u + t)[0] == "opt")
            if om: a(f"s_and_b32 s0, s98, {hx(om)}\ns_mov_b32 s1, s0\nv_cndmask_b32 v{s}, v{s}, v{NINF}, s[0:1]")
            a(f"v_mov_b32 v{RMAX}, v{s}" if u == 0 else f"v_max_f32 v{RMAX}, v{RMAX}, v{s}")
        return fn
    def it_max(b):
        def fn():
            a(f"v_max_f32_dpp v{RMAX}, v{RMAX}, v{RMAX} row_ror:8 {DPPM}\nv_max_f32_dpp v{RMAX}, v{RMAX}, v{RMAX} row_ror:4 {DPPM}")
            rows_allreduce("v_max_f32", RMAX, BV)
            a(f"v_mov_b32 v{MLS}, v{RMAX}\nv_mov_b32 v{MLS+1}, 0")
        return fn
    def it_sum(b, u0):
        def fn():
            n = min(4, NG - u0)
            for u in range(n): a(f"v_sub_f32 v{BV+u}, v{S[b]+u0+u}, v{MLS}")
            for u in range(n): a(f"v_mul_f32 v{BV+u}, s93, v{BV+u}")
            for u in range(n): a(f"v_exp_f32 v{BV+u}, v{BV+u}")
            for u in range(n): a(f"v_add_f32 v{MLS+1}, v{MLS+1}, v{BV+u}")
        return fn
    def it_mlpub(b):
        def fn():
            l = MLS + 1
            Ls = a.lab("mlast")
            a(f"v_add_f32_dpp v{l}, v{l}, v{l} row_ror:8 {DPPM}\nv_add_f32_dpp v{l}, v{l}, v{l} row_ror:4 {DPPM}")
            rows_allreduce("v_add_f32", l, BV)
            a(f"v_mov_b32 v8, s99\ns_mov_b64 exec, 1\nds_write_b64 v8, v[{MLS}:{MLS+1}] offset:{MRED + 32*b}")
            a(f"ds_add_rtn_u32 v8, v61, v5 offset:{MCNT + 4*b}\ns_mov_b64 exec, -1")
            a(f"ds_read_b64 v[{BV}:{BV+1}], v4 offset:{MRED + 32*b}\ns_waitcnt lgkmcnt(0)\nv_readfirstlane_b32 s79, v8")
            a(f"s_cmp_lg_u32 s79, 2\ns_cbranch_scc1 {Ls}")
            if b == 0:
                L = spin_begin("clr")
                a(f"ds_read_b32 v8, v61 offset:{CLR}\ns_waitcnt lgkmcnt(0)\nv_cmp_eq_u32 vcc, -1, v8")
                spin_end(L, 2)
            a(f"v_mov_b32 v8, s78\nv_cndmask_b32 v{MLS}, v8, v{BV}, s[80:81]\nv_mov_b32 v{MLS+1}, s77\nv_mov_b32 v{MLS+2}, v{BV+1}\nv_mov_b32 v{MLS+3}, s77")
            a(f"s_add_u32 s79, s91, {b * 32768}\ns_mov_b64 exec, 0xff")
            a(f"buffer_store_dwordx4 v[{MLS}:{MLS+3}], v15, {sWS}, s79 offen sc0 sc1\ns_mov_b64 exec, -1")
            a(Ls + ":")
        return fn
    def ml_issue(b):
        a(f"s_add_u32 s94, s90, {b * 32768}")
        a(f"buffer_load_dwordx4 v[{MLB}:{MLB+3}], {'v0' if b else 'v99'}, {sWS}, s94 offen sc1")
        ld_idx[("ml", b)] = len(vm); vm.append("mlld")
    def it_mlget(b):
        def fn():
            Lok, chk = a.lab("mlok"), f"v_cmp_ne_u32 vcc, s77, v{MLB+1}\nv_cmp_ne_u32 s[96:97], s77, v{MLB+3}\ns_or_b64 vcc, vcc, s[96:97]"
            a(chk); a(f"s_cbranch_vccz {Lok}")
            L = spin_begin("ml")
            a(f"buffer_load_dwordx4 v[{MLB}:{MLB+3}], {'v0' if b else 'v99'}, {sWS}, s94 offen sc1\ns_waitcnt vmcnt(0)")
            a(chk); spin_end(L, 2)
            a(Lok + ":")
            got.add(b)
            if b == 0: a(f"v_cmp_ne_u32 vcc, s78, v{MLB}\ns_mov_b32 s30, {'vcc_hi' if fast else '1'}")
            M, Ls = MLB + 1, MLB + 2
            a(f"v_max_f32_dpp v{M}, v{MLB}, v{MLB} row_ror:8 {DPPM}")
            for k in (4, 2, 1): a(f"v_max_f32_dpp v{M}, v{M}, v{M} row_ror:{k} {DPPM}")
            rows_allreduce("v_max_f32", M, 8, both=False)
            a(f"v_sub_f32 v8, v{MLB}, v{M}\nv_mul_f32 v8, s93, v8\nv_exp_f32 v8, v8\nv_mul_f32 v{Ls}, v{Ls}, v8")
            for k in (8, 4, 2, 1): a(f"v_add_f32_dpp v{Ls}, v{Ls}, v{Ls} row_ror:{k} {DPPM}")
            rows_allreduce("v_add_f32", Ls, 8, both=False)
            a(f"v_rcp_f32 v{Ls}, v{Ls}\nv_readfirstlane_b32 s4, v{M}\nv_readfirstlane_b32 s5, v{Ls}")
        return fn
    def it_p(b, u0):
        def fn():
            R = [S[b] + u for u in range(u0, min(u0 + 4, NG))]
            for s in R: a(f"v_subrev_f32 v{s}, s4, v{s}")
            for s in R: a(f"v_mul_f32 v{s}, s93, v{s}")
            for s in R: a(f"v_exp_f32 v{s}, v{s}")
            for s in R: a(f"v_mul_f32 v{s}, s5, v{s}")
            for s in R: a(f"v_cvt_pk_bf16_f32 v{s}, v{s}, v{s}")
        return fn
    def v_bfrag(i):
        b, n = divmod(i - 2 * PH, PH); u, t = n >> 2, n & 3; bv = BV + (i & 1) * 4
        for r in range(4):
            a(f"v_and_b32_dpp v{bv+r}, v{S[b]+u}, v{10+r} row_newbcast:{4*t} {DPPM}")
    def v_mfma(i):
        n = i % PH; r = RING + (i % NB) * 4; bv = BV + (i & 1) * 4
        a(f"v_mfma_f32_16x16x32_bf16 v[{ACC}:{ACC+3}], v[{r}:{r+3}], v[{bv}:{bv+3}], {'0' if n == 0 else f'v[{ACC}:{ACC+3}]'}")
    def it_opub(b):
        def fn():
            Ls = a.lab("olast")
            if b == 1: stamp(2)
            a("s_mov_b64 exec, s[88:89]")
            a(f"ds_write_b128 v62, v[{ACC}:{ACC+3}] offset:{ORED + b * 2048}")
            a(f"s_mov_b64 exec, 1\nds_add_rtn_u32 v8, v61, v5 offset:{CNT + 4*b}\ns_mov_b64 exec, -1")
            for w in range(4): a(f"ds_read_b128 v[{16+4*w}:{19+4*w}], v15 offset:{ORED + b * 2048 + w * 512}")
            a(f"s_mov_b32 s95, {OPA + b * 0x20000}")
            a("s_waitcnt lgkmcnt(0)\nv_readfirstlane_b32 s79, v8")
            a("v_pk_add_f32 v[16:17], v[16:17], v[20:21]\nv_pk_add_f32 v[18:19], v[18:19], v[22:23]")
            a("v_pk_add_f32 v[24:25], v[24:25], v[28:29]\nv_pk_add_f32 v[26:27], v[26:27], v[30:31]")
            a(f"s_cmp_lg_u32 s79, 2\ns_cbranch_scc1 {Ls}")
            a("v_pk_add_f32 v[16:17], v[16:17], v[24:25]\nv_pk_add_f32 v[18:19], v[18:19], v[26:27]")
            a(f"s_mov_b32 exec_hi, 0\ns_cmp_lg_u32 s30, 0\ns_cbranch_scc1 {Ls}_far")
            a(f"buffer_store_dwordx4 v[16:19], v63, {sWS}, s95 offen\ns_branch {Ls}_e\n{Ls}_far:")
            a(f"buffer_store_dwordx4 v[16:19], v63, {sWS}, s95 offen sc0 sc1\n{Ls}_e:\ns_mov_b64 exec, -1")
            if b == 1: stamp(3)
            a(Ls + ":")
        return fn

    for b in range(2):
        add(30, None, it_qfrag(b))
        for n in range(PH):
            add(4, PH * b + n, it_k(PH * b + n))
            if n & 3 == 0 and n: add(12, None, it_kred(b, (n >> 2) - 1))
            if b == 1 and PH + n == ml0:
                add(40, ("ml", 0), it_mlget(0))
                for u0 in range(0, NG, 4): add(24, None, it_p(0, u0))
        add(16, None, it_kred(b, NG - 1)); add(20, None, it_max(b))
        for u0 in range(0, NG, 4): add(20, None, it_sum(b, u0))
        add(20, None, it_mlpub(b))
    for b in range(2):
        for n in range(PH):
            i = (2 + b) * PH + n
            add(4, None, (lambda i=i: v_bfrag(i))); add(4, i, (lambda i=i: v_mfma(i)))
            if b == 0 and i == ml1:
                add(40, ("ml", 1), it_mlget(1))
                for u0 in range(0, NG, 4): add(24, None, it_p(1, u0))
        add(40, None, it_opub(b))

    consumed = [-1]
    def run_items(bud, force=False):
        while items:
            cost, needs, fn = items[0]
            if needs is not None:
                if needs not in ld_idx: return
                if ld_idx[needs] > landed[0]:
                    if not force: return
                    wait_vm(ld_idx[needs])
            if bud <= 0 and not force: return
            items.pop(0); fn(); bud -= cost
            if isinstance(needs, int): consumed[0] = needs
    issued = 0
    step = 0
    while issued < 4 * PH:
        i = issued
        if ctl and i >= first * E + dl + dw:
            wait_vm(ld_idx[i - ctl[0]])
            n = [len(vm) - 1 - ld_idx[i - d] for d in ctl]
            go = a.lab("go")
            a(f"s_cmpk_gt_u32 s62, {i}\ns_cbranch_scc1 {go}\ns_waitcnt vmcnt({n[1]})")
            a(f"s_cmpk_le_u32 s63, {i}\ns_cbranch_scc1 {go}\ns_waitcnt vmcnt({n[2]})\n{go}:")
        else:
            d = taildepth if i >= tailfrom else depth
            if i - d >= 0: wait_vm(ld_idx[i - d])
        while consumed[0] < i - NB:
            n0 = len(items); run_items(1); assert len(items) < n0, "ring stall"
        issue(i); issued += 1
        if i == depth - 1:
            if touch:
                a(f"s_add_u32 s79, s70, {hx(1 << 26)}\ns_mov_b64 exec, 1")
                for sr, so in ((sK, "s79"), (sV, "s70"), (sV, "s79")):
                    a(f"buffer_load_dword v{RMAX}, v3, {sr}, {so} offen {kvpol}"); vm.append("touch")
                a("s_mov_b64 exec, -1")
            a("s_barrier"); wait_vm(0); it_setup(); stamp(0)
        if ctl:
            k, m = divmod(i, E)
            if k >= first and k * E + dl + dw < 4 * PH:
                if m == 0: a("s_memrealtime s[60:61]")
                if m == 1:
                    sk = a.lab("ref")
                    a(f"s_cmp_eq_u32 s64, 0\ns_cbranch_scc1 {sk}\ns_waitcnt lgkmcnt(0)\nv_mov_b32 v6, s60\nv_mov_b32 v7, s77\nv_mov_b32 v8, s60\nv_mov_b32 v9, s77\ns_mov_b64 exec, 0xff")
                    a(f"buffer_store_dwordx4 v[6:9], v15, {sWS}, s65 offen offset:{128*k} sc0 sc1\ns_mov_b64 exec, -1\n{sk}:")
                if m == dl:
                    for q in range(nref): a(f"s_load_dwordx2 s[{44+2*q}:{45+2*q}], s[66:67], {q*4352 + 128*k}")
                if m == dl + dw:
                    a(f"s_waitcnt lgkmcnt(0)\ns_mov_b32 s68, {bias * nref}")
                    for q in range(nref):
                        a(f"s_sub_u32 s69, s60, s{44+2*q}\ns_cmp_eq_u32 s{45+2*q}, s77\ns_cselect_b32 s69, s69, {-14*dl}\ns_add_u32 s68, s68, s69")
                    a(f"s_max_i32 s69, s68, 0\ns_min_u32 s69, s69, 0x4000\ns_mul_i32 s69, s69, {int(gb*655.36/nref)}\ns_lshr_b32 s69, s69, 16\ns_add_u32 s62, s69, {i+1}")
                    a(f"s_sub_i32 s69, 0, s68\ns_max_i32 s69, s69, 0\ns_min_u32 s69, s69, 0x4000\ns_mul_i32 s69, s69, {int(gs*655.36/nref)}\ns_lshr_b32 s69, s69, 16\ns_add_u32 s63, s69, {i+1}")
        for gi in [k for k, g in enumerate(gates) if g == i]:
            assert 0 in got
            a(f"s_mov_b64 exec, 1\nds_write_b32 v61, v5 offset:{PRG + 4*gi}\ns_mov_b64 exec, -1")
        if i in (34, 68, 102, 136, 170, 204, 238): stamp(3 + i // 34)
        if i == ml0: ml_issue(0)
        if i == ml1: ml_issue(1)
        if i >= P - 1: run_items(budget)
    run_items(0, force=True)
    if cal:
        a(f"L_cal:\ns_sleep 4\ns_memrealtime s[96:97]\ns_waitcnt lgkmcnt(0)\ns_sub_u32 s96, s96, s100\ns_cmp_lt_u32 s96, {cal}\ns_cbranch_scc1 L_cal")
    dump_stamps()
    a("s_endpgm")

    a("L_aux:")
    a("v_and_b32 v8, 31, v1\nv_lshlrev_b32 v8, 3, v8\nv_lshrrev_b32 v9, 5, v1\nv_mul_u32_u24 v9, 1280, v9\nv_add_u32 v2, v8, v9")
    a("s_mul_i32 s7, s75, 80\ns_mul_i32 s79, s76, 20\ns_add_u32 s7, s7, s79\nv_add_u32 v8, s7, v7")
    a("v_bfe_u32 v9, v1, 3, 1\nv_mul_u32_u24 v9, 1280, v9\nv_lshl_add_u32 v3, v8, 1, v9")
    a("s_lshl_b32 s7, s74, 8\nv_lshlrev_b32 v8, 13, v8\nv_lshl_add_u32 v9, v6, 4, s7\nv_add_u32 v5, v8, v9")
    a("s_waitcnt lgkmcnt(0)")
    srd(44, 8, 2560); srd(48, 14, 640 * 4096 * 2); srd(40, 30, WSZ)
    for i in range(5): a(f"buffer_load_dwordx2 v[{8+2*i}:{9+2*i}], v2, {sX}, 0 offen offset:{256*i}")
    for i in range(5): a(f"buffer_load_ushort v{18+i}, v3, {sX}, 0 offen offset:{8*i}")
    for i in range(5):
        a(f"s_mov_b32 s7, {i * 32768}\nbuffer_load_dwordx4 v[{24+4*i}:{27+4*i}], v5, {sWQ}, s7 offen {wpol}")
    a("s_load_dword s77, s[30:31], 0")
    srd(52, 16, 4096 * 640 * 2); srd(56, 20, 640 * 1728 * 2); srd(60, 22, 640 * 1728 * 2); srd(64, 24, 1728 * 640 * 2); srd(68, 26, 2560)
    a("s_barrier")
    a("v_and_b32 v68, 7, v1"); half_masks(64, 68, 69)
    mask64(88, 0xFF00FF00FF00FF00)
    a(f"s_mov_b32 s92, {hx(f2u(1/640))}\ns_mov_b32 s93, {hx(f2u(1e-5))}")
    a("s_waitcnt lgkmcnt(0)")
    stamp(0)
    a("s_mul_i32 s77, s77, 1664525\ns_add_u32 s77, s77, 1013904223")
    a("s_waitcnt vmcnt(10)")
    for i in range(10): a(f"v_lshlrev_b32 v{44+2*i}, 16, v{8+i}\nv_and_b32 v{45+2*i}, 0xffff0000, v{8+i}")
    def red32(v):
        for k in (8, 4, 2, 1): a(f"v_add_f32_dpp v{v}, v{v}, v{v} row_ror:{k} {DPPM}")
        rows_allreduce("v_add_f32", v, 71, both=False)
    a("v_pk_add_f32 v[8:9], v[44:45], v[46:47]")
    for i in range(2, 10): a(f"v_pk_add_f32 v[8:9], v[8:9], v[{44+2*i}:{45+2*i}]")
    a("v_add_f32 v8, v8, v9"); red32(8)
    a("v_mul_f32 v8, s92, v8\nv_mov_b32 v10, 0\nv_mov_b32 v11, 0")
    for i in range(20): a(f"v_sub_f32 v{44+i}, v{44+i}, v8")
    for i in range(20): a(f"v_fmac_f32 v{10+(i&1)}, v{44+i}, v{44+i}")
    a("v_add_f32 v10, v10, v11"); red32(10)
    def ln_finish(mean, var):
        bfr(var, var); bfr(mean, mean); a(f"v_add_f32 v{var}, s93, v{var}"); bfr(var, var); a(f"v_sqrt_f32 v{var}, v{var}"); bfr(var, var)
        a(f"v_rcp_f32 v{var}, v{var}")
    a("v_mul_f32 v10, s92, v10"); ln_finish(8, 10)
    a("v_readlane_b32 s80, v8, 0\nv_readlane_b32 s81, v8, 32\nv_readlane_b32 s82, v10, 0\nv_readlane_b32 s83, v10, 32")
    a("v_mov_b32 v8, s80\nv_mov_b32 v9, s81\nv_mov_b32 v10, s82\nv_mov_b32 v11, s83")
    a("v_cndmask_b32 v8, v8, v9, s[88:89]\nv_cndmask_b32 v10, v10, v11, s[88:89]")
    a("s_waitcnt vmcnt(5)")
    for i in range(5): a(f"v_lshlrev_b32 v{18+i}, 16, v{18+i}\nv_sub_f32 v{18+i}, v{18+i}, v8")
    for i in range(5): bfr(18 + i, 18 + i)
    for i in range(5): a(f"v_mul_f32 v{18+i}, v{18+i}, v10\nv_cvt_pk_bf16_f32 v{18+i}, v{18+i}, v{18+i}")
    for i in range(5):
        for r in range(4): a(f"v_and_b32 v{44+4*i+r}, v{18+i}, v{64+r}")
    for i in range(5):
        a(f"s_waitcnt vmcnt({4-i})")
        a(f"v_mfma_f32_16x16x32_bf16 v[72:75], v[{24+4*i}:{27+4*i}], v[{44+4*i}:{47+4*i}], {'0' if i == 0 else 'v[72:75]'}")
    a("v_lshlrev_b32 v8, 4, v0\nv_and_b32 v11, 31, v1\ns_lshl_b32 s7, s76, 2\nv_lshl_add_u32 v9, v11, 5, s7")
    a("s_lshl_b32 s7, s76, 9\nv_lshl_add_u32 v12, v11, 4, s7\ns_lshl_b32 s80, s6, 11")
    a(f"s_add_u32 s80, s80, {QP}\ns_lshl_b32 s81, s74, 14\ns_add_u32 s81, s81, {QP}\ns_add_u32 s82, s81, 4096")
    a(f"ds_write_b128 v8, v[72:75] offset:{QRED}")
    for w in range(1, 4): a(f"v_add_u32 v{8+8*w}, {1024*w}, v9")
    L = spin_begin("qred")
    for w in range(4): a(f"ds_read2_b32 v[{76+2*w}:{77+2*w}], v{9 if w == 0 else 8+8*w} offset0:0 offset1:4")
    a("s_waitcnt lgkmcnt(0)"); sent_check(range(76, 84), 84); spin_end(L)
    a("v_pk_add_f32 v[76:77], v[76:77], v[78:79]\nv_pk_add_f32 v[80:81], v[80:81], v[82:83]\nv_pk_add_f32 v[76:77], v[76:77], v[80:81]")
    a("s_add_u32 s83, s77, s78\ns_add_u32 s83, s83, 1\nv_mov_b32 v78, v77\nv_mov_b32 v77, s83\nv_mov_b32 v79, s83\ns_mov_b32 exec_hi, 0")
    a(f"buffer_store_dwordx4 v[76:79], v12, {sWS}, s80 offen\ns_mov_b64 exec, -1\ns_add_u32 s80, s80, {QPB - QP}")
    stamp(1)
    a(f"v_lshrrev_b32 v14, 5, v1\nv_lshl_add_u32 v12, v14, 13, v12\nv_add_u32 v14, {QPB - QP}, v12")
    a("v_bfe_u32 v13, v1, 2, 1\nv_lshlrev_b32 v13, 8, v13\nv_bfe_u32 v15, v1, 3, 2\nv_lshl_or_b32 v13, v15, 6, v13\nv_and_b32 v15, 3, v1\nv_lshl_or_b32 v13, v15, 2, v13")
    a("s_lshl_b32 s7, s76, 4\nv_add_u32 v13, s7, v13")
    if qpre: a(f"s_sleep {qpre}")
    L = spin_begin("qg")
    a(f"s_cmp_lg_u32 s79, {SPIN - qB}\ns_cbranch_scc1 L_qnear\nv_mov_b32 v77, s77\nv_mov_b32 v79, s77\ns_mov_b32 exec_hi, 0")
    a(f"buffer_store_dwordx4 v[76:79], v12, {sWS}, s80 offen sc0 sc1\ns_mov_b64 exec, -1\nL_qnear:")
    a(f"s_cmp_lt_u32 s79, {SPIN - qB}\ns_cselect_b32 s7, s79, 0\ns_bitcmp1_b32 s7, 0\ns_cselect_b64 vcc, -1, 0\ns_cselect_b32 s7, s77, s83\nv_cndmask_b32 v15, v12, v14, vcc")
    for k in range(4): a(f"buffer_load_dwordx4 v[{80+4*k}:{83+4*k}], v15, {sWS}, s{81+(k>>1)} offen offset:{2048*(k&1)} sc1")
    a("s_waitcnt vmcnt(0)")
    for k in range(8): a(f"v_xor_b32 v{81+2*k}, s7, v{81+2*k}")
    a("v_or3_b32 v81, v81, v83, v85\nv_or3_b32 v87, v87, v89, v91\nv_or3_b32 v81, v81, v93, v95\nv_or_b32 v81, v81, v87\nv_cmp_ne_u32 vcc, 0, v81")
    spin_end(L, qsleep)
    a("v_add_f32 v80, v80, v84\nv_add_f32 v82, v82, v86\nv_add_f32 v88, v88, v92\nv_add_f32 v90, v90, v94\nv_add_f32 v80, v80, v88\nv_add_f32 v82, v82, v90")
    a("v_mov_b32 v81, v80\nv_mov_b32 v83, v82\nv_permlane32_swap_b32 v80, v81\nv_permlane32_swap_b32 v82, v83\nv_add_f32 v80, v80, v81\nv_add_f32 v82, v82, v83")
    a(f"v_cvt_pk_bf16_f32 v80, v80, v82\nv_min_u32 v80, -2, v80\nds_write_b32 v13, v80 offset:{QF}")
    stamp(2)
    a("s_lshr_b32 s7, s73, 3\ns_cmp_lt_u32 s75, 2\ns_cbranch_scc1 L_role2")
    a("s_sub_u32 s85, s75, 2\ns_lshl_b32 s85, s85, 2\ns_add_u32 s85, s85, s7\ns_cmp_lt_u32 s85, 10\ns_cselect_b32 s84, 1, 0\ns_branch L_role")
    a("L_role2:\ns_lshl_b32 s85, s7, 3\ns_add_u32 s85, s85, s72\ns_cmp_lt_u32 s85, 27\ns_cselect_b32 s84, 2, 0\ns_lshl_b32 s85, s85, 1\ns_add_u32 s85, s85, s75")
    a("L_role:")
    a("s_cmp_lg_u32 s76, 0\ns_cbranch_scc1 L_noclr")
    a("v_and_b32 v8, 31, v1\nv_lshlrev_b32 v8, 4, v8\nv_lshrrev_b32 v9, 5, v1\nv_lshl_or_b32 v8, v9, 17, v8\ns_lshl_b32 s7, s6, 9\nv_add_u32 v8, s7, v8")
    a(f"s_mov_b32 s7, {OPA}\nbuffer_store_dwordx4 v[112:115], v8, {sWS}, s7 offen sc0 sc1")
    a("s_cmp_lg_u32 s84, 1\ns_cbranch_scc1 L_clr2")
    a("v_and_b32 v9, 1, v7\nv_mul_u32_u24 v9, 20480, v9\nv_lshl_add_u32 v8, v6, 4, v9")
    a(f"s_mul_i32 s7, s72, 2560\ns_lshl_b32 s79, s85, 8\ns_add_u32 s7, s7, s79\ns_add_u32 s7, s7, {YP}")
    a(f"s_mov_b32 exec_hi, 0\nbuffer_store_dwordx4 v[112:115], v8, {sWS}, s7 offen sc0 sc1\ns_mov_b64 exec, -1")
    a("L_clr2:")
    a("s_cmp_lg_u32 s84, 2\ns_cbranch_scc1 L_clr3")
    a("v_and_b32 v8, 31, v1\nv_lshlrev_b32 v8, 4, v8\nv_lshrrev_b32 v9, 5, v1\nv_mul_u32_u24 v9, 138240, v9\nv_add_u32 v8, v8, v9")
    a(f"s_mul_i32 s7, s85, 2560\ns_add_u32 s7, s7, {DP}")
    for k in range(5): a(f"buffer_store_dwordx4 v[112:115], v8, {sWS}, s7 offen offset:{512*k} sc0 sc1")
    a("L_clr3:")
    a(f"v_mov_b32 v8, 0\ns_waitcnt vmcnt(0)\nds_write_b32 v8, v8 offset:{CLR}")
    a("L_noclr:")
    a("s_mov_b32 s90, 0x05040100\ns_mov_b32 s91, 0x07060302")
    mask64(88, 0x0001000100010001)
    a("v_mov_b32 v61, 0")
    a("s_cmp_eq_u32 s84, 2\ns_cbranch_scc1 L_ffn\ns_cmp_eq_u32 s84, 1\ns_cbranch_scc1 L_wo")
    if probe:
        op, idx, k = probe
        a("s_cmp_lg_u32 s6, 255\ns_cbranch_scc1 L_noprobe\ns_cmp_lg_u32 s76, 1\ns_cbranch_scc1 L_noprobe")
        a("L_pw:\ns_sleep 32\ns_memrealtime s[96:97]\ns_waitcnt lgkmcnt(0)\ns_sub_u32 s96, s96, s8\ns_cmp_lt_u32 s96, 6000\ns_cbranch_scc1 L_pw")
        a("v_lshlrev_b32 v8, 9, v1")
        def red(dst, op, idx):
            for q in range(4):
                a(f"s_mov_b32 s7, {DIAG + q * 32768 + 256}")
                for w in range(4): a(f"buffer_load_dword v{64 + 4*q + w}, v8, {sWS}, s7 offen offset:{64*w + 4*idx} sc1")
            a("s_waitcnt vmcnt(0)")
            for r in range(16): a(f"v_subrev_u32 v{64+r}, s8, v{64+r}")
            ins = {"min": "v_min_i32", "max": "v_max_i32", "mean": "v_add_u32"}[op]
            for r in range(1, 16): a(f"{ins} v64, v64, v{64+r}")
            for kk in (8, 4, 2, 1): a(f"{ins}_dpp v64, v64, v64 row_ror:{kk} {DPPM}")
            rows_allreduce(ins, 64, 65)
            a(f"v_readfirstlane_b32 s{dst}, v64")
            if op == "mean": a(f"s_ashr_i32 s{dst}, s{dst}, 10")
        red(94, "min", 0); red(95, op, idx)
        a(f"s_sub_i32 s95, s95, s94\ns_mul_i32 s95, s95, {k}\ns_add_i32 s95, s95, s94\ns_add_i32 s95, s95, 7000\ns_min_u32 s95, s95, 60000")
        a("L_pw2:\ns_sleep 2\ns_memrealtime s[96:97]\ns_waitcnt lgkmcnt(0)\ns_sub_u32 s96, s96, s8\ns_cmp_lt_u32 s96, s95\ns_cbranch_scc1 L_pw2")
        a("L_noprobe:")
    dump_stamps()
    a("s_endpgm")

    def proof(r):
        a(f"v_lshlrev_b32 v{r}, 7, v{r}\ns_mov_b32 s7, {ML + 64}")
        L = spin_begin("pf")
        a(f"buffer_load_dwordx2 v[64:65], v{r}, {sWS}, s7 offen sc1\ns_waitcnt vmcnt(0)\nv_cmp_ne_u32 vcc, s77, v65")
        spin_end(L, 16)
    def wait_lds(addr, val, sleep):
        L = spin_begin("own")
        a(f"ds_read_b32 v8, v61 offset:{addr}\ns_waitcnt lgkmcnt(0)\nv_cmp_ne_u32 vcc, {val}, v8")
        spin_end(L, sleep)
    def staged(nbatch, nld, win, load_fn, finish_fn):
        n = nbatch * nld
        done = 0
        for i in range(n + win):
            if i >= win:
                a(f"s_waitcnt vmcnt({min(n, i) - (i - win) - 1})")
                if (i - win + 1) % nld == 0: finish_fn((i - win) // nld, ((i - win) // nld) & 1)
            if i < n: load_fn(i // nld, i % nld, (i // nld) & 1)
    def gather(name, loads, regs, gate, grp):
        L = a.lab(name)
        a(f"s_mov_b32 s79, {SPIN}\ns_cmp_lg_u32 s98, 0\ns_cbranch_scc1 {L}")
        wait_lds(gate, 1, 8)
        a(f"s_mov_b32 s79, {SPIN}\n{L}_g:")
        for k, ld in enumerate(loads): a(ld + ("\ns_waitcnt vmcnt(0)" if (k + 1) % grp == 0 or k + 1 == len(loads) else ""))
        a(f"s_branch {L}_c\n{L}:")
        for ld in loads: a(ld)
        a(f"s_waitcnt vmcnt(0)\n{L}_c:")
        sent_check(regs, 8)
        a(f"s_cbranch_vccz {L}_d\ns_sub_u32 s79, s79, 1\ns_cbranch_scc1 {L}_d\ns_cmp_lg_u32 s98, 0\ns_cbranch_scc1 {L}\ns_sleep 16\ns_branch {L}_g\n{L}_d:")

    a("L_wo:")
    a("s_lshl_b32 s7, s72, 2\ns_add_u32 s7, s7, s76\ns_lshl_b32 s7, s7, 7\nv_lshl_add_u32 v8, v7, 5, s7\nv_mul_u32_u24 v8, 1280, v8")
    a("s_lshl_b32 s7, s85, 7\nv_lshl_add_u32 v9, v6, 3, s7\nv_add_u32 v2, v8, v9")
    a("s_waitcnt vmcnt(0)")
    def wo_load(k, n, slot):
        p, e = n >> 1, n & 1
        if e == 0: a(f"s_mov_b32 s7, {(2*k + p) * 2560}")
        r = 64 + slot * 8 + p * 4 + e * 2
        a(f"buffer_load_dwordx2 v[{r}:{r+1}], v2, {sWO}, s7 offen offset:{1280*e} {wpol}")
    def wo_finish(k, slot):
        for p in range(2):
            pair = 2 * k + p; r, i = pair >> 2, pair & 3; t = 64 + slot * 8 + p * 4
            for q in range(4):
                a(f"v_perm_b32 v{128 + (i*4 + q)*4 + r}, v{t + 2 + (q>>1)}, v{t + (q>>1)}, s{90 + (q&1)}")
    if 'o' not in skip: staged(8, 4, wo_w, wo_load, wo_finish)
    stamp(3)
    wait_lds(PRG, 1, 8)
    a("s_lshl_b32 s7, s72, 2\ns_add_u32 s7, s7, s76\ns_lshl_b32 s7, s7, 3\nv_and_b32 v9, 7, v1\nv_add_u32 v9, s7, v9")
    proof(9)
    a(f"s_mov_b32 s94, {OPA}")
    a("s_lshl_b32 s7, s72, 2\ns_add_u32 s7, s7, s76\ns_lshl_b32 s7, s7, 12")
    a("v_bfe_u32 v8, v1, 2, 2\nv_lshlrev_b32 v8, 10, v8\nv_lshl_or_b32 v8, v7, 7, v8\nv_and_b32 v9, 3, v1\nv_lshl_or_b32 v8, v9, 5, v8\nv_add_u32 v2, s7, v8")
    a(f"s_lshl_b32 s7, s76, 8\ns_add_u32 s7, s7, {YRED}\nv_lshl_add_u32 v3, v7, 4, s7")
    a(f"v_lshlrev_b32 v59, 4, v6\nv_add_u32 v5, {YRED}, v59")
    a(f"s_mul_i32 s95, s72, 2560\ns_lshl_b32 s7, s85, 8\ns_add_u32 s95, s95, s7\ns_add_u32 s95, s95, {YP}")
    a("s_mov_b32 s98, 0")
    a("L_wo_b:")
    stamp(4)
    gather("h1", [f"buffer_load_dwordx4 v[{64+4*k}:{67+4*k}], v2, {sWS}, s94 offen offset:{off} sc1" for k, off in enumerate((0, 16, 512, 528))], range(64, 80), PRG + 4, gg[0])
    stamp(5)
    for k in range(4): a(f"v_pk_add_f32 v[{64+2*k}:{65+2*k}], v[{64+2*k}:{65+2*k}], v[{72+2*k}:{73+2*k}]")
    for ror in (8, 4):
        for k in range(8): a(f"v_add_f32_dpp v{64+k}, v{64+k}, v{64+k} row_ror:{ror} {DPPM}")
    for r in range(4): a(f"v_cvt_pk_bf16_f32 v{72+r}, v{64+r}, v{68+r}")
    def wo_b(i):
        for r in range(4): a(f"v_mov_b32_dpp v{80+4*i+r}, v{72+r} quad_perm:[{i},{i},{i},{i}] {DPPM}")
    wo_b(0); wo_b(1)
    for i in range(4):
        for q in range(4):
            A = 128 + (i * 4 + q) * 4; D = 96 + 4 * q
            a(f"v_mfma_f32_16x16x32_bf16 v[{D}:{D+3}], v[{A}:{A+3}], v[{80+4*i}:{83+4*i}], {'0' if i == 0 else f'v[{D}:{D+3}]'}")
            if q == 0 and i < 2: wo_b(i + 2)
    a("s_mov_b64 exec, s[88:89]")
    for q in range(4): a(f"ds_write_b128 v3, v[{96+4*q}:{99+4*q}] offset:{64*q}")
    a("s_mov_b64 exec, -1\ns_cmp_lg_u32 s76, 0\ns_cbranch_scc1 L_wo_next")
    L = spin_begin("yr")
    for w in range(4): a(f"ds_read_b128 v[{64+4*w}:{67+4*w}], v5 offset:{256*w}")
    a("s_waitcnt lgkmcnt(0)"); sent_check(range(64, 80), 8); spin_end(L)
    a("v_pk_add_f32 v[64:65], v[64:65], v[68:69]\nv_pk_add_f32 v[66:67], v[66:67], v[70:71]")
    a("v_pk_add_f32 v[72:73], v[72:73], v[76:77]\nv_pk_add_f32 v[74:75], v[74:75], v[78:79]")
    a("v_pk_add_f32 v[64:65], v[64:65], v[72:73]\nv_pk_add_f32 v[66:67], v[66:67], v[74:75]")
    a(f"s_mov_b64 exec, 0xffff\nbuffer_store_dwordx4 v[64:67], v59, {sWS}, s95 offen sc0 sc1\ns_mov_b64 exec, -1")
    stamp(6)
    a("L_wo_next:")
    a("s_add_u32 s94, s94, 0x20000\ns_add_u32 s95, s95, 20480\nv_add_u32 v3, 1024, v3\nv_add_u32 v5, 1024, v5")
    a("s_add_u32 s98, s98, 1\ns_cmp_ge_u32 s98, 2\ns_cbranch_scc1 L_wo_end\ns_waitcnt vmcnt(0)")
    wait_lds(CNT + 4, 3, 2)
    a("s_branch L_wo_b\nL_wo_end:")
    dump_stamps()
    a("s_endpgm")

    a("L_ffn:")
    def rowbase(d, q, t):
        a(f"v_lshrrev_b32 v{t}, 4, v{q}\nv_bfe_u32 v{d}, v{q}, 2, 2\nv_lshl_or_b32 v{d}, v{t}, 6, v{d}\nv_and_b32 v{t}, 3, v{q}\nv_lshl_or_b32 v{d}, v{t}, 4, v{d}")
    a("s_mul_i32 s7, s76, 40\nv_mul_u32_u24 v12, 10, v7\nv_add_u32 v12, s7, v12")
    a("s_lshl_b32 s7, s85, 6\nv_lshl_add_u32 v13, v6, 2, s7")
    a("s_waitcnt vmcnt(0)")
    a("s_mul_i32 s99, s76, 3\ns_cmp_eq_u32 s76, 3\ns_subb_u32 s99, s99, 0")
    a("s_lshl_b32 s7, s85, 5\nv_lshl_add_u32 v8, v7, 3, s7\nv_mul_u32_u24 v8, 1280, v8\ns_lshl_b32 s7, s99, 7\nv_lshl_add_u32 v9, v6, 3, s7\nv_add_u32 v2, v8, v9")
    for r in range(1, 4): a(f"s_mov_b32 s{80+r}, {r * 2560}")
    def dn_stage(k0, nb):
        def ld(k, e, slot):
            r = 64 + slot * 16 + 2 * e
            a(f"buffer_load_dwordx2 v[{r}:{r+1}], v2, {sWD}, {'0' if e < 2 else f's{80+(e>>1)}'} offen offset:{(e&1)*1280 + (k0+k)*128} {wpol}")
        def fin(k, slot):
            for q in range(4):
                for r in range(4):
                    t = 64 + slot * 16 + 4 * r + (q >> 1)
                    a(f"v_perm_b32 v{208 + ((k0+k)*4 + q)*4 + r}, v{t+2}, v{t}, s{90+(q&1)}")
        staged(nb, 8, dn_w, ld, fin)
    if 'd' not in skip:
        dn_stage(0, 2)
        a("s_cmp_ge_u32 s76, 2\ns_cbranch_scc1 L_dn2")
        dn_stage(2, 1)
        a("L_dn2:")
    for r in range(1, 4): a(f"s_mov_b32 s{80+r}, {r * 13824}")
    a("s_mov_b32 s80, 3456\ns_waitcnt vmcnt(0)")
    def gu_load(k, n, slot):
        m, r = n >> 2, n & 3
        if n == 0:
            a(f"v_add_u32 v8, {k}, v12"); rowbase(9, 8, 10); a("v_mad_u32_u24 v9, v9, s80, v13")
        a(f"buffer_load_dword v{64 + slot*8 + n}, v9, {sWU if m else sWG}, {'0' if r == 0 else f's{80+r}'} offen {wpol2}")
    def gu_finish(k, slot):
        i, half = k >> 1, k & 1
        for m in range(2):
            for par in range(2):
                for rr in range(2):
                    t = 64 + slot * 8 + m * 4 + 2 * rr
                    a(f"v_perm_b32 v{128 + (i*4 + m*2 + par)*4 + 2*half + rr}, v{t+1}, v{t}, s{90+par}")
    if 'g' not in skip: staged(10, 8, gu_w, gu_load, gu_finish)
    stamp(3)
    wait_lds(PRG, 1, 8)
    a("s_mul_i32 s7, s76, 5\ns_lshr_b32 s7, s7, 1\nv_lshrrev_b32 v8, 3, v1\nv_min_u32 v8, 2, v8\nv_add_u32 v8, s7, v8")
    a("v_and_b32 v9, 3, v8\nv_lshrrev_b32 v8, 2, v8\nv_lshl_add_u32 v8, v9, 3, v8\nv_and_b32 v9, 7, v1\nv_lshl_add_u32 v8, v9, 5, v8\nv_add_u32 v44, 2, v8")
    proof(44)
    a("s_cmp_lg_u32 s76, 0\ns_cbranch_scc1 L_pf2\ns_cmp_ge_u32 s85, 20\ns_cbranch_scc1 L_pf2")
    a("v_min_u32 v8, 53, v1\nv_bfe_u32 v9, v8, 1, 3\nv_lshrrev_b32 v10, 4, v8\nv_and_b32 v8, 1, v8\nv_lshl_add_u32 v8, v10, 3, v8\nv_lshl_add_u32 v44, v9, 5, v8")
    proof(44)
    a("L_pf2:")
    a("v_add_u32 v8, v12, v6"); rowbase(9, 8, 10)
    a(f"v_cmp_gt_u32 vcc, 10, v6\ns_mov_b64 s[86:87], vcc\nv_mov_b32 v10, {hx(OOB)}")
    a("v_lshlrev_b32 v2, 4, v8\nv_cndmask_b32 v2, v10, v2, vcc")
    a("v_lshlrev_b32 v3, 1, v9\nv_cndmask_b32 v3, v10, v3, vcc")
    a(f"v_lshlrev_b32 v5, 2, v9\nv_add_u32 v5, {HTAB}, v5")
    a(f"s_lshl_b32 s7, s76, 5\ns_add_u32 s7, s7, {STAT}\nv_lshl_add_u32 v50, v7, 3, s7")
    a(f"v_lshlrev_b32 v51, 3, v6\nv_add_u32 v51, {STAT}, v51")
    a(f"s_lshl_b32 s7, s76, 8\ns_add_u32 s7, s7, {GRED}\nv_lshl_add_u32 v52, v7, 4, s7")
    a(f"v_and_b32 v8, 1, v1\nv_lshlrev_b32 v8, 6, v8\nv_lshl_or_b32 v8, v7, 4, v8\nv_bfe_u32 v9, v1, 1, 2\nv_lshl_or_b32 v8, v9, 2, v8\nv_add_u32 v53, {GRED}, v8")
    a("s_lshl_b32 s7, s99, 8\nv_lshl_add_u32 v54, v7, 6, s7\nv_lshl_add_u32 v54, v6, 4, v54")
    for q in range(4): a(f"v_and_b32 v8, 3, v1\nv_cmp_eq_u32 vcc, {q}, v8\nv_cndmask_b32 v{12+q}, 0, -1, vcc")
    a(f"s_mul_i32 s95, s85, 2560\ns_add_u32 s95, s95, {DP}")
    a("v_lshrrev_b32 v8, 3, v1\nv_mul_u32_u24 v9, 2560, v8\nv_and_b32 v11, 7, v1\nv_lshl_add_u32 v55, v11, 4, v9")
    a("s_lshl_b32 s7, s85, 7\nv_add_u32 v55, s7, v55\nv_cmp_gt_u32 vcc, 6, v8\nv_cndmask_b32 v56, v10, v55, vcc")
    a("v_and_b32 v8, 3, v1\nv_bfe_u32 v9, v1, 2, 1\nv_lshl_or_b32 v8, v9, 4, v8\nv_bfe_u32 v9, v1, 4, 1\nv_lshl_or_b32 v8, v9, 3, v8\nv_bfe_u32 v9, v1, 5, 1\nv_lshl_or_b32 v8, v9, 2, v8")
    a(f"s_lshl_b32 s7, s85, 5\nv_add_u32 v8, s7, v8\nv_lshlrev_b32 v57, 1, v8\nv_lshlrev_b32 v58, 2, v8\nv_add_u32 v58, {HTAB}, v58")
    a(f"s_mov_b32 s98, 0\ns_mov_b32 s94, {YP}\ns_mov_b32 s96, {DP}\ns_mov_b32 s97, 0")
    c1 = -2.0 * 0.7978845608028654 * 1.4426950408889634
    a(f"s_mov_b32 s100, {hx(f2u(c1 * 0.044715))}\nv_mov_b32 v59, {hx(f2u(c1))}")
    mask64(4, 0x00FF00FF00FF00FF); mask64(0, 0x000F000F000F000F)
    a("L_ffn_b:")
    for r in range(4): a(f"buffer_load_ushort v{44+r}, v3, {sX}, s97 offen offset:{8*r}")
    for k in range(1, 4): a(f"s_add_u32 s{80+k}, s94, {5120*k}")
    a("s_waitcnt vmcnt(0)")
    for r in range(4): a(f"v_lshlrev_b32 v{44+r}, 16, v{44+r}")
    a("s_cmp_eq_u32 s98, 0\ns_cbranch_scc1 L_ffn_go")
    wait_lds(CNT + 4, 3, 2)
    a("L_ffn_go:")
    stamp(4)
    gather("h2", [f"buffer_load_dwordx4 v[{64+4*k}:{67+4*k}], v2, {sWS}, {'s94' if k < 2 else f's{80+(k>>1)}'} offen offset:{2560*(k&1)} sc1" for k in range(8)], range(64, 96), PRG + 8, gg[1])
    stamp(5)
    for st in (16, 8, 4):
        for k in range(0, st, 2): a(f"v_pk_add_f32 v[{64+k}:{65+k}], v[{64+k}:{65+k}], v[{64+st+k}:{65+st+k}]")
    a("v_cvt_pk_bf16_f32 v68, v64, v65\nv_cvt_pk_bf16_f32 v69, v66, v67")
    a("v_lshlrev_b32 v64, 16, v68\nv_and_b32 v65, 0xffff0000, v68\nv_lshlrev_b32 v66, 16, v69\nv_and_b32 v67, 0xffff0000, v69")
    a("v_pk_add_f32 v[64:65], v[64:65], v[44:45]\nv_pk_add_f32 v[66:67], v[66:67], v[46:47]")
    a("v_cvt_pk_bf16_f32 v68, v64, v65\nv_cvt_pk_bf16_f32 v69, v66, v67")
    a("v_lshlrev_b32 v64, 16, v68\nv_and_b32 v65, 0xffff0000, v68\nv_lshlrev_b32 v66, 16, v69\nv_and_b32 v67, 0xffff0000, v69")
    a("v_pk_add_f32 v[70:71], v[64:65], v[66:67]\nv_pk_mul_f32 v[72:73], v[64:65], v[64:65]\nv_add_f32 v70, v70, v71")
    a("v_fmac_f32 v72, v66, v66\nv_fmac_f32 v73, v67, v67\nv_add_f32 v71, v72, v73")
    for k in (8, 4, 2, 1):
        a(f"v_add_f32_dpp v70, v70, v70 row_ror:{k} {DPPM}\nv_add_f32_dpp v71, v71, v71 row_ror:{k} {DPPM}")
    a("s_mov_b64 exec, s[88:89]\nds_write_b64 v50, v[70:71]\ns_mov_b64 exec, s[86:87]")
    for r in range(4): a(f"ds_write_b32 v5, v{64+r} offset:{16*r}")
    a("s_mov_b64 exec, -1")
    L = spin_begin("st")
    a("ds_read_b64 v[70:71], v51\ns_waitcnt lgkmcnt(0)"); sent_check((70, 71), 8); spin_end(L)
    for k in (8, 4, 2, 1):
        a(f"v_add_f32_dpp v70, v70, v70 row_ror:{k} {DPPM}\nv_add_f32_dpp v71, v71, v71 row_ror:{k} {DPPM}")
    a("v_mul_f32 v70, s92, v70\nv_mul_f32 v71, s92, v71\nv_fma_f32 v71, -v70, v70, v71\nv_max_f32 v71, 0, v71")
    ln_finish(70, 71)
    for r in range(4): a(f"v_sub_f32 v{64+r}, v{64+r}, v70")
    a("v_cvt_pk_bf16_f32 v68, v64, v65\nv_cvt_pk_bf16_f32 v69, v66, v67")
    a("v_lshlrev_b32 v64, 16, v68\nv_and_b32 v65, 0xffff0000, v68\nv_lshlrev_b32 v66, 16, v69\nv_and_b32 v67, 0xffff0000, v69")
    for r in range(4): a(f"v_mul_f32 v{64+r}, v{64+r}, v71")
    a("v_cvt_pk_bf16_f32 v68, v64, v65\nv_cvt_pk_bf16_f32 v69, v66, v67")
    def gu_b(i):
        for r in range(4): a(f"v_mov_b32_dpp v{72+4*i+r}, v{68+(r&1)} row_newbcast:{2*i+(r>>1)} {DPPM}")
    gu_b(0); gu_b(1)
    for i in range(5):
        for q in range(4):
            A = 128 + (i * 4 + q) * 4; D = 96 + 4 * q
            a(f"v_mfma_f32_16x16x32_bf16 v[{D}:{D+3}], v[{A}:{A+3}], v[{72+4*i}:{75+4*i}], {'0' if i == 0 else f'v[{D}:{D+3}]'}")
            if q == 0 and i < 3: gu_b(i + 2)
    a("s_mov_b64 exec, s[88:89]")
    for q in range(4): a(f"ds_write_b128 v52, v[{96+4*q}:{99+4*q}] offset:{64*q}")
    a("s_mov_b64 exec, -1")
    stamp(6)
    L = spin_begin("gr")
    for w in range(4): a(f"ds_read2_b32 v[{64+2*w}:{65+2*w}], v53 offset0:{64*w} offset1:{64*w+32}")
    a("s_waitcnt lgkmcnt(0)"); sent_check(range(64, 72), 8); spin_end(L)
    a("ds_read_b32 v48, v58")
    a("v_pk_add_f32 v[64:65], v[64:65], v[66:67]\nv_pk_add_f32 v[68:69], v[68:69], v[70:71]\nv_pk_add_f32 v[64:65], v[64:65], v[68:69]")
    a("v_cvt_pk_bf16_f32 v66, v64, v65\nv_lshlrev_b32 v64, 16, v66\nv_and_b32 v65, 0xffff0000, v66")
    a("v_mul_f32 v66, v64, v64\nv_fma_f32 v66, v66, s100, v59\nv_mul_f32 v66, v66, v64\nv_exp_f32 v66, v66\nv_add_f32 v66, 1.0, v66\nv_rcp_f32 v66, v66\nv_mul_f32 v64, v64, v66")
    bfr(64, 64)
    a(f"v_mul_f32 v64, v64, v65\nv_mov_b32_dpp v65, v64 quad_perm:[1,1,3,3] {DPPM}\nv_cvt_pk_bf16_f32 v64, v64, v65")
    def dn_b(q):
        for r in range(4): a(f"v_and_b32_dpp v{68+4*q+r}, v64, v{12+q} row_newbcast:{2*r} {DPPM}")
    dn_b(0); dn_b(1)
    for q in range(4):
        for k in range(3):
            A = 208 + (k * 4 + q) * 4; D = 84 + 4 * k
            a(f"v_mfma_f32_16x16x32_bf16 v[{D}:{D+3}], v[{A}:{A+3}], v[{68+4*q}:{71+4*q}], {'0' if q == 0 else f'v[{D}:{D+3}]'}")
            if k == 0 and q < 2: dn_b(q + 2)
    a("s_cmp_ge_u32 s76, 2\ns_mov_b64 exec, s[0:1]")
    for k in range(3):
        if k == 2: a("s_cbranch_scc1 L_dn3")
        a(f"buffer_store_dwordx4 v[{84+4*k}:{87+4*k}], v54, {sWS}, s95 offen offset:{256*k} sc0 sc1")
    a("L_dn3:\ns_mov_b64 exec, -1")
    stamp(7)
    a("s_cmp_lg_u32 s76, 0\ns_cbranch_scc1 L_ffn_next\ns_cmp_ge_u32 s85, 20\ns_cbranch_scc1 L_ffn_next")
    if pre3: a(f"s_sleep {pre3}")
    gather("h3", [(f"s_add_u32 s7, s96, {20480*k}\n" if k else "") + f"buffer_load_dwordx4 v[{16+4*k}:{19+4*k}], {'v56' if k == 6 else 'v55'}, {sWS}, {'s7' if k else 's96'} offen sc1" for k in range(7)], range(16, 44), PRG + 12, gg[2])
    stamp(8)
    for (d, s) in ((16, 20), (24, 28), (32, 36), (16, 24), (32, 40), (16, 32)):
        a(f"v_pk_add_f32 v[{d}:{d+1}], v[{d}:{d+1}], v[{s}:{s+1}]\nv_pk_add_f32 v[{d+2}:{d+3}], v[{d+2}:{d+3}], v[{s+2}:{s+3}]")
    a("v_permlane32_swap_b32 v16, v17\nv_permlane32_swap_b32 v18, v19\nv_add_f32 v16, v16, v17\nv_add_f32 v18, v18, v19")
    a(f"v_permlane16_swap_b32 v16, v18\nv_add_f32 v16, v16, v18\nv_add_f32_dpp v16, v16, v16 row_ror:8 {DPPM}")
    bfr(16, 16)
    a("s_waitcnt lgkmcnt(0)\nv_add_f32 v16, v16, v48\nv_cvt_pk_bf16_f32 v16, v16, v16")
    a(f"s_mov_b64 exec, s[4:5]\nbuffer_store_short v16, v57, {sOUT}, s97 offen\ns_mov_b64 exec, -1")
    stamp(9)
    a("s_cmp_lg_u32 s85, 0\ns_cbranch_scc1 L_ffn_next\ns_cmp_lg_u32 s98, 1\ns_cbranch_scc1 L_ffn_next")
    a(f"v_mov_b32 v8, s77\ns_mov_b64 exec, 1\nbuffer_store_dword v8, v61, {sWS}, 0 offen\ns_mov_b64 exec, -1")
    a("L_ffn_next:")
    a("s_add_u32 s94, s94, 20480\ns_add_u32 s95, s95, 138240\ns_add_u32 s96, s96, 138240\ns_add_u32 s97, s97, 1280")
    a("v_add_u32 v5, 2560, v5\nv_add_u32 v58, 2560, v58\nv_add_u32 v50, 128, v50\nv_add_u32 v51, 128, v51")
    a("v_add_u32 v52, 1024, v52\nv_add_u32 v53, 1024, v53")
    a("s_add_u32 s98, s98, 1\ns_cmp_lt_u32 s98, 2\ns_cbranch_scc1 L_ffn_b")
    dump_stamps()
    a("L_exit:\ns_endpgm\nL_code_end:")

    hdr = open("cdna_kernels/" + NAME + ".s.ref").read().split("; Override launch")[0]
    out = [hdr.rstrip(), f"; @launch grid=(256,1,1) block=(512,1,1) lds={LDSZ}", '.amdgcn_target "amdgcn-amd-amdhsa--gfx950"']
    out += a.finish()
    out.append(f""".section .rodata,"a"
.p2align 6
.amdhsa_kernel {kname}
  .amdhsa_next_free_vgpr 256
  .amdhsa_next_free_sgpr 102
  .amdhsa_accum_offset 256
  .amdhsa_group_segment_fixed_size 0
  .amdhsa_kernarg_size 96
  .amdhsa_user_sgpr_count 2
  .amdhsa_user_sgpr_kernarg_segment_ptr 1
  .amdhsa_system_sgpr_workgroup_id_x 1
  .amdhsa_float_denorm_mode_32 3
.end_amdhsa_kernel""")
    return "\n".join(out) + "\n"

if __name__ == "__main__":
    kw = eval("dict(" + (sys.argv[2] if len(sys.argv) > 2 else "") + ")")
    open(sys.argv[1], "w").write(gen(**kw))
```

```python
import sys, struct
from asmlib import Asm

NAME = "sequential_preLN__mha_block_cached__geglu_ffn__decode"
def f2u(x): return struct.unpack("<I", struct.pack("<f", x))[0]
def hx(x): return "0x%08x" % (x & 0xffffffff)

REF, BELL, QP, OP, YP, DP, ML, DIAG, QPB, WSZ = 0x1000, 0x1800, 0x10000, 0x90000, 0x140000, 0xE0000, 0x130000, 0x1a0000, 0x200000, 0x280000
RS = 4352
OOB = 0x7ff00000
STEP = 4632
QRED, QF, CNT, MCNT, CLR, PRG, MRED, STAT, RED, ORED, HTAB, DUMP, LDSZ = 0, 4096, 4608, 4616, 4624, 4640, 4672, 4864, 5120, 8192, 12288, 22016, 24576
sK, sV, sWS, sX, sWQ, sWO, sWG, sWU, sWD, sOUT = [f"s[{n}:{n+3}]" for n in range(32, 72, 4)]
DPPM = "row_mask:0xf bank_mask:0xf"
LOG2E = f2u(1.4426950408889634)
MFMA = "v_mfma_f32_16x16x32_bf16"

def gen(depth=5, ctl=(8, 6, 5), E=24, dl=11, dw=12, nref=8, gb=20, gs=24, bias=0, ffwo=0, bsleep=0, P=39, budget=56, ml0=124, ml1=194,
        gates=(150, 222, 250, 271), qpre=24, qsleep=2, qB=6, wo_w=2, gu_w=4, dn_w=5, pre2=0, pre3=12, bell=True, fast=True,
        setup_at=20, SPIN=0x10000, diag=False, early=False, skip='', xm=True, inc1=True, xo=False, gusep=True, gpol='nt', pace=None, ph0=17, ex=16, fin=(14, 16, 10, 16), mids=(11,), fmids=(6,), ffb=0, ffb_from=200, late=False, rl=0, helper=0, lsleep=2, tick=2):
    a = Asm()
    cold = []
    kname = NAME + "_kernel"
    def stamp(k):
        if diag and k == 0: a("s_mov_b32 s8, s100")
        elif diag: a(f"s_memrealtime s[{8+2*k}:{9+2*k}]")
    def dump_stamps():
        if not diag: return
        a("s_waitcnt lgkmcnt(0)\ns_mov_b64 exec, 1\ns_lshl_b32 s90, s6, 3\ns_add_u32 s90, s90, s3\ns_lshl_b32 s90, s90, 6")
        a(f"s_add_u32 s90, s90, {DIAG}\nv_mov_b32 v5, 0")
        for k in range(11): a(f"v_mov_b32 v{112+k}, s{8+2*k}")
        a("v_mov_b32 v123, s78")
        for q in range(3): a(f"buffer_store_dwordx4 v[{112+4*q}:{115+4*q}], v5, {sWS}, s90 offen offset:{16*q}")
    def srd_tail(n, size): a(f"s_mov_b32 s{n+2}, {hx(size)}\ns_mov_b32 s{n+3}, 0x20000")
    def bfr(d, s): a(f"v_cvt_pk_bf16_f32 v{d}, v{s}, v{s}\nv_and_b32 v{d}, 0xffff0000, v{d}")
    def unpack(d0, d1, s): a(f"v_lshlrev_b32 v{d0}, 16, v{s}\nv_and_b32 v{d1}, 0xffff0000, v{s}")
    def pk(op, d, x, y): a(f"v_pk_{op}_f32 v[{d}:{d+1}], v[{x}:{x+1}], v[{y}:{y+1}]")
    def add4(d, x, y): pk("add", d, x, y); pk("add", d + 2, x + 2, y + 2)
    def mask64(n, v): a(f"s_mov_b32 s{n}, {hx(v)}\ns_mov_b32 s{n+1}, {hx(v >> 32)}")
    def mfma(d, A, B, first): a(f"{MFMA} v[{d}:{d+3}], v[{A}:{A+3}], v[{B}:{B+3}], {'0' if first else f'v[{d}:{d+3}]'}")
    def loop(base):
        L = a.lab(base); a(L + ":"); return L
    def retry(L, sleep=0, gentle=0, pre='', post=''):
        a(f"s_cbranch_vccnz {L}_r\n{L}_d:")
        t = f"{L}_r:\n" + pre
        if sleep: t += f"s_sleep {sleep}\n"
        if gentle: t += f"s_cmp_lg_u32 s98, 0\ns_cbranch_scc1 {L}_n\ns_sleep {gentle}\n{L}_n:\n"
        cold.append(t + f"s_sub_u32 s79, s79, 1\ns_cbranch_scc0 {L}\ns_mov_b32 s79, 0\n{post}s_branch {L}_d")
    def flush_cold():
        for t in cold: a(t)
        cold.clear()
    def empty_check(regs, t):
        regs = list(regs)
        a(f"v_max3_u32 v{t}, v{regs[0]}, v{regs[1]}, v{regs[2]}"); regs = regs[3:]
        while len(regs) >= 2: a(f"v_max3_u32 v{t}, v{t}, v{regs[0]}, v{regs[1]}"); regs = regs[2:]
        if regs: a(f"v_max_u32 v{t}, v{t}, v{regs[0]}")
        a(f"v_cmp_eq_u32 vcc, -1, v{t}")
    def nan4(x, t): pk("add", t, x, x + 2); a(f"v_cmp_u_f32 vcc, v{t}, v{t+1}")
    def rows_allreduce(op, v, t, both=True):
        a(f"v_mov_b32 v{t}, v{v}\nv_permlane16_swap_b32 v{v}, v{t}\n{op} v{v}, v{v}, v{t}")
        if both: a(f"v_mov_b32 v{t}, v{v}\nv_permlane32_swap_b32 v{v}, v{t}\n{op} v{v}, v{v}, v{t}")
    def half_masks(first, esrc, t0):
        a(f"v_and_b32 v{t0}, 1, v{esrc}\nv_lshlrev_b32 v{t0}, 4, v{t0}\nv_mov_b32 v{t0+1}, 0xffff\nv_lshlrev_b32 v{t0}, v{t0}, v{t0+1}")
        a(f"v_lshrrev_b32 v{t0+1}, 1, v{esrc}")
        for r in range(4): a(f"v_cmp_eq_u32 vcc, {r}, v{t0+1}\nv_cndmask_b32 v{first+r}, 0, v{t0}, vcc")
    def wait_lds(addr, val, sleep):
        L = loop("lds")
        a(f"ds_read_b32 v8, v61 offset:{addr}\ns_waitcnt lgkmcnt(0)\nv_cmp_ne_u32 vcc, {val}, v8")
        retry(L, sleep)
    def next_tag(): a("s_mul_i32 s77, s77, 1664525\ns_add_u32 s77, s77, 1013904223")

    a(f".text\n.globl {kname}\n.p2align 8\n.type {kname},@function\n{kname}:")
    a("s_cmp_ge_u32 s2, 256\ns_cbranch_scc1 L_exit")
    if diag: a("s_memrealtime s[100:101]")
    a("s_load_dwordx8 s[8:15], s[0:1], 0")
    a("s_getpc_b64 s[4:5]\nL_pc:\nv_lshlrev_b32 v4, 7, v0\nv_min_u32 v4, L_code_end-L_pc-4, v4\nglobal_load_dword v4, v4, s[4:5]")
    a("v_lshrrev_b32 v5, 6, v0\nv_and_b32 v1, 63, v0\nv_readfirstlane_b32 s3, v5")
    a("s_and_b32 s72, s2, 7\ns_lshr_b32 s73, s2, 3\ns_lshl_b32 s6, s72, 5\ns_add_u32 s6, s6, s73")
    a("s_lshr_b32 s74, s6, 3\ns_and_b32 s75, s6, 7\ns_and_b32 s76, s3, 3")
    a("v_and_b32 v6, 15, v1\nv_lshrrev_b32 v7, 4, v1")
    srd_tail(40, WSZ)
    a(f"s_mov_b32 s79, {SPIN}\ns_cmp_lt_u32 s3, 4\ns_cbranch_scc1 L_aux0")
    def aux_start():
        a("L_aux0:\nv_lshlrev_b32 v96, 4, v0\nv_mov_b32 v112, -1\nv_mov_b32 v113, -1\nv_mov_b32 v114, -1\nv_mov_b32 v115, -1")
        a("ds_write_b128 v96, v[112:115]\nds_write_b128 v96, v[112:115] offset:4096")
        a("v_and_b32 v8, 31, v1\nv_lshlrev_b32 v8, 3, v8\nv_lshrrev_b32 v9, 5, v1\nv_mul_u32_u24 v9, 1280, v9\nv_add_u32 v2, v8, v9")
        a("s_mul_i32 s7, s75, 80\ns_mul_i32 s80, s76, 20\ns_add_u32 s7, s7, s80\nv_add_u32 v8, s7, v7")
        a("v_bfe_u32 v9, v1, 3, 1\nv_mul_u32_u24 v9, 1280, v9\nv_lshl_add_u32 v3, v8, 1, v9")
        a("s_lshl_b32 s7, s74, 8\nv_lshlrev_b32 v8, 13, v8\nv_lshl_add_u32 v9, v6, 4, s7\nv_add_u32 v5, v8, v9")
        srd_tail(44, 2560); srd_tail(48, 640 * 4096 * 2)
        a("s_mov_b32 s7, 0\ns_waitcnt lgkmcnt(0)\ns_mov_b64 s[44:45], s[8:9]\ns_mov_b64 s[48:49], s[14:15]")
        for i in range(5): a(f"buffer_load_dwordx2 v[{8+2*i}:{9+2*i}], v2, {sX}, 0 offen offset:{256*i}")
        for i in range(5): a(f"buffer_load_ushort v{18+i}, v3, {sX}, 0 offen offset:{8*i}")
        for i in range(5): a(f"buffer_load_dwordx4 v[{24+4*i}:{27+4*i}], v5, {sWQ}, s7 offen nt" + ("\ns_add_u32 s7, s7, 0x8000" if i < 4 else ""))
        a("s_load_dwordx8 s[16:23], s[0:1], 32\ns_load_dwordx8 s[24:31], s[0:1], 64\ns_barrier\ns_branch L_aux")

    a("s_setprio 2")
    a("v_bfe_u32 v8, v1, 2, 2\nv_lshlrev_b32 v8, 8, v8\nv_lshl_or_b32 v8, v7, 6, v8\nv_and_b32 v9, 3, v1\nv_lshl_or_b32 v2, v9, 4, v8")
    a("s_and_b32 s80, s75, 3\ns_cselect_b32 s71, 0, 0x80000000\ns_lshl_b32 s70, s75, 18")
    a("s_lshl_b32 s7, s74, 21\ns_lshl_b32 s80, s76, 10\ns_add_u32 s7, s7, s80\nv_add_u32 v2, s7, v2\nv_lshl_add_u32 v3, v1, 4, s7")
    srd_tail(32, 1 << 27); srd_tail(36, 1 << 27)
    a("s_waitcnt lgkmcnt(0)\ns_mov_b64 s[32:33], s[10:11]\ns_mov_b64 s[36:37], s[12:13]")
    RING, NB, PH, NG = 100, 39, 68, 17
    BK, DK, ACC, BV, MLB, MLS, RMAX, S, NINF = 16, 32, 40, 44, 52, 56, 60, [64, 81], 98
    vm, landed, ld_idx, items, got = ["code"], [-1], {}, [], set()
    def wait_vm(idx):
        if idx > landed[0]:
            a(f"s_waitcnt vmcnt({len(vm) - 1 - idx})"); landed[0] = idx
    def kind(n):
        k, r = divmod(n, 17)
        if r == 16: return ("hole", k)
        m = 16 * k + r
        return ("opt" if (m & 3) == ((m >> 2) & 3) else "own", m)
    def address(i):
        ph, n = divmod(i, PH); b = ph & 1
        kd, m = kind(n)
        if kd == "hole": a(f"s_add_u32 s73, s72, {hx((b << 26) + m * 65536)}"); return "s73"
        a(f"s_add_u32 s7, s70, {hx(b << 26)}" if m == 0 else "s_addk_i32 s7, 0x1000")
        if kd == "own": return "s7"
        a("s_or_b32 s73, s7, s71"); return "s73"
    def issue(i, so):
        isv = i >= 2 * PH; r = RING + (i % NB) * 4
        a(f"buffer_load_dwordx4 v[{r}:{r+3}], {'v3' if isv else 'v2'}, {sV if isv else sK}, {so} offen nt")
        ld_idx[i] = len(vm); vm.append(i)
    def add(cost, needs, fn): items.append((cost, needs, fn))
    def setup1():
        a("s_getreg_b32 s78, hwreg(HW_REG_XCC_ID, 0, 4)")
        a("s_and_b32 s72, s75, 4\ns_lshl_b32 s72, s72, 18\ns_and_b32 s80, s75, 3\ns_mul_i32 s80, s80, 20480\ns_add_u32 s72, s72, s80")
        half_masks(10, 6, 8)
        a("v_and_b32 v9, 3, v1\nv_lshlrev_b32 v9, 4, v9\nv_lshl_or_b32 v14, v7, 6, v9")
        a("v_and_b32 v15, 31, v1\nv_lshlrev_b32 v15, 4, v15")
        a("v_lshl_add_u32 v9, v7, 3, v6\nv_lshlrev_b32 v9, 4, v9\ns_lshl_b32 s80, s76, 9\nv_add_u32 v62, s80, v9")
        a("s_lshl_b32 s80, s6, 9\nv_add_u32 v63, s80, v15")
        a(f"v_mov_b32 v61, 0\nv_mov_b32 v5, 1\nv_mov_b32 v{NINF}, 0xff800000")
    def setup2():
        a("s_waitcnt lgkmcnt(0)\ns_load_dword s77, s[40:41], 0")
        a(f"s_lshr_b32 s90, s6, 5\ns_lshl_b32 s90, s90, 12\ns_add_u32 s90, s90, {ML}\ns_lshl_b32 s91, s6, 7\ns_add_u32 s91, s91, {ML}")
        a("v_bfe_u32 v9, v1, 2, 3\nv_lshlrev_b32 v9, 7, v9\nv_and_b32 v4, 3, v1\nv_lshl_or_b32 v0, v4, 4, v9\ns_and_b32 s80, s74, 3\ns_lshl_b32 s80, s80, 10\nv_add_u32 v0, s80, v0")
        a("v_and_b32 v8, 31, v1\nv_min_u32 v8, 9, v8\nv_and_b32 v9, 3, v8\nv_lshrrev_b32 v8, 2, v8\nv_lshl_add_u32 v8, v9, 3, v8\nv_lshlrev_b32 v8, 7, v8\nv_add_u32 v8, 192, v8")
        a("v_cmp_gt_u32 vcc, 32, v1\nv_cndmask_b32 v99, v8, v0, vcc\nv_lshlrev_b32 v4, 3, v4")
        a("s_lshl_b32 s99, s76, 3\ns_ashr_i32 s98, s71, 31")
        if ctl:
            a(f"s_sub_u32 s65, s2, {256 - nref}\ns_cselect_b32 s64, 0, 1\ns_cmp_eq_u32 s76, 0\ns_cselect_b32 s64, s64, 0\ns_mul_i32 s65, s65, {RS}\ns_add_u32 s65, s65, {REF}")
            a(f"s_add_u32 s66, s40, {REF}\ns_addc_u32 s67, s41, 0\ns_mov_b32 s62, 0\ns_mov_b32 s63, 0")
            if ffb: a(f"s_and_b32 s31, s98, {ffb * nref}")
        for t in range(4): mask64(80 + 2 * t, 0x000F000F000F000F << (4 * t))
        mask64(88, 0x00FF00FF00FF00FF)
        a(f"s_mov_b32 s92, {hx(f2u(128 ** -0.5))}\ns_mov_b32 s93, {hx(LOG2E)}")
    def setup3():
        a("s_waitcnt lgkmcnt(0)"); next_tag()
    def it_qfrag(b):
        L = loop("q")
        a(f"ds_read_b128 v[{BV}:{BV+3}], v14 offset:{QF + b * 256}\ns_waitcnt lgkmcnt(0)")
        empty_check(range(BV, BV + 4), BV + 4); retry(L, 1)
        if b == 0: stamp(1)
        for t in range(4):
            for r in range(4): a(f"v_cndmask_b32 v{BK + 4*t + r}, 0, v{BV + r}, s[{80+2*t}:{81+2*t}]")
    def it_k(i):
        n = i % PH
        mfma(DK + ((n >> 2) & 1) * 4, RING + (i % NB) * 4, BK + 4 * (n & 3), n & 3 == 0)
    def it_kred(b, u):
        d = DK + (u & 1) * 4; s = S[b] + u
        a(f"v_mov_b32_dpp v{s}, v{d} quad_perm:[0,0,0,0] {DPPM}")
        for r in range(1, 4): a(f"v_add_f32_dpp v{s}, v{d+r}, v{s} quad_perm:[{r},{r},{r},{r}] {DPPM}")
        bfr(s, s); a(f"v_mul_f32 v{s}, s92, v{s}"); bfr(s, s)
        om = sum(0x000F000F << (4 * t) for t in range(4) if kind(4 * u + t)[0] == "opt")
        if om: a(f"s_and_b32 s0, s98, {hx(om)}\ns_mov_b32 s1, s0\nv_cndmask_b32 v{s}, v{s}, v{NINF}, s[0:1]")
        a(f"v_mov_b32 v{RMAX}, v{s}" if u == 0 else f"v_max_f32 v{RMAX}, v{RMAX}, v{s}")
    def it_max(b):
        a(f"v_max_f32_dpp v{RMAX}, v{RMAX}, v{RMAX} row_ror:8 {DPPM}\nv_max_f32_dpp v{RMAX}, v{RMAX}, v{RMAX} row_ror:4 {DPPM}")
        rows_allreduce("v_max_f32", RMAX, BV)
        a(f"v_mov_b32 v{MLS}, v{RMAX}\nv_mov_b32 v{MLS+1}, 0")
    def it_sum(b, u0):
        n = min(4, NG - u0)
        for u in range(n): a(f"v_sub_f32 v{BV+u}, v{S[b]+u0+u}, v{MLS}")
        for u in range(n): a(f"v_mul_f32 v{BV+u}, s93, v{BV+u}")
        for u in range(n): a(f"v_exp_f32 v{BV+u}, v{BV+u}")
        for u in range(n): a(f"v_add_f32 v{MLS+1}, v{MLS+1}, v{BV+u}")
    def it_mlpub(b):
        l, Ls = MLS + 1, a.lab("mlast")
        a(f"v_add_f32_dpp v{l}, v{l}, v{l} row_ror:8 {DPPM}\nv_add_f32_dpp v{l}, v{l}, v{l} row_ror:4 {DPPM}")
        rows_allreduce("v_add_f32", l, BV)
        a(f"v_mov_b32 v8, s99\ns_mov_b64 exec, 1\nds_write_b64 v8, v[{MLS}:{MLS+1}] offset:{MRED + 32*b}")
        a(f"ds_add_rtn_u32 v8, v61, v5 offset:{MCNT + 4*b}\ns_mov_b64 exec, -1")
        a(f"ds_read_b64 v[{BV}:{BV+1}], v4 offset:{MRED + 32*b}\ns_waitcnt lgkmcnt(0)\nv_readfirstlane_b32 s96, v8")
        a(f"s_cmp_lg_u32 s96, 2\ns_cbranch_scc1 {Ls}")
        if b == 0: wait_lds(CLR, 0, 2)
        a(f"v_mov_b32 v8, s78\nv_cndmask_b32 v{MLS}, v8, v{BV}, s[80:81]\nv_mov_b32 v{MLS+1}, s77\nv_mov_b32 v{MLS+2}, v{BV+1}\nv_mov_b32 v{MLS+3}, s77")
        a(f"s_add_u32 s96, s91, {b * 32768}\ns_mov_b64 exec, 0xff")
        a(f"buffer_store_dwordx4 v[{MLS}:{MLS+3}], v15, {sWS}, s96 offen sc0 sc1\ns_mov_b64 exec, -1\n{Ls}:")
    def ml_load(b): return f"buffer_load_dwordx4 v[{MLB}:{MLB+3}], {'v0' if b else 'v99'}, {sWS}, s94 offen sc1"
    def ml_issue(b):
        a(f"s_add_u32 s94, s90, {b * 32768}\n" + ml_load(b))
        ld_idx[("ml", b)] = len(vm); vm.append("ml")
    def it_mlget(b):
        L = loop("ml")
        a(f"v_cmp_ne_u32 vcc, s77, v{MLB+1}\nv_cmp_ne_u32 s[96:97], s77, v{MLB+3}\ns_or_b64 vcc, vcc, s[96:97]")
        a(f"s_cbranch_vccnz {L}_r\n{L}_d:")
        cold.append(f"{L}_r:\ns_sleep 4\n{ml_load(b)}\ns_waitcnt vmcnt(0)\ns_sub_u32 s79, s79, 1\ns_cbranch_scc0 {L}\ns_mov_b32 s79, 0\ns_branch {L}_d")
        got.add(b)
        if b == 0: a(f"v_cmp_ne_u32 vcc, s78, v{MLB}\ns_mov_b32 s30, {'vcc_hi' if fast else '1'}")
        M, Ls = MLB + 1, MLB + 2
        a(f"v_max_f32_dpp v{M}, v{MLB}, v{MLB} row_ror:8 {DPPM}")
        for k in (4, 2, 1): a(f"v_max_f32_dpp v{M}, v{M}, v{M} row_ror:{k} {DPPM}")
        rows_allreduce("v_max_f32", M, 8, both=False)
        a(f"v_sub_f32 v8, v{MLB}, v{M}\nv_mul_f32 v8, s93, v8\nv_exp_f32 v8, v8\nv_mul_f32 v{Ls}, v{Ls}, v8")
        for k in (8, 4, 2, 1): a(f"v_add_f32_dpp v{Ls}, v{Ls}, v{Ls} row_ror:{k} {DPPM}")
        rows_allreduce("v_add_f32", Ls, 8, both=False)
        a(f"v_rcp_f32 v{Ls}, v{Ls}\nv_readfirstlane_b32 s4, v{M}\nv_readfirstlane_b32 s5, v{Ls}")
    def it_p(b, u0):
        R = [S[b] + u for u in range(u0, min(u0 + 4, NG))]
        for s in R: a(f"v_subrev_f32 v{s}, s4, v{s}")
        for s in R: a(f"v_mul_f32 v{s}, s93, v{s}")
        for s in R: a(f"v_exp_f32 v{s}, v{s}")
        for s in R: a(f"v_mul_f32 v{s}, s5, v{s}")
        for s in R: a(f"v_cvt_pk_bf16_f32 v{s}, v{s}, v{s}")
    def it_vb(i):
        b, n = divmod(i - 2 * PH, PH)
        for r in range(4): a(f"v_and_b32_dpp v{BV + (i & 1)*4 + r}, v{S[b] + (n >> 2)}, v{10+r} row_newbcast:{4*(n & 3)} {DPPM}")
    def it_v(i): mfma(ACC, RING + (i % NB) * 4, BV + (i & 1) * 4, i % PH == 0)
    def it_opub(b):
        Ls = a.lab("olast")
        if b == 1: stamp(2)
        a(f"s_mov_b32 s95, {OP + b * 0x20000}\ns_mov_b64 exec, s[88:89]")
        a(f"ds_write_b128 v62, v[{ACC}:{ACC+3}] offset:{ORED + b * 2048}")
        a(f"s_mov_b64 exec, 1\nds_add_rtn_u32 v8, v61, v5 offset:{CNT + 4*b}\ns_mov_b32 exec_lo, -1")
        for w in range(4): a(f"ds_read_b128 v[{16+4*w}:{19+4*w}], v15 offset:{ORED + b * 2048 + w * 512}")
        a("s_waitcnt lgkmcnt(0)\nv_readfirstlane_b32 s96, v8")
        add4(16, 16, 20); add4(24, 24, 28)
        a(f"s_cmp_lg_u32 s96, 2\ns_cbranch_scc1 {Ls}\ns_cmp_lg_u32 s30, 0")
        add4(16, 16, 24)
        a(f"s_cbranch_scc1 {Ls}_far\nbuffer_store_dwordx4 v[16:19], v63, {sWS}, s95 offen")
        cold.append(f"{Ls}_far:\nbuffer_store_dwordx4 v[16:19], v63, {sWS}, s95 offen sc0 sc1\ns_branch {Ls}")
        if b == 1: stamp(3)
        a(f"{Ls}:\ns_mov_b64 exec, -1")
    F = lambda fn, *x: (lambda: fn(*x))
    for b in range(2):
        add(30, None, F(it_qfrag, b))
        for n in range(PH):
            add(4, PH * b + n, F(it_k, PH * b + n))
            if n & 3 == 0 and n: add(12, None, F(it_kred, b, (n >> 2) - 1))
            if b == 1 and PH + n == ml0:
                add(40, ("ml", 0), F(it_mlget, 0))
                for u0 in range(0, NG, 4): add(24, None, F(it_p, 0, u0))
        add(16, None, F(it_kred, b, NG - 1)); add(20, None, F(it_max, b))
        for u0 in range(0, NG, 4): add(20, None, F(it_sum, b, u0))
        add(40, None, F(it_mlpub, b))
    for b in range(2):
        for n in range(PH):
            i = (2 + b) * PH + n
            add(4, None, F(it_vb, i)); add(4, i, F(it_v, i))
            if b == 0 and i == ml1:
                add(40, ("ml", 1), F(it_mlget, 1))
                for u0 in range(0, NG, 4): add(24, None, F(it_p, 1, u0))
        add(40, None, F(it_opub, b))
    consumed = [-1]
    def run_items(bud, force=False):
        while items:
            cost, needs, fn = items[0]
            if needs is not None:
                if needs not in ld_idx: return
                if ld_idx[needs] > landed[0]:
                    if not force: return
                    wait_vm(ld_idx[needs])
            if bud <= 0 and not force: return
            items.pop(0); fn(); bud -= cost
            if isinstance(needs, int): consumed[0] = needs
    def act(i, lastc):
        if bias: a(f"s_add_i32 s68, s68, {bias * nref}")
        if ffb and i >= ffb_from: a("s_add_i32 s68, s68, s31")
        if fin and lastc:
            a(f"s_add_i32 s69, s68, {fin[2] * nref}\ns_max_i32 s69, s69, 0\ns_min_u32 s69, s69, 0x1000\ns_mul_i32 s69, s69, {int(fin[1]*655.36/nref)}\ns_lshr_b32 s69, s69, 16\ns_sub_u32 s62, {4*PH}, s69")
        else:
            a(f"s_max_i32 s69, s68, 0\ns_min_u32 s69, s69, 0x4000\ns_mul_i32 s69, s69, {int(gb*655.36/nref)}\ns_lshr_b32 s69, s69, 16\ns_add_u32 s62, s69, {i+1}")
        a(f"s_sub_i32 s69, 0, s68\ns_max_i32 s69, s69, 0\ns_min_u32 s69, s69, 0x4000\ns_mul_i32 s69, s69, {int(gs*655.36/nref)}\ns_lshr_b32 s69, s69, 16\ns_add_u32 s63, s69, {i+1}")
    k0 = 1 if ph0 <= setup_at else 0
    cpts = [c for c in range(ph0 + k0 * E + dl + dw, 4 * PH - 4, E)]
    for i in range(4 * PH):
        while consumed[0] < i - NB:
            n0 = len(items); run_items(1); assert len(items) < n0, "ring stall"
        so = address(i)
        if ctl and i > cpts[0]:
            last = fin and i > cpts[-1]
            wait_vm(ld_idx[i - (fin[0] if last else ctl[0])])
            n = [len(vm) - 1 - ld_idx[i - d] for d in ctl]
            go = a.lab("go")
            a(f"s_cmpk_{'le' if last else 'gt'}_u32 s62, {i}\ns_cbranch_scc1 {go}\ns_waitcnt vmcnt({n[1]})")
            a(f"s_cmpk_le_u32 s63, {i}\ns_cbranch_scc1 {go}\ns_waitcnt vmcnt({n[2]})\n{go}:")
        elif i >= depth: wait_vm(ld_idx[i - depth])
        issue(i, so)
        if i == depth - 1:
            a("s_load_dwordx2 s[40:41], s[0:1], 88\ns_barrier\ns_branch L_stream"); aux_start(); a("L_stream:"); stamp(0); setup1()
        if i == 2 * depth - 1: setup2()
        if i == setup_at: setup3()
        if ctl:
            k, m = divmod(i - ph0, E)
            if ph0 + k * E + dl + dw in cpts:
                lastc = ph0 + k * E + dl + dw == cpts[-1]
                w = 0 if k == k0 else (fin[3] if fin and lastc else ex)
                if m == dl + dw - 1 and w: a("s_memrealtime s[74:75]")
                if m == 0: a("s_memrealtime s[60:61]")
                if m == 1:
                    sk = a.lab("ref")
                    a(f"s_cmp_lg_u32 s64, 0\ns_cbranch_scc1 {sk}_r\n{sk}:")
                    cold.append(f"{sk}_r:\ns_waitcnt lgkmcnt(0)\nv_mov_b32 v6, s60\nv_mov_b32 v7, s77\nv_mov_b32 v8, s60\nv_mov_b32 v9, s77\ns_mov_b64 exec, 0xff\n"
                                f"buffer_store_dwordx4 v[6:9], v15, {sWS}, s65 offen offset:{128*k} sc0 sc1\ns_mov_b64 exec, -1\ns_branch {sk}")
                if m == dl:
                    for q in range(nref): a(f"s_load_dwordx2 s[{44+2*q}:{45+2*q}], s[66:67], {q*RS + 128*k}")
                if m == dl + dw:
                    a("s_waitcnt lgkmcnt(0)\ns_mov_b32 s68, 0")
                    for q in range(nref):
                        a(f"s_sub_u32 s69, s60, s{44+2*q}\ns_cmp_eq_u32 s{45+2*q}, s77\ns_cselect_b32 s69, s69, {-14*dl}\ns_add_u32 s68, s68, s69")
                    if ex or fin:
                        a(f"s_mul_i32 s69, s60, {nref}\ns_sub_u32 s69, s69, s68\ns_sub_u32 s76, s69, s2\ns_mov_b32 s2, s69")
                    if w:
                        a(f"s_mul_i32 s96, s76, {round(256 * (dl + dw - 1) / E)}\ns_lshr_b32 s96, s96, 8\ns_sub_u32 s69, s74, s60\ns_mul_i32 s69, s69, {nref}")
                        a(f"s_sub_i32 s69, s69, s96\ns_mul_i32 s69, s69, {w}\ns_ashr_i32 s69, s69, 4\ns_add_i32 s68, s68, s69")
                    act(i, lastc)
            for c in cpts[1:]:
                for d in (fmids if c == cpts[-1] else mids):
                    if i == c + d - 1: a("s_memrealtime s[74:75]")
                    if i == c + d:
                        a(f"s_mul_i32 s96, s76, {round(256 * (dl + dw - 1 + d) / E)}\ns_lshr_b32 s96, s96, 8\ns_add_u32 s96, s96, s2")
                        a(f"s_waitcnt lgkmcnt(0)\ns_mul_i32 s68, s74, {nref}\ns_sub_u32 s68, s68, s96")
                        act(i, c == cpts[-1])
        if pace and i % tick == 0 and 44 <= i:
            a(f"v_mov_b32 v9, {i}\nds_write_b32 v61, v9 offset:{STEP}")
        for gi in [k for k, g in enumerate(gates) if g == i]:
            assert 0 in got
            a(f"s_mov_b64 exec, 1\nds_write_b32 v61, v5 offset:{PRG + 4*gi}\ns_mov_b64 exec, -1")
        if early:
            el = [0, depth, depth + 2, 2 * depth, 18, 26, 34]
            if i in el: stamp(4 + el.index(i))
        elif i in (34, 68, 102, 136, 170, 204, 238): stamp(3 + i // 34)
        if i == ml0: ml_issue(0)
        if i == ml1: ml_issue(1)
        if i >= P - 1: run_items(budget)
    run_items(0, force=True)
    dump_stamps()
    a("s_endpgm")
    flush_cold()

    a("L_aux:")
    a("s_getreg_b32 s78, hwreg(HW_REG_XCC_ID, 0, 4)")
    srd_tail(52, 4096 * 640 * 2); srd_tail(56, 640 * 1728 * 2); srd_tail(60, 640 * 1728 * 2); srd_tail(64, 1728 * 640 * 2); srd_tail(68, 2560)
    a("v_and_b32 v68, 7, v1"); half_masks(64, 68, 69)
    mask64(88, 0xFF00FF00FF00FF00)
    a(f"s_mov_b32 s92, {hx(f2u(1/640))}\ns_mov_b32 s93, {hx(f2u(1e-5))}")
    a("v_and_b32 v70, 31, v1\ns_lshl_b32 s7, s76, 2\nv_lshl_add_u32 v97, v70, 5, s7\ns_lshl_b32 s7, s76, 9\nv_lshl_add_u32 v101, v70, 4, s7")
    for w in range(1, 4): a(f"v_add_u32 v{97+w}, {1024*w}, v97")
    a(f"s_lshl_b32 s84, s6, 11\ns_add_u32 s84, s84, {QP}\ns_lshl_b32 s85, s74, 14\ns_add_u32 s85, s85, {QP}\ns_add_u32 s86, s85, 4096")
    a(f"v_lshrrev_b32 v102, 5, v1\nv_lshl_add_u32 v101, v102, 13, v101\nv_add_u32 v102, {QPB - QP}, v101")
    a("v_bfe_u32 v103, v1, 2, 1\nv_lshlrev_b32 v103, 8, v103\nv_bfe_u32 v70, v1, 3, 2\nv_lshl_or_b32 v103, v70, 6, v103\nv_and_b32 v70, 3, v1\nv_lshl_or_b32 v103, v70, 2, v103")
    a("s_lshl_b32 s7, s76, 4\nv_add_u32 v103, s7, v103")
    a("s_waitcnt lgkmcnt(0)")
    for n, p in ((52, 16), (56, 20), (60, 22), (64, 24), (68, 26), (40, 30)): a(f"s_mov_b64 s[{n}:{n+1}], s[{p}:{p+1}]")
    a("s_load_dword s77, s[40:41], 0")
    stamp(0)
    a("s_lshr_b32 s7, s73, 3\ns_and_b32 s39, s75, 3\ns_cbranch_scc0 L_role2")
    a("s_sub_u32 s39, s75, 1\ns_lshl_b32 s39, s39, 2\ns_add_u32 s39, s39, s7\ns_cmp_lt_u32 s39, 10\ns_cselect_b32 s38, 1, 0\ns_branch L_role")
    a("L_role2:\ns_lshl_b32 s39, s7, 3\ns_add_u32 s39, s39, s72\ns_cmp_lt_u32 s39, 27\ns_cselect_b32 s38, 2, 0\ns_lshl_b32 s39, s39, 1\ns_lshr_b32 s7, s75, 2\ns_add_u32 s39, s39, s7")
    a("L_role:")
    def wo_addr(d):
        a("s_lshl_b32 s80, s72, 2\ns_add_u32 s80, s80, s76\ns_lshl_b32 s7, s80, 7\nv_lshrrev_b32 v104, 5, v1\nv_lshl_add_u32 v104, v104, 6, s7")
        a(f"v_and_b32 v105, 16, v1\nv_add_u32 v104, v104, v105\nv_mul_u32_u24 v104, 1280, v104\ns_lshl_b32 s7, s39, 7\nv_lshl_add_u32 v105, v6, 3, s7\nv_add_u32 v{d}, v104, v105")
    def dn_addr(d):
        a("s_mul_i32 s99, s76, 3\ns_cmp_eq_u32 s76, 3\ns_subb_u32 s99, s99, 0")
        a(f"s_lshl_b32 s7, s39, 5\nv_lshl_add_u32 v104, v7, 3, s7\nv_mul_u32_u24 v104, 1280, v104\ns_lshl_b32 s7, s99, 7\nv_lshl_add_u32 v105, v6, 3, s7\nv_add_u32 v{d}, v104, v105")
    def wo_row(k, n): return 32 * (k >> 2) + 4 * ((k >> 1) & 1) + 2 * (k & 1) + (n >> 1) + 8 * (n & 1)
    a("s_waitcnt vmcnt(10)")
    for i in range(10): unpack(44 + 2 * i, 45 + 2 * i, 8 + i)
    def red32(v):
        for k in (8, 4, 2, 1): a(f"v_add_f32_dpp v{v}, v{v}, v{v} row_ror:{k} {DPPM}")
        rows_allreduce("v_add_f32", v, 71, both=False)
    pk("add", 8, 44, 46)
    for i in range(2, 10): pk("add", 8, 8, 44 + 2 * i)
    a("v_add_f32 v8, v8, v9"); red32(8)
    a("v_mul_f32 v8, s92, v8")
    for i in range(10): a(f"v_pk_add_f32 v[{44+2*i}:{45+2*i}], v[{44+2*i}:{45+2*i}], v[8:9] op_sel_hi:[1,0] neg_lo:[0,1] neg_hi:[0,1]")
    pk("mul", 10, 44, 44)
    for i in range(1, 10): a(f"v_pk_fma_f32 v[10:11], v[{44+2*i}:{45+2*i}], v[{44+2*i}:{45+2*i}], v[10:11]")
    a("v_add_f32 v10, v10, v11"); red32(10)
    a("v_mul_f32 v10, s92, v10")
    bfr(10, 10); bfr(8, 8); a("v_add_f32 v10, s93, v10"); bfr(10, 10); a("v_sqrt_f32 v10, v10"); bfr(10, 10); a("v_rcp_f32 v10, v10")
    a("v_readlane_b32 s80, v8, 0\nv_readlane_b32 s81, v8, 32\nv_readlane_b32 s82, v10, 0\nv_readlane_b32 s83, v10, 32")
    a("v_mov_b32 v8, s80\nv_mov_b32 v9, s81\nv_mov_b32 v10, s82\nv_mov_b32 v11, s83")
    a("v_cndmask_b32 v8, v8, v9, s[88:89]\nv_cndmask_b32 v10, v10, v11, s[88:89]")
    a("s_waitcnt vmcnt(5)")
    for i in range(5): a(f"v_lshlrev_b32 v{18+i}, 16, v{18+i}\nv_sub_f32 v{18+i}, v{18+i}, v8")
    for i in range(5): bfr(18 + i, 18 + i)
    for i in range(5): a(f"v_mul_f32 v{18+i}, v{18+i}, v10\nv_cvt_pk_bf16_f32 v{18+i}, v{18+i}, v{18+i}")
    for i in range(6):
        if i < 5:
            for r in range(4): a(f"v_and_b32 v{44+4*i+r}, v{18+i}, v{64+r}")
        if i: a(f"s_waitcnt vmcnt({5-i})"); mfma(72, 20 + 4 * i, 40 + 4 * i, i == 1)
    a("v_mov_b32 v61, 0\ns_waitcnt lgkmcnt(0)"); next_tag()
    a("s_add_u32 s83, s77, s78\ns_add_u32 s83, s83, 1")
    a(f"ds_write_b128 v96, v[72:75] offset:{QRED}")
    L = loop("qred")
    for w in range(4): a(f"ds_read2_b32 v[{76+2*w}:{77+2*w}], v{97+w} offset0:0 offset1:4")
    a("s_waitcnt lgkmcnt(0)"); pk("add", 76, 76, 78); pk("add", 80, 80, 82); pk("add", 76, 76, 80)
    a("v_cmp_u_f32 vcc, v76, v77"); retry(L)
    a("v_mov_b32 v78, v77\nv_mov_b32 v77, s83\nv_mov_b32 v79, s83\ns_mov_b32 exec_hi, 0")
    a(f"buffer_store_dwordx4 v[76:79], v101, {sWS}, s84 offen\ns_mov_b64 exec, -1\ns_add_u32 s84, s84, {QPB - QP}\ns_mov_b32 s87, 0")
    stamp(1)
    if qpre: a(f"s_sleep {qpre}")
    a("v_mov_b32 v15, v101\ns_mov_b32 s7, s83")
    L = loop("qg")
    for k in range(4): a(f"buffer_load_dwordx4 v[{80+4*k}:{83+4*k}], v15, {sWS}, s{85+(k>>1)} offen offset:{2048*(k&1)} sc1")
    a("s_waitcnt vmcnt(0)")
    for k in range(8): a(f"v_xor_b32 v{81+2*k}, s7, v{81+2*k}")
    a("v_or3_b32 v81, v81, v83, v85\nv_or3_b32 v87, v87, v89, v91\nv_or3_b32 v81, v81, v93, v95\nv_or_b32 v81, v81, v87\nv_cmp_ne_u32 vcc, 0, v81")
    a(f"s_cbranch_vccnz {L}_r\n{L}_d:")
    cold.append(f"{L}_r:\ns_sleep {qsleep}\ns_add_u32 s87, s87, 1\ns_cmp_lg_u32 s87, {qB}\ns_cbranch_scc1 {L}_s\n"
                f"v_mov_b32 v77, s77\nv_mov_b32 v79, s77\ns_mov_b32 exec_hi, 0\nbuffer_store_dwordx4 v[76:79], v101, {sWS}, s84 offen sc0 sc1\ns_mov_b64 exec, -1\n"
                f"{L}_s:\ns_cmp_gt_u32 s87, {qB}\ns_cselect_b32 s7, s87, 0\ns_bitcmp1_b32 s7, 0\ns_cselect_b64 vcc, -1, 0\ns_cselect_b32 s7, s77, s83\n"
                f"v_cndmask_b32 v15, v101, v102, vcc\ns_sub_u32 s79, s79, 1\ns_cbranch_scc0 {L}\ns_mov_b32 s79, 0\ns_branch {L}_d")
    a("v_add_f32 v80, v80, v84\nv_add_f32 v82, v82, v86\nv_add_f32 v88, v88, v92\nv_add_f32 v90, v90, v94\nv_add_f32 v80, v80, v88\nv_add_f32 v82, v82, v90")
    a("v_mov_b32 v81, v80\nv_mov_b32 v83, v82\nv_permlane32_swap_b32 v80, v81\nv_permlane32_swap_b32 v82, v83\nv_add_f32 v80, v80, v81\nv_add_f32 v82, v82, v83")
    a(f"v_cvt_pk_bf16_f32 v80, v80, v82\nv_min_u32 v80, -2, v80\nds_write_b32 v103, v80 offset:{QF}")
    stamp(2)
    a("s_mov_b32 s84, s38\ns_mov_b32 s85, s39")
    a("s_cmp_lg_u32 s76, 0\ns_cbranch_scc1 L_noclr")
    a("v_and_b32 v8, 31, v1\nv_lshlrev_b32 v10, 4, v8\nv_lshrrev_b32 v9, 5, v1\nv_lshl_or_b32 v8, v9, 17, v10")
    a(f"s_lshl_b32 s7, s6, 9\ns_add_u32 s7, s7, {OP}\nbuffer_store_dwordx4 v[112:115], v8, {sWS}, s7 offen sc0 sc1")
    a("s_cmp_lg_u32 s84, 1\ns_cbranch_scc1 L_clr2")
    a("v_mul_u32_u24 v8, 20480, v7\nv_lshl_add_u32 v8, v6, 4, v8")
    a(f"s_mul_i32 s7, s72, 2560\ns_lshl_b32 s80, s85, 8\ns_add_u32 s7, s7, s80\ns_add_u32 s7, s7, {YP}")
    a(f"s_mov_b32 exec_hi, 0\nbuffer_store_dwordx4 v[112:115], v8, {sWS}, s7 offen sc0 sc1\ns_mov_b64 exec, -1")
    a("L_clr2:\ns_cmp_lg_u32 s84, 2\ns_cbranch_scc1 L_clr3")
    a(f"v_lshlrev_b32 v8, 4, v1\ns_mul_i32 s7, s85, 5120\ns_add_u32 s7, s7, {DP}")
    for k in range(5): a(f"buffer_store_dwordx4 v[112:115], v8, {sWS}, s7 offen sc0 sc1\ns_add_u32 s7, s7, 1024")
    a(f"L_clr3:\ns_waitcnt vmcnt(0)\nds_write_b32 v61, v61 offset:{CLR}")
    a("L_noclr:")
    if set(skip) & set('ogd'):
        for r in range(128, 256): a(f"v_mov_b32 v{r}, 0")
    a("s_mov_b32 s90, 0x05040100\ns_mov_b32 s91, 0x07060302\ns_mov_b32 s98, 0")
    mask64(88, 0x0001000100010001)
    a("s_cmp_eq_u32 s84, 2\ns_cbranch_scc1 L_ffn\ns_cmp_eq_u32 s84, 1\ns_cbranch_scc1 L_wo")
    if bell:
        if helper:
            a("s_cmp_lt_u32 s75, 5\ns_cbranch_scc1 L_nohelp\ns_lshr_b32 s7, s73, 3\ns_lshl_b32 s7, s7, 3\ns_add_u32 s7, s7, s72\ns_mul_i32 s94, s7, 81920")
            a("s_sub_u32 s7, s75, 5\ns_lshl_b32 s7, s7, 2\ns_add_u32 s7, s7, s76\ns_lshl_b32 s7, s7, 10\nv_lshl_add_u32 v2, v1, 4, s7\nv_add_u32 v3, 73728, v2")
            a(f"v_cmp_gt_u32 vcc, 81920, v3\nv_mov_b32 v9, {hx(OOB)}\nv_cndmask_b32 v3, v9, v2, vcc")
            if helper == 2: wait_lds(CNT + 4, 3, 4); a("s_sleep 2")
            else: wait_lds(PRG + 12, 1, 4)
            for k in range(7): a(f"buffer_load_dwordx4 v[{64+4*k}:{67+4*k}], {'v3' if k == 6 else 'v2'}, {sWD}, s94 offen nt\ns_add_u32 s94, s94, 12288")
            a("s_branch L_done\nL_nohelp:")
        a("s_cmp_lg_u32 s73, 27\ns_cbranch_scc1 L_done\ns_cmp_lg_u32 s76, 1\ns_cbranch_scc1 L_done")
        a(f"v_and_b32 v2, 31, v1\nv_lshlrev_b32 v2, 9, v2\ns_lshl_b32 s94, s72, 14\ns_add_u32 s94, s94, {OP + 0x20000}")
        a(f"v_lshrrev_b32 v3, 3, v1\nv_mul_u32_u24 v3, {RS}, v3\nv_and_b32 v9, 7, v1\nv_lshl_add_u32 v3, v9, 4, v3\ns_lshl_b32 s95, s72, 7\ns_add_u32 s95, s95, {BELL}")
        for r in range(4): a(f"v_mov_b32 v{12+r}, s77")
        wait_lds(CNT + 4, 3, 4)
        a("s_mov_b32 exec_hi, 0")
        L = loop("bw")
        a(f"buffer_load_dword v9, v2, {sWS}, s94 offen sc1\ns_waitcnt vmcnt(0)\nv_cmp_eq_u32 vcc, -1, v9"); retry(L)
        a(f"s_mov_b64 exec, -1\nbuffer_store_dwordx4 v[12:15], v3, {sWS}, s95 offen sc0 sc1")
        stamp(3)
        a("L_done:")
    dump_stamps()
    a("s_endpgm")
    flush_cold()

    def proof(r):
        a(f"v_lshlrev_b32 v{r}, 7, v{r}\ns_mov_b32 s7, {ML + 64}")
        L = loop("pf")
        a(f"buffer_load_dwordx2 v[64:65], v{r}, {sWS}, s7 offen sc1\ns_waitcnt vmcnt(0)\nv_cmp_ne_u32 vcc, s77, v65"); retry(L, 16)
    def staged(nbatch, nld, win, load_fn, finish_fn, at=None):
        n = nbatch * nld
        ns = (win + nld - 1) // nld + 1
        for i in range(n + win):
            if i >= win:
                a(f"s_waitcnt vmcnt({min(n, i) - (i - win) - 1})")
                if (i - win + 1) % nld == 0: finish_fn((i - win) // nld, ((i - win) // nld) % ns)
            if i < n:
                if at and i % at[2] == 0:
                    L = loop("pace")
                    a(f"ds_read_b32 v8, v61 offset:{STEP}\ns_waitcnt lgkmcnt(0)\nv_cmp_gt_i32 vcc, {at[0] + (i // at[2]) * at[1]}, v8"); retry(L, 1)
                load_fn(i // nld, i % nld, (i // nld) % ns)

    a("L_wo:")
    wo_addr(2)
    def wo_load(k, n, slot):
        reg = 64 + slot * 8 + n * 2
        a(f"s_mov_b32 s7, {wo_row(k, n) * 1280}\nbuffer_load_dwordx2 v[{reg}:{reg+1}], v2, {sWO}, s7 offen nt")
    def wo_finish(k, slot):
        for p in range(2):
            i, r, t = k >> 1, 2 * (k & 1) + p, 64 + slot * 8 + p * 4
            for q in range(4): a(f"v_perm_b32 v{128 + (i*4 + q)*4 + r}, v{t + 2 + (q>>1)}, v{t + (q>>1)}, s{90 + (q&1)}")
    if 'o' not in skip: staged(8, 4, wo_w, wo_load, wo_finish, pace and pace[0])
    stamp(3)
    wait_lds(PRG, 1, 8)
    a("s_lshl_b32 s7, s80, 3\nv_and_b32 v9, 7, v1\nv_add_u32 v9, s7, v9"); proof(9)
    a(f"s_lshl_b32 s94, s80, 12\ns_add_u32 s94, s94, {OP}\nv_lshlrev_b32 v59, 4, v6\nv_lshl_or_b32 v2, v7, 10, v59")
    a(f"s_lshl_b32 s7, s76, 8\ns_add_u32 s7, s7, {RED}\nv_lshl_add_u32 v3, v7, 4, s7\nv_add_u32 v5, {RED}, v59")
    a(f"s_mul_i32 s95, s72, 2560\ns_lshl_b32 s7, s85, 8\ns_add_u32 s95, s95, s7\ns_add_u32 s95, s95, {YP}")
    wait_lds(PRG + 4, 1, 8)
    a("L_wo_b:")
    stamp(4)
    L = loop("h1")
    for k, off in enumerate((0, 512, 256, 768)): a(f"buffer_load_dwordx4 v[{64+4*k}:{67+4*k}], v2, {sWS}, s94 offen offset:{off} sc1")
    a("s_waitcnt vmcnt(2)"); add4(64, 64, 68); pk("add", 80, 64, 66)
    a("s_waitcnt vmcnt(0)"); add4(68, 72, 76); pk("add", 80, 80, 68); pk("add", 80, 80, 70)
    a("v_cmp_u_f32 vcc, v80, v81")
    if inc1:
        a("s_mov_b64 exec, -1")
        retry(L, gentle=16, pre="s_mov_b64 exec, vcc\n", post="s_mov_b64 exec, -1\n")
        for r in range(4): a(f"v_permlane32_swap_b32 v{64+r}, v{68+r}")
    else:
        for r in range(4): a(f"v_permlane32_swap_b32 v{64+r}, v{68+r}")
        retry(L, gentle=16)
    stamp(5)
    add4(64, 64, 68)
    a("v_permlane16_swap_b32 v64, v66\nv_permlane16_swap_b32 v65, v67"); pk("add", 64, 64, 66)
    a("v_cvt_pk_bf16_f32 v72, v64, v65")
    def wo_b(i, rs=range(4)):
        for r in rs: a(f"v_mov_b32_dpp v{80+4*i+r}, v72 row_newbcast:{4*i+r} {DPPM}")
    wo_b(0); wo_b(1, (0, 1))
    fill = [(1, (2, 3)), (2, (0, 1)), (2, (2, 3)), (3, (0, 1)), (3, (2, 3))]
    for i in range(4):
        for q in range(4):
            mfma(96 + 4 * q, 128 + (i * 4 + q) * 4, 80 + 4 * i, i == 0)
            if fill: wo_b(*fill.pop(0))
    a("s_cmp_lg_u32 s76, 0\ns_mov_b64 exec, s[88:89]")
    for q in range(4): a(f"ds_write_b128 v3, v[{96+4*q}:{99+4*q}] offset:{64*q}")
    a("s_mov_b64 exec, 0xffff\ns_cbranch_scc1 L_wo_next")
    L = loop("yr")
    for w in range(4): a(f"ds_read_b128 v[{64+4*w}:{67+4*w}], v5 offset:{256*w}")
    a("s_waitcnt lgkmcnt(0)"); add4(64, 64, 68); add4(72, 72, 76); add4(64, 64, 72); nan4(64, 68); retry(L)
    a(f"buffer_store_dwordx4 v[64:67], v59, {sWS}, s95 offen sc0 sc1")
    stamp(6)
    a("L_wo_next:\ns_mov_b64 exec, -1\ns_cmp_lg_u32 s98, 0\ns_cbranch_scc1 L_wo_end")
    a("s_add_u32 s94, s94, 0x20000\ns_add_u32 s95, s95, 20480\nv_add_u32 v3, 1024, v3\nv_add_u32 v5, 1024, v5\ns_mov_b32 s98, 1\ns_waitcnt vmcnt(0)")
    wait_lds(CNT + 4, 3, 2)
    a("s_branch L_wo_b\nL_wo_end:")
    dump_stamps()
    a("s_endpgm")
    flush_cold()

    a("L_ffn:")
    def rowbase(d, q, t):
        a(f"v_lshrrev_b32 v{t}, 4, v{q}\nv_bfe_u32 v{d}, v{q}, 2, 2\nv_lshl_or_b32 v{d}, v{t}, 6, v{d}\nv_and_b32 v{t}, 3, v{q}\nv_lshl_or_b32 v{d}, v{t}, 4, v{d}")
    a("s_mul_i32 s7, s76, 40\nv_mul_u32_u24 v12, 10, v7\nv_add_u32 v12, s7, v12\ns_lshl_b32 s7, s85, 6\nv_lshl_add_u32 v13, v6, 2, s7")
    dn_addr(126)
    def dn_weights(win, r0, r1):
        a(f"s_mov_b32 s7, {2560*r0}\ns_cmp_lt_u32 s76, 2\ns_cselect_b32 s52, s7, {hx(OOB)}")
        for e in range(2 * r0, 2 * r1):
            for k in range(3):
                if 3 * (e - 2 * r0) + k >= win: a(f"s_waitcnt vmcnt({win - 1})")
                a(f"buffer_load_dwordx2 v[{64+16*k+2*e}:{65+16*k+2*e}], v126, {sWD}, {'s7' if k < 2 else 's52'} offen offset:{k*128} nt")
            a("s_addk_i32 s7, 1280\ns_addk_i32 s52, 1280")
        for r in range(r0, r1):
            a(f"s_waitcnt vmcnt({min(win - 1, 6*(r1 - 1 - r))})")
            for k in range(3):
                for q in range(4):
                    t = 64 + k * 16 + 4 * r + (q >> 1)
                    a(f"v_perm_b32 v{208 + (k*4 + q)*4 + r}, v{t+2}, v{t}, s{90+(q&1)}")
    if not late: rl = 4
    if rl: dn_weights(dn_w, 0, rl)
    for r in range(1, 4): a(f"s_mov_b32 s{80+r}, {r * 13824}")
    a("s_mov_b32 s80, 3456")
    def gu_load(k, n, slot):
        (m, i), half, r = divmod(k, 5), n >> 2, n & 3
        if not gusep: m, i, half = n >> 2, k >> 1, k & 1
        if r == 0:
            a(f"v_add_u32 v8, {2*i + half}, v12"); rowbase(9, 8, 10); a("v_mad_u32_u24 v9, v9, s80, v13")
        a(f"buffer_load_dword v{64 + slot*8 + n}, v9, {sWU if m else sWG}, {'0' if r == 0 else f's{80+r}'} offen {gpol}")
    def gu_finish(k, slot):
        for hh in range(2):
            (m, i), half = divmod(k, 5), hh
            if not gusep: m, i, half = hh, k >> 1, k & 1
            for par in range(2):
                for rr in range(2):
                    t = 64 + slot * 8 + hh * 4 + 2 * rr
                    a(f"v_perm_b32 v{128 + (i*4 + m*2 + par)*4 + 2*half + rr}, v{t+1}, v{t}, s{90+par}")
    if 'g' not in skip: staged(10, 8, gu_w, gu_load, gu_finish, pace and pace[1])
    stamp(3)
    wait_lds(PRG, 1, 8)
    a("s_mul_i32 s7, s76, 5\ns_lshr_b32 s7, s7, 1\nv_lshrrev_b32 v8, 3, v1\nv_min_u32 v8, 2, v8\nv_add_u32 v8, s7, v8")
    a("v_and_b32 v9, 3, v8\nv_lshrrev_b32 v8, 2, v8\nv_lshl_add_u32 v8, v9, 3, v8\nv_and_b32 v9, 7, v1\nv_lshl_add_u32 v8, v9, 5, v8\nv_add_u32 v44, 1, v8")
    proof(44)
    a("s_cmp_lt_u32 s85, 40\ns_cselect_b32 s87, s76, 0\ns_cmp_lg_u32 s87, 3\ns_cbranch_scc1 L_pf2")
    a("v_min_u32 v8, 53, v1\nv_bfe_u32 v9, v8, 1, 3\nv_lshrrev_b32 v10, 4, v8\nv_and_b32 v8, 1, v8\nv_lshl_add_u32 v8, v10, 1, v8\nv_lshlrev_b32 v8, 2, v8\nv_lshl_add_u32 v44, v9, 5, v8")
    proof(44)
    a("L_pf2:\nv_add_u32 v8, v12, v6"); rowbase(9, 8, 10)
    a(f"v_cmp_gt_u32 vcc, 10, v6\nv_mov_b32 v10, {hx(OOB)}\nv_lshlrev_b32 v2, 4, v8\nv_cndmask_b32 v2, v10, v2, vcc")
    a("v_lshlrev_b32 v3, 1, v9\nv_cndmask_b32 v3, v10, v3, vcc")
    a(f"v_lshlrev_b32 v5, 2, v9\nv_add_u32 v5, {HTAB}, v5\nv_mov_b32 v11, {DUMP - 2560}\nv_cndmask_b32 v5, v11, v5, vcc")
    for b in range(2):
        for r in range(4): a(f"buffer_load_ushort v{112+4*b+r}, v3, {sX}, 0 offen offset:{1280*b + 8*r}")
    a(f"s_lshl_b32 s7, s76, 5\ns_add_u32 s7, s7, {STAT}\nv_lshl_add_u32 v50, v7, 3, s7\nv_lshlrev_b32 v51, 3, v6\nv_add_u32 v51, {STAT}, v51")
    a(f"s_lshl_b32 s7, s76, 8\ns_add_u32 s7, s7, {RED}\nv_lshl_add_u32 v52, v7, 4, s7")
    a(f"v_and_b32 v8, 1, v1\nv_lshlrev_b32 v8, 6, v8\nv_lshl_or_b32 v8, v7, 4, v8\nv_bfe_u32 v9, v1, 1, 2\nv_lshl_or_b32 v8, v9, 2, v8\nv_add_u32 v53, {RED}, v8")
    a("s_lshl_b32 s7, s99, 8\ns_add_u32 s7, s7, 2560\nv_lshl_add_u32 v54, v7, 6, s7\nv_bfe_u32 v8, v1, 2, 1\nv_mul_u32_u24 v8, 2560, v8\nv_sub_u32 v54, v54, v8")
    a("v_and_b32 v8, 3, v1\nv_lshl_add_u32 v54, v8, 4, v54")
    for q in range(4): a(f"v_cmp_eq_u32 vcc, {q}, v8\nv_cndmask_b32 v{12+q}, 0, -1, vcc")
    a("v_lshrrev_b32 v8, 3, v1\nv_mul_u32_u24 v9, 5120, v8\nv_and_b32 v11, 7, v1\nv_lshl_add_u32 v55, v11, 4, v9")
    a("s_lshl_b32 s7, s85, 7\nv_add_u32 v55, s7, v55\nv_cmp_gt_u32 vcc, 6, v8\nv_cndmask_b32 v56, v10, v55, vcc")
    a("v_lshlrev_b32 v49, 7, v11")
    a("v_and_b32 v8, 3, v1\nv_bfe_u32 v9, v1, 2, 1\nv_lshl_or_b32 v8, v9, 4, v8\nv_bfe_u32 v9, v1, 4, 1\nv_lshl_or_b32 v8, v9, 3, v8\nv_bfe_u32 v9, v1, 5, 1\nv_lshl_or_b32 v8, v9, 2, v8")
    a(f"s_lshl_b32 s7, s85, 5\nv_add_u32 v8, s7, v8\nv_lshlrev_b32 v57, 1, v8\nv_lshlrev_b32 v58, 2, v8\nv_add_u32 v58, {HTAB}, v58")
    for k in range(4): a(f"s_mov_b32 s{80+k}, {YP + 5120*k}")
    mask64(50, 0x03FF03FF03FF03FF)
    for k in (32, 33, 34, 35, 36, 37, 38, 95, 97): a(f"s_mov_b32 s{k}, {hx(OOB)}")
    c1 = -2.0 * 0.7978845608028654 * 1.4426950408889634
    a(f"s_mov_b32 s96, {hx(f2u(c1 * 0.044715))}\nv_mov_b32 v59, {hx(f2u(c1))}\ns_mul_i32 s94, s72, {RS}\ns_add_u32 s94, s94, {BELL}")
    mask64(4, 0x00FF00FF00FF00FF)
    a("s_waitcnt vmcnt(0)")
    for r in range(4): a(f"v_lshlrev_b32 v{44+r}, 16, v{112+r}")
    wait_lds(PRG + 8, 1, 8)
    a("L_ffn_b:")
    stamp(4)
    if xm: a("v_mov_b32 v124, 0\nv_mov_b32 v125, 0\ns_mov_b64 exec, s[50:51]")
    L = loop("h2")
    for k in range(8): a(f"buffer_load_dwordx4 v[{64+4*k}:{67+4*k}], v2, {sWS}, s{80+(k>>1)} offen offset:{2560*(k&1)} sc1")
    for k in range(1, 8):
        a(f"s_waitcnt vmcnt({7-k})"); add4(64, 64, 64 + 4 * k)
    nan4(64, 70)
    a("v_cvt_pk_bf16_f32 v68, v64, v65\nv_cvt_pk_bf16_f32 v69, v66, v67")
    retry(L, gentle=16)
    stamp(5)
    unpack(64, 65, 68); unpack(66, 67, 69); add4(64, 64, 44)
    a("v_cvt_pk_bf16_f32 v68, v64, v65\nv_cvt_pk_bf16_f32 v69, v66, v67")
    unpack(120, 121, 68); unpack(122, 123, 69)
    pk("mul", 72, 120, 120); pk("add", 70, 120, 122); a("v_pk_fma_f32 v[72:73], v[122:123], v[122:123], v[72:73]")
    a("v_add_f32 v124, v70, v71\nv_add_f32 v125, v72, v73")
    if xm: a("s_mov_b64 exec, -1")
    for k in (8, 4, 2, 1): a(f"v_add_f32_dpp v124, v124, v124 row_ror:{k} {DPPM}\nv_add_f32_dpp v125, v125, v125 row_ror:{k} {DPPM}")
    a("ds_write_b64 v50, v[124:125]")
    L = loop("st")
    a("ds_read_b64 v[70:71], v51\ns_waitcnt lgkmcnt(0)\nv_cmp_u_f32 vcc, v70, v71")
    a(f"v_add_f32_dpp v70, v70, v70 row_ror:8 {DPPM}\nv_add_f32_dpp v71, v71, v71 row_ror:8 {DPPM}")
    retry(L)
    for k in (4, 2, 1): a(f"v_add_f32_dpp v70, v70, v70 row_ror:{k} {DPPM}\nv_add_f32_dpp v71, v71, v71 row_ror:{k} {DPPM}")
    a("v_mul_f32 v70, s92, v70\nv_mul_f32 v71, s92, v71\nv_fma_f32 v71, -v70, v70, v71\nv_max_f32 v71, 0, v71")
    a("v_cvt_pk_bf16_f32 v72, v70, v71\nv_and_b32 v71, 0xffff0000, v72\nv_add_f32 v71, s93, v71\nv_lshlrev_b32 v70, 16, v72")
    bfr(71, 71); a("v_sqrt_f32 v74, v71")
    for h in (0, 2): a(f"v_pk_add_f32 v[{64+h}:{65+h}], v[{120+h}:{121+h}], v[70:71] op_sel_hi:[1,0] neg_lo:[0,1] neg_hi:[0,1]")
    bfr(74, 74); a("v_rcp_f32 v74, v74\nv_cvt_pk_bf16_f32 v68, v64, v65\nv_cvt_pk_bf16_f32 v69, v66, v67")
    unpack(64, 65, 68); unpack(66, 67, 69)
    for h in (0, 2): a(f"v_pk_mul_f32 v[{64+h}:{65+h}], v[{64+h}:{65+h}], v[74:75] op_sel_hi:[1,0]")
    a("v_cvt_pk_bf16_f32 v68, v64, v65\nv_cvt_pk_bf16_f32 v69, v66, v67")
    def gu_b(i, rs=range(4)):
        for r in rs: a(f"v_mov_b32_dpp v{72+4*i+r}, v{68+(r&1)} row_newbcast:{2*i+(r>>1)} {DPPM}")
    gu_b(0); gu_b(1, (0, 1))
    fill = [F(gu_b, 1, (2, 3))] + [F(gu_b, i, rs) for i in (2, 3, 4) for rs in ((0, 1), (2, 3))]
    fill += [F(a, f"ds_write_b32 v5, v{120+r} offset:{16*r}") for r in range(4)]
    for i in range(5):
        for q in range(4):
            mfma(96 + 4 * q, 128 + (i * 4 + q) * 4, 72 + 4 * i, i == 0)
            if fill: fill.pop(0)()
    a("s_mov_b64 exec, s[88:89]")
    for q in range(4): a(f"ds_write_b128 v52, v[{96+4*q}:{99+4*q}] offset:{64*q}")
    a("s_mov_b64 exec, -1")
    stamp(6)
    L = loop("gr")
    for w in range(4): a(f"ds_read2_b32 v[{64+2*w}:{65+2*w}], v53 offset0:{64*w} offset1:{64*w+32}")
    a("s_waitcnt lgkmcnt(0)"); pk("add", 64, 64, 66); pk("add", 68, 68, 70); pk("add", 64, 64, 68)
    a("v_cmp_u_f32 vcc, v64, v65\nv_cvt_pk_bf16_f32 v66, v64, v65\nv_lshlrev_b32 v64, 16, v66")
    retry(L)
    a("v_mul_f32 v67, v64, v64\nv_fma_f32 v67, v67, s96, v59\nv_mul_f32 v67, v67, v64\nv_exp_f32 v67, v67\nv_and_b32 v65, 0xffff0000, v66")
    a("v_add_f32 v67, 1.0, v67\nv_rcp_f32 v67, v67\nds_read_b32 v48, v58\nv_mul_f32 v64, v64, v67")
    bfr(64, 64)
    a(f"v_mul_f32 v64, v64, v65\nv_mov_b32_dpp v65, v64 quad_perm:[1,1,3,3] {DPPM}\nv_cvt_pk_bf16_f32 v64, v64, v65")
    def dn_txt(q, r, bank): return f"v_and_b32_dpp v{16+4*q+r}, v64, v{12+q} row_newbcast:{2*r} row_mask:0xf bank_mask:{bank}"
    def dn_b(q, rs=range(4)):
        for r in rs: a(dn_txt(q, r, "0x5"))
    a("s_cmp_eq_u32 s98, 0\ns_cbranch_scc1 L_keep\nL_kept:")
    cold.append("L_keep:\n" + "\n".join(dn_txt(q, r, "0xa") for q in range(4) for r in range(4)) + "\ns_branch L_kept")
    dn_b(0); dn_b(1, (0, 1))
    fill = [(1, (2, 3)), (2, (0, 1)), (2, (2, 3)), (3, (0, 1)), (3, (2, 3))]
    order = [(k, q) for q in range(4) for k in range(2)] + [(2, q) for q in range(4)]
    for n, (k, q) in enumerate(order):
        if n == 8: a("s_cmp_ge_u32 s76, 2\ns_cbranch_scc1 L_dn3")
        mfma(84 + 4 * k, 208 + (k * 4 + q) * 4, 16 + 4 * q, q == 0)
        if fill: dn_b(*fill.pop(0))
    a("L_dn3:\ns_mov_b64 exec, s[4:5]")
    for k in range(3):
        if k == 2: a("s_cbranch_scc1 L_dn4")
        a(f"buffer_store_dwordx4 v[{84+4*k}:{87+4*k}], v54, {sWS}, s95 offen offset:{256*k} sc0 sc1")
    a("L_dn4:\ns_mov_b64 exec, -1")
    stamp(7)
    a("s_cmp_lg_u32 s87, 3\ns_cbranch_scc1 L_ffn_next")
    if pre3: a(f"s_sleep {pre3}")
    R3 = [64, 68, 72, 76, 80, 96, 100]
    L = loop("h3")
    for k in range(7): a(f"buffer_load_dwordx4 v[{R3[k]}:{R3[k]+3}], {'v56' if k == 6 else 'v55'}, {sWS}, s{32+k} offen sc1")
    for k in range(1, 7):
        a(f"s_waitcnt vmcnt({6-k})" + (" lgkmcnt(0)" if k == 1 else "")); add4(64, 64, R3[k])
    a("v_permlane32_swap_b32 v64, v65\nv_permlane32_swap_b32 v66, v67\nv_add_f32 v64, v64, v65\nv_add_f32 v66, v66, v67\nv_cmp_u_f32 vcc, v64, v66")
    a("v_permlane16_swap_b32 v64, v66\nv_add_f32 v64, v64, v66")
    retry(L)
    stamp(8)
    a(f"v_add_f32_dpp v64, v64, v64 row_ror:8 {DPPM}"); bfr(64, 64)
    a(f"v_add_f32 v64, v64, v48\nv_cvt_pk_bf16_f32 v64, v64, v64\ns_mov_b64 exec, s[4:5]\nbuffer_store_short v64, v57, {sOUT}, s97 offen\ns_mov_b64 exec, -1")
    stamp(9)
    a("s_cmp_lg_u32 s85, 0\ns_cbranch_scc1 L_ffn_next")
    a(f"v_mov_b32 v8, s77\ns_mov_b64 exec, 1\nbuffer_store_dword v8, v61, {sWS}, s97 offen\ns_mov_b64 exec, -1")
    a("L_ffn_next:\ns_cmp_lg_u32 s98, 0\ns_cbranch_scc1 L_ffn_end")
    for k in range(4): a(f"s_add_u32 s{80+k}, s{80+k}, 20480")
    for k in range(7): a(f"s_mov_b32 s{32+k}, {DP + 40960*k}")
    a(f"s_mul_i32 s95, s85, 5120\ns_add_u32 s95, s95, {DP}\ns_mov_b32 s97, 0\ns_mov_b32 s98, 1")
    a("v_add_u32 v5, 2560, v5\nv_add_u32 v50, 128, v50\nv_add_u32 v51, 128, v51\nv_add_u32 v52, 1024, v52\nv_add_u32 v53, 1024, v53")
    for r in range(4): a(f"v_lshlrev_b32 v{44+r}, 16, v{116+r}")
    if late:
        a("s_waitcnt vmcnt(0)")
        if late == 2:
            wait_lds(CNT + 4, 3, 2); a(f"s_sleep {lsleep}")
        else: wait_lds(PRG + 12, 1, 2)
        dn_weights(24, rl, 4)
        stamp(3)
    wait_lds(CNT + 4, 3, 2)
    if bell:
        a("s_mov_b64 exec, 0xff")
        L = loop("bell")
        a(f"buffer_load_dword v9, v49, {sWS}, s94 offen sc1\ns_waitcnt vmcnt(0)\nv_cmp_ne_u32 vcc, s77, v9"); retry(L, bsleep)
        a("s_mov_b64 exec, -1")
        if pre2: a(f"s_sleep {pre2}")
    a("s_branch L_ffn_b\nL_ffn_end:")
    dump_stamps()
    a("L_exit:\ns_endpgm")
    flush_cold()
    a("L_code_end:")

    hdr = open("cdna_kernels/" + NAME + ".s.ref").read().split("; Override launch")[0]
    out = [hdr.rstrip(), f"; @launch grid=(256,1,1) block=(512,1,1) lds={LDSZ}", '.amdgcn_target "amdgcn-amd-amdhsa--gfx950"']
    out += a.finish()
    out.append(f""".section .rodata,"a"
.p2align 6
.amdhsa_kernel {kname}
  .amdhsa_next_free_vgpr 256
  .amdhsa_next_free_sgpr 102
  .amdhsa_accum_offset 256
  .amdhsa_group_segment_fixed_size 0
  .amdhsa_kernarg_size 96
  .amdhsa_user_sgpr_count 2
  .amdhsa_user_sgpr_kernarg_segment_ptr 1
  .amdhsa_system_sgpr_workgroup_id_x 1
  .amdhsa_float_denorm_mode_32 3
.end_amdhsa_kernel""")
    return "\n".join(out) + "\n"

if __name__ == "__main__":
    kw = eval("dict(" + (sys.argv[2] if len(sys.argv) > 2 else "") + ")")
    open(sys.argv[1], "w").write(gen(**kw))
```

```python
import re

TRANS = ("v_exp_f32", "v_log_f32", "v_rcp_f32", "v_rsq_f32", "v_sqrt_f32", "v_sin_f32", "v_cos_f32")

def regs_of(tok):
    tok = tok.strip()
    tok = tok.lstrip("-")
    if tok.startswith("abs(") and tok.endswith(")"): tok = tok[4:-1]
    if tok.startswith("|") and tok.endswith("|"): tok = tok[1:-1]
    m = re.fullmatch(r"([vsa])(\d+)", tok)
    if m: return {(m.group(1), int(m.group(2)))}
    m = re.fullmatch(r"([vsa])\[(\d+):(\d+)\]", tok)
    if m: return {(m.group(1), i) for i in range(int(m.group(2)), int(m.group(3)) + 1)}
    if tok == "vcc": return {("s", "vcc_lo"), ("s", "vcc_hi")}
    if tok in ("vcc_lo", "vcc_hi"): return {("s", tok)}
    if tok == "exec": return {("s", "exec_lo"), ("s", "exec_hi")}
    if tok == "m0": return {("s", "m0")}
    return set()

def split_ops(rest):
    out, depth, cur = [], 0, ""
    for ch in rest:
        if ch in "[(": depth += 1
        if ch in "])": depth -= 1
        if ch == "," and depth == 0:
            out.append(cur.strip()); cur = ""
        else: cur += ch
    if cur.strip(): out.append(cur.strip())
    return out

class Ins:
    def __init__(self, text):
        self.text = text
        t = text.split(";")[0].strip()
        self.label = None
        self.op = None
        if not t or t.startswith("."):
            self.kind = "dir"; return
        if t.endswith(":"):
            self.kind = "label"; self.label = t[:-1]; return
        p = t.split(None, 1)
        self.op = op = p[0]
        ops = split_ops(p[1]) if len(p) > 1 else []
        if ops:
            last = ops[-1].split()
            self.mods = " ".join(last[1:])
            ops[-1] = last[0]
        else: self.mods = ""
        self.ops = ops
        R = [regs_of(o) for o in ops]
        self.w, self.r = set(), set()
        self.srcc = set()
        self.dpp = "_dpp" in op
        self.states = 1
        if op.startswith("v_smfmac"):
            self.kind = "mfma"
            self.w = R[0]; self.ab = R[1] | R[2] | R[3]; self.srcc = R[0]; self.r = self.ab | self.srcc
            self.passes = 4
        elif op.startswith("v_mfma"):
            self.kind = "mfma"
            self.w = R[0]; self.ab = R[1] | R[2]; self.srcc = R[3]; self.r = self.ab | self.srcc
            self.passes = 8 if "32x32x16" in op or "16x16x4_f32" in op else 4
        elif op.startswith("v_"):
            self.kind = "valu"
            if "permlane" in op and "swap" in op:
                self.w = R[0] | R[1]; self.r = R[0] | R[1]
            elif op.startswith(("v_add_co", "v_sub_co", "v_addc_co", "v_subb_co")):
                self.w = R[0] | R[1]; self.r = set().union(*R[2:])
            else:
                self.w = R[0]; self.r = set().union(*R[1:]) if len(R) > 1 else set()
                if op.startswith(("v_fmac", "v_dot2c", "v_writelane")) or self.dpp: self.r |= R[0]
                if op.startswith("v_cndmask") and len(ops) == 3: self.r |= regs_of("vcc")
        elif op.startswith("buffer_wbl2"):
            self.kind = "salu"; self.target = None
        elif op.startswith(("buffer_", "global_")):
            self.kind = "vmem"
            isload = "_load" in op
            if op.startswith("buffer_"):
                if isload: self.w = R[0]; self.r = set().union(*R[1:])
                else: self.r = set().union(*R); self.sdata = R[0]
                if "atomic" in op and "sc0" in self.mods: self.w = R[0]
            else:
                if isload: self.w = R[0]; self.r = set().union(*R[1:])
                else: self.r = set().union(*R); self.sdata = R[1]
            self.wide = (not isload) and ("x3" in op or "x4" in op)
        elif op.startswith("ds_"):
            self.kind = "ds"
            if "read" in op or "rtn" in op or "permute" in op or "swizzle" in op:
                self.w = R[0]; self.r = set().union(*R[1:])
            else: self.r = set().union(*R)
        elif op.startswith("s_"):
            self.kind = "salu"
            if op == "s_nop": self.states = int(ops[0], 0) + 1
            elif op.startswith(("s_cmp", "s_cbranch", "s_branch", "s_waitcnt", "s_barrier", "s_sleep", "s_setprio", "s_endpgm", "s_bitcmp")):
                self.r = set().union(*R) if R else set()
            else:
                self.w = R[0] if R else set(); self.r = set().union(*R[1:]) if len(R) > 1 else set()
            self.target = ops[0] if op.startswith(("s_cbranch", "s_branch")) else None
        else:
            raise ValueError("unknown instruction: " + text)

def isv(s): return {x for x in s if x[0] in "va"}
def iss(s): return {x for x in s if x[0] == "s"}

def need(p, c):
    n = 0
    if p.kind == "valu":
        vw, sw = isv(p.w), iss(p.w)
        if c.kind == "valu":
            if c.dpp and vw & c.r: n = max(n, 2)
            if "permlane" in c.op and vw & c.r: n = max(n, 2)
            if c.op.startswith(("v_readlane", "v_readfirstlane")) and vw & c.r: n = max(n, 1)
            if sw & c.r: n = max(n, 4 if c.op.startswith(("v_readlane", "v_writelane")) else 2)
            if p.op.startswith(TRANS) and vw & c.r: n = max(n, 1)
        if c.kind == "mfma" and vw & c.r: n = max(n, 2)
        if c.kind == "vmem" and sw & c.r: n = max(n, 5)
        if c.kind == "salu" and sw & c.r: n = max(n, 1)
        if c.kind == "salu" and c.op.startswith("s_cbranch_vcc") and ("s", "vcc_lo") in sw: n = max(n, 1)
        if p.op.startswith(TRANS) and c.kind in ("vmem", "ds") and vw & c.r: n = max(n, 1)
    if p.kind == "mfma":
        big = {4: 8, 8: 12}[p.passes]
        if c.kind == "mfma":
            if p.w & c.ab: n = max(n, big)
            if p.w & c.srcc and not (p.w == c.srcc and p.passes == c.passes): n = max(n, big - 2)
            if p.w & c.w and not (p.w & c.srcc): n = max(n, big - 2)
        elif c.kind in ("valu", "vmem", "ds"):
            if p.w & (c.r | c.w): n = max(n, big)
            if c.kind == "valu" and p.srcc & c.w: n = max(n, {4: 3, 8: 7}[p.passes])
    if p.kind == "vmem" and getattr(p, "wide", False):
        if c.kind in ("valu", "mfma") and p.sdata & c.w: n = max(n, 2)
        if c.kind in ("vmem", "ds") and p.sdata & c.w: n = max(n, 1)
    if p.kind == "salu" and ("s", "m0") in p.w and c.kind == "vmem" and "lds" in c.mods: n = max(n, 1)
    return n

WINDOW = 13

def fix_hazards(lines):
    ins = [Ins(l) for l in lines]
    label_in = {}
    for it in range(6):
        out, state, new_in, alive = [], [], {}, True
        def merge(a, b):
            d = {}
            for (p, age) in a + b:
                d[id(p)] = (p, min(age, d[id(p)][1])) if id(p) in d else (p, age)
            return list(d.values())
        for i in ins:
            if i.kind == "dir":
                out.append(i.text); continue
            if i.kind == "label":
                cur = state if alive else []
                state = merge(merge(cur, label_in.get(i.label, [])), new_in.get(i.label, []))
                alive = True
                out.append(i.text); continue
            k = max([need(p, i) - age for (p, age) in state] + [0])
            if k > 0:
                out.append(f"    s_nop {k-1}")
                state = [(p, age + k) for (p, age) in state]
            out.append(i.text)
            state = [(p, age + i.states) for (p, age) in state if age + i.states < WINDOW]
            if i.kind in ("valu", "mfma", "vmem") or (i.kind == "salu" and ("s", "m0") in i.w):
                state.append((i, 0))
            if i.kind == "salu" and getattr(i, "target", None):
                new_in[i.target] = merge(new_in.get(i.target, []), state)
                if i.op == "s_branch": alive = False
            if i.op == "s_endpgm": alive = False
        key = lambda d: {l: sorted((id(p), a) for p, a in v) for l, v in d.items()}
        merged = {l: merge(new_in.get(l, []), label_in.get(l, [])) for l in set(new_in) | set(label_in)}
        if key(merged) == key(label_in): break
        label_in = merged
    return out

class Asm:
    def __init__(self):
        self.lines = []
        self.nlab = 0
    def __call__(self, text):
        for l in text.split("\n"):
            l = l.strip()
            if not l: continue
            self.lines.append(l if l.endswith(":") or l.startswith((".", ";")) else "    " + l)
    def lab(self, base):
        self.nlab += 1
        return f"L_{base}_{self.nlab}"
    def finish(self):
        return fix_hazards(self.lines)
```

```python
import sys, struct
from asmlib import Asm

NAME = "sequential_preLN__mha_block_cached__geglu_ffn__decode"
def f2u(x): return struct.unpack("<I", struct.pack("<f", x))[0]
def hx(x): return "0x%08x" % (x & 0xffffffff)

REF, BELL, QP, OP, YP, DP, ML, DIAG, QPB, WSZ = 0x1000, 0x170000, 0x10000, 0x90000, 0x140000, 0xE0000, 0x130000, 0x1a0000, 0x200000, 0x280000
RS = 4352
OOB = 0x7ff00000
HEARD = 4632
QRED, QF, CNT, MCNT, CLR, PRG, MRED, STAT, RED, ORED, HTAB, DUMP, LDSZ = 0, 4096, 4608, 4616, 4624, 4640, 4672, 4864, 5120, 8192, 12288, 22016, 24576
sK, sV, sWS, sX, sWQ, sWO, sWG, sWU, sWD, sOUT = [f"s[{n}:{n+3}]" for n in range(32, 72, 4)]
DPPM = "row_mask:0xf bank_mask:0xf"
LOG2E = f2u(1.4426950408889634)
MFMA = "v_mfma_f32_16x16x32_bf16"

def gen(depth=5, ctl=(8, 6, 5), E=24, dl=11, dw=12, nref=8, gb=20, gs=24, bias=0, ph0=17, ex=16, fin=(14, 16, 10, 16), mids=(11,), fmids=(6,),
        P=39, budget=56, ml0=124, ml1=194, gates=(150, 222, 250), qpre=24, qsleep=2, qB=6, wo_w=2, gu_w=4, dn_w=2,
        pre2=0, pre3=12, ring=0, nc=2, cs=12288, sbell=True, npoll=2, stag=4, packed=0, bell=True, fast=True, setup_at=20, SPIN=0x100000, diag=False, early=False, skip=''):
    a = Asm()
    cold = []
    kname = NAME + "_kernel"
    def stamp(k):
        if diag and k == 0: a("s_mov_b32 s8, s100")
        elif diag: a(f"s_memrealtime s[{8+2*k}:{9+2*k}]")
    def dump_stamps():
        if not diag: return
        a("s_waitcnt lgkmcnt(0)\ns_mov_b64 exec, 1\ns_lshl_b32 s90, s6, 3\ns_add_u32 s90, s90, s3\ns_lshl_b32 s90, s90, 6")
        a(f"s_add_u32 s90, s90, {DIAG}\nv_mov_b32 v5, 0")
        for k in range(11): a(f"v_mov_b32 v{112+k}, s{8+2*k}")
        a("v_mov_b32 v123, s78")
        for q in range(3): a(f"buffer_store_dwordx4 v[{112+4*q}:{115+4*q}], v5, {sWS}, s90 offen offset:{16*q}")
    def srd_tail(n, size): a(f"s_mov_b32 s{n+2}, {hx(size)}\ns_mov_b32 s{n+3}, 0x20000")
    def bfr(d, s): a(f"v_cvt_pk_bf16_f32 v{d}, v{s}, v{s}\nv_and_b32 v{d}, 0xffff0000, v{d}")
    def unpack(d0, d1, s): a(f"v_lshlrev_b32 v{d0}, 16, v{s}\nv_and_b32 v{d1}, 0xffff0000, v{s}")
    def pk(op, d, x, y): a(f"v_pk_{op}_f32 v[{d}:{d+1}], v[{x}:{x+1}], v[{y}:{y+1}]")
    def add4(d, x, y): pk("add", d, x, y); pk("add", d + 2, x + 2, y + 2)
    def mask64(n, v): a(f"s_mov_b32 s{n}, {hx(v)}\ns_mov_b32 s{n+1}, {hx(v >> 32)}")
    def mfma(d, A, B, first): a(f"{MFMA} v[{d}:{d+3}], v[{A}:{A+3}], v[{B}:{B+3}], {'0' if first else f'v[{d}:{d+3}]'}")
    def smf(d, A, B): a(f"v_smfmac_f32_16x16x64_bf16 v[{d}:{d+3}], v[{A}:{A+3}], v[{B}:{B+7}], v60")
    def zero2(r): a(f"v_mov_b64 v[{r}:{r+1}], 0")
    def loop(base):
        L = a.lab(base); a(L + ":"); return L
    def retry(L, sleep=0, gentle=0, pre='', post=''):
        a(f"s_cbranch_vccnz {L}_r\n{L}_d:")
        t = f"{L}_r:\n" + pre
        if sleep: t += f"s_sleep {sleep}\n"
        if gentle: t += f"s_cmp_lg_u32 s98, 0\ns_cbranch_scc1 {L}_n\ns_sleep {gentle}\n{L}_n:\n"
        cold.append(t + f"s_sub_u32 s79, s79, 1\ns_cbranch_scc0 {L}\ns_mov_b32 s79, 0\n{post}s_branch {L}_d")
    def flush_cold():
        for t in cold: a(t)
        cold.clear()
    def empty_check(regs, t):
        regs = list(regs)
        a(f"v_max3_u32 v{t}, v{regs[0]}, v{regs[1]}, v{regs[2]}"); regs = regs[3:]
        while len(regs) >= 2: a(f"v_max3_u32 v{t}, v{t}, v{regs[0]}, v{regs[1]}"); regs = regs[2:]
        if regs: a(f"v_max_u32 v{t}, v{t}, v{regs[0]}")
        a(f"v_cmp_eq_u32 vcc, -1, v{t}")
    def nan4(x, t): pk("add", t, x, x + 2); a(f"v_cmp_u_f32 vcc, v{t}, v{t+1}")
    def rows_allreduce(op, v, t, both=True):
        a(f"v_mov_b32 v{t}, v{v}\nv_permlane16_swap_b32 v{v}, v{t}\n{op} v{v}, v{v}, v{t}")
        if both: a(f"v_mov_b32 v{t}, v{v}\nv_permlane32_swap_b32 v{v}, v{t}\n{op} v{v}, v{v}, v{t}")
    def half_masks(first, esrc, t0):
        a(f"v_and_b32 v{t0}, 1, v{esrc}\nv_lshlrev_b32 v{t0}, 4, v{t0}\nv_mov_b32 v{t0+1}, 0xffff\nv_lshlrev_b32 v{t0}, v{t0}, v{t0+1}")
        a(f"v_lshrrev_b32 v{t0+1}, 1, v{esrc}")
        for r in range(4): a(f"v_cmp_eq_u32 vcc, {r}, v{t0+1}\nv_cndmask_b32 v{first+r}, 0, v{t0}, vcc")
    def wait_lds(addr, val, sleep):
        L = loop("lds")
        a(f"ds_read_b32 v8, v61 offset:{addr}\ns_waitcnt lgkmcnt(0)\nv_cmp_ne_u32 vcc, {val}, v8")
        retry(L, sleep)
    def next_tag(): a("s_mul_i32 s77, s77, 1664525\ns_add_u32 s77, s77, 1013904223")

    a(f".text\n.globl {kname}\n.p2align 8\n.type {kname},@function\n{kname}:")
    a("s_cmp_ge_u32 s2, 256\ns_cbranch_scc1 L_exit")
    if diag: a("s_memrealtime s[100:101]")
    a("s_load_dwordx8 s[8:15], s[0:1], 0")
    a("s_getpc_b64 s[4:5]\nL_pc:\nv_lshlrev_b32 v4, 7, v0\nv_min_u32 v4, L_code_end-L_pc-4, v4\nglobal_load_dword v4, v4, s[4:5]")
    a("v_lshrrev_b32 v5, 6, v0\nv_and_b32 v1, 63, v0\nv_readfirstlane_b32 s3, v5")
    a("s_and_b32 s72, s2, 7\ns_lshr_b32 s73, s2, 3\ns_lshl_b32 s6, s72, 5\ns_add_u32 s6, s6, s73")
    a("s_lshr_b32 s74, s6, 3\ns_and_b32 s75, s6, 7\ns_and_b32 s76, s3, 3")
    a("v_and_b32 v6, 15, v1\nv_lshrrev_b32 v7, 4, v1")
    srd_tail(40, WSZ)
    a(f"s_mov_b32 s79, {SPIN}\ns_cmp_lt_u32 s3, 4\ns_cbranch_scc1 L_aux0")
    def aux_start():
        a("L_aux0:\nv_lshlrev_b32 v96, 4, v0\nv_mov_b32 v112, -1\nv_mov_b32 v113, -1\nv_mov_b32 v114, -1\nv_mov_b32 v115, -1")
        a("ds_write_b128 v96, v[112:115]\nds_write_b128 v96, v[112:115] offset:4096")
        a("v_and_b32 v8, 31, v1\nv_lshlrev_b32 v8, 3, v8\nv_lshrrev_b32 v9, 5, v1\nv_mul_u32_u24 v9, 1280, v9\nv_add_u32 v2, v8, v9")
        a("s_mul_i32 s7, s75, 80\ns_mul_i32 s80, s76, 20\ns_add_u32 s7, s7, s80\nv_add_u32 v8, s7, v7")
        a("v_bfe_u32 v9, v1, 3, 1\nv_mul_u32_u24 v9, 1280, v9\nv_lshl_add_u32 v3, v8, 1, v9")
        a("s_lshl_b32 s7, s74, 8\nv_lshlrev_b32 v8, 13, v8\nv_lshl_add_u32 v9, v6, 4, s7\nv_add_u32 v5, v8, v9")
        srd_tail(44, 2560); srd_tail(48, 640 * 4096 * 2)
        a("s_mov_b32 s7, 0\ns_waitcnt lgkmcnt(0)\ns_mov_b64 s[44:45], s[8:9]\ns_mov_b64 s[48:49], s[14:15]")
        for i in range(5): a(f"buffer_load_dwordx2 v[{8+2*i}:{9+2*i}], v2, {sX}, 0 offen offset:{256*i}")
        for i in range(5): a(f"buffer_load_ushort v{18+i}, v3, {sX}, 0 offen offset:{8*i}")
        for i in range(5): a(f"buffer_load_dwordx4 v[{24+4*i}:{27+4*i}], v5, {sWQ}, s7 offen nt" + ("\ns_add_u32 s7, s7, 0x8000" if i < 4 else ""))
        a("s_load_dwordx8 s[16:23], s[0:1], 32\ns_load_dwordx8 s[24:31], s[0:1], 64\ns_barrier\ns_branch L_aux")

    a("s_setprio 2")
    a("v_bfe_u32 v8, v1, 2, 2\nv_lshlrev_b32 v8, 8, v8\nv_lshl_or_b32 v8, v7, 6, v8\nv_and_b32 v9, 3, v1\nv_lshl_or_b32 v2, v9, 4, v8")
    a("s_and_b32 s80, s75, 3\ns_cselect_b32 s71, 0, 0x80000000\ns_lshl_b32 s70, s75, 18")
    a("s_lshl_b32 s7, s74, 21\ns_lshl_b32 s80, s76, 10\ns_add_u32 s7, s7, s80\nv_add_u32 v2, s7, v2\nv_lshl_add_u32 v3, v1, 4, s7")
    srd_tail(32, 1 << 27); srd_tail(36, 1 << 27)
    a("s_waitcnt lgkmcnt(0)\ns_mov_b64 s[32:33], s[10:11]\ns_mov_b64 s[36:37], s[12:13]")
    RING, NB, PH, NG = 100, 39, 68, 17
    BK, DK, ACC, BV, MLB, MLS, RMAX, S, NINF = 16, 32, 40, 44, 52, 56, 60, [64, 81], 98
    vm, landed, ld_idx, items, got = ["code"], [-1], {}, [], set()
    def wait_vm(idx):
        if idx > landed[0]:
            a(f"s_waitcnt vmcnt({len(vm) - 1 - idx})"); landed[0] = idx
    def kind(n):
        k, r = divmod(n, 17)
        if r == 16: return ("hole", k)
        m = 16 * k + r
        return ("opt" if (m & 3) == ((m >> 2) & 3) else "own", m)
    def address(i):
        ph, n = divmod(i, PH); b = ph & 1
        kd, m = kind(n)
        if kd == "hole": a(f"s_add_u32 s73, s72, {hx((b << 26) + m * 65536)}"); return "s73"
        a(f"s_add_u32 s7, s70, {hx(b << 26)}" if m == 0 else "s_addk_i32 s7, 0x1000")
        if kd == "own": return "s7"
        a("s_or_b32 s73, s7, s71"); return "s73"
    def issue(i, so):
        isv = i >= 2 * PH; r = RING + (i % NB) * 4
        a(f"buffer_load_dwordx4 v[{r}:{r+3}], {'v3' if isv else 'v2'}, {sV if isv else sK}, {so} offen nt")
        ld_idx[i] = len(vm); vm.append(i)
    def add(cost, needs, fn): items.append((cost, needs, fn))
    def setup1():
        a("s_getreg_b32 s78, hwreg(HW_REG_XCC_ID, 0, 4)")
        a("s_and_b32 s72, s75, 4\ns_lshl_b32 s72, s72, 18\ns_and_b32 s80, s75, 3\ns_mul_i32 s80, s80, 20480\ns_add_u32 s72, s72, s80")
        half_masks(10, 6, 8)
        a("v_and_b32 v9, 3, v1\nv_lshlrev_b32 v9, 4, v9\nv_lshl_or_b32 v14, v7, 6, v9")
        a("v_and_b32 v15, 31, v1\nv_lshlrev_b32 v15, 4, v15")
        a("v_lshl_add_u32 v9, v7, 3, v6\nv_lshlrev_b32 v9, 4, v9\ns_lshl_b32 s80, s76, 9\nv_add_u32 v62, s80, v9")
        a("s_lshl_b32 s80, s6, 9\nv_add_u32 v63, s80, v15")
        a(f"v_mov_b32 v61, 0\nv_mov_b32 v5, 1\nv_mov_b32 v{NINF}, 0xff800000")
    def setup2():
        a("s_waitcnt lgkmcnt(0)\ns_load_dword s77, s[40:41], 0")
        a(f"s_lshr_b32 s90, s6, 5\ns_lshl_b32 s90, s90, 12\ns_add_u32 s90, s90, {ML}\ns_lshl_b32 s91, s6, 7\ns_add_u32 s91, s91, {ML}")
        a("v_bfe_u32 v9, v1, 2, 3\nv_lshlrev_b32 v9, 7, v9\nv_and_b32 v4, 3, v1\nv_lshl_or_b32 v0, v4, 4, v9\ns_and_b32 s80, s74, 3\ns_lshl_b32 s80, s80, 10\nv_add_u32 v0, s80, v0")
        a("v_and_b32 v8, 31, v1\nv_min_u32 v8, 11, v8\nv_and_b32 v9, 3, v8\nv_lshrrev_b32 v8, 2, v8\nv_lshl_add_u32 v8, v9, 3, v8\nv_lshlrev_b32 v8, 7, v8\nv_add_u32 v8, 192, v8")
        a("v_cmp_gt_u32 vcc, 32, v1\nv_cndmask_b32 v99, v8, v0, vcc\nv_lshlrev_b32 v4, 3, v4")
        a("s_lshl_b32 s99, s76, 3\ns_ashr_i32 s98, s71, 31")
        if ctl:
            a(f"s_sub_u32 s65, s2, {256 - nref}\ns_cselect_b32 s64, 0, 1\ns_cmp_eq_u32 s76, 0\ns_cselect_b32 s64, s64, 0\ns_mul_i32 s65, s65, {RS}\ns_add_u32 s65, s65, {REF}")
            a(f"s_add_u32 s66, s40, {REF}\ns_addc_u32 s67, s41, 0\ns_mov_b32 s62, 0\ns_mov_b32 s63, 0")
        for t in range(4): mask64(80 + 2 * t, 0x000F000F000F000F << (4 * t))
        mask64(88, 0x00FF00FF00FF00FF)
        a(f"s_mov_b32 s92, {hx(f2u(128 ** -0.5))}\ns_mov_b32 s93, {hx(LOG2E)}")
    def setup3():
        a("s_waitcnt lgkmcnt(0)"); next_tag()
    def it_qfrag(b):
        L = loop("q")
        a(f"ds_read_b128 v[{BV}:{BV+3}], v14 offset:{QF + b * 256}\ns_waitcnt lgkmcnt(0)")
        empty_check(range(BV, BV + 4), BV + 4); retry(L, 1)
        if b == 0: stamp(1)
        for t in range(4):
            for r in range(4): a(f"v_cndmask_b32 v{BK + 4*t + r}, 0, v{BV + r}, s[{80+2*t}:{81+2*t}]")
    def it_k(i):
        n = i % PH
        mfma(DK + ((n >> 2) & 1) * 4, RING + (i % NB) * 4, BK + 4 * (n & 3), n & 3 == 0)
    def it_kred(b, u):
        d = DK + (u & 1) * 4; s = S[b] + u
        a(f"v_mov_b32_dpp v{s}, v{d} quad_perm:[0,0,0,0] {DPPM}")
        for r in range(1, 4): a(f"v_add_f32_dpp v{s}, v{d+r}, v{s} quad_perm:[{r},{r},{r},{r}] {DPPM}")
        bfr(s, s); a(f"v_mul_f32 v{s}, s92, v{s}"); bfr(s, s)
        om = sum(0x000F000F << (4 * t) for t in range(4) if kind(4 * u + t)[0] == "opt")
        if om: a(f"s_and_b32 s0, s98, {hx(om)}\ns_mov_b32 s1, s0\nv_cndmask_b32 v{s}, v{s}, v{NINF}, s[0:1]")
        a(f"v_mov_b32 v{RMAX}, v{s}" if u == 0 else f"v_max_f32 v{RMAX}, v{RMAX}, v{s}")
    def it_max(b):
        a(f"v_max_f32_dpp v{RMAX}, v{RMAX}, v{RMAX} row_ror:8 {DPPM}\nv_max_f32_dpp v{RMAX}, v{RMAX}, v{RMAX} row_ror:4 {DPPM}")
        rows_allreduce("v_max_f32", RMAX, BV)
        a(f"v_mov_b32 v{MLS}, v{RMAX}\nv_mov_b32 v{MLS+1}, 0")
    def it_sum(b, u0):
        n = min(4, NG - u0)
        for u in range(n): a(f"v_sub_f32 v{BV+u}, v{S[b]+u0+u}, v{MLS}")
        for u in range(n): a(f"v_mul_f32 v{BV+u}, s93, v{BV+u}")
        for u in range(n): a(f"v_exp_f32 v{BV+u}, v{BV+u}")
        for u in range(n): a(f"v_add_f32 v{MLS+1}, v{MLS+1}, v{BV+u}")
    def it_mlpub(b):
        l, Ls = MLS + 1, a.lab("mlast")
        a(f"v_add_f32_dpp v{l}, v{l}, v{l} row_ror:8 {DPPM}\nv_add_f32_dpp v{l}, v{l}, v{l} row_ror:4 {DPPM}")
        rows_allreduce("v_add_f32", l, BV)
        a(f"v_mov_b32 v8, s99\ns_mov_b64 exec, 1\nds_write_b64 v8, v[{MLS}:{MLS+1}] offset:{MRED + 32*b}")
        a(f"ds_add_rtn_u32 v8, v61, v5 offset:{MCNT + 4*b}\ns_mov_b64 exec, -1")
        a(f"ds_read_b64 v[{BV}:{BV+1}], v4 offset:{MRED + 32*b}\ns_waitcnt lgkmcnt(0)\nv_readfirstlane_b32 s96, v8")
        a(f"s_cmp_lg_u32 s96, 2\ns_cbranch_scc1 {Ls}")
        if b == 0: wait_lds(CLR, 0, 2)
        a(f"v_mov_b32 v8, s78\nv_cndmask_b32 v{MLS}, v8, v{BV}, s[80:81]\nv_mov_b32 v{MLS+1}, s77\nv_mov_b32 v{MLS+2}, v{BV+1}\nv_mov_b32 v{MLS+3}, s77")
        a(f"s_add_u32 s96, s91, {b * 32768}\ns_mov_b64 exec, 0xff")
        a(f"buffer_store_dwordx4 v[{MLS}:{MLS+3}], v15, {sWS}, s96 offen sc0 sc1\ns_mov_b64 exec, -1\n{Ls}:")
    def ml_load(b): return f"buffer_load_dwordx4 v[{MLB}:{MLB+3}], {'v0' if b else 'v99'}, {sWS}, s94 offen sc1"
    def ml_issue(b):
        a(f"s_add_u32 s94, s90, {b * 32768}\n" + ml_load(b))
        ld_idx[("ml", b)] = len(vm); vm.append("ml")
    def it_mlget(b):
        L = loop("ml")
        a(f"v_cmp_ne_u32 vcc, s77, v{MLB+1}\nv_cmp_ne_u32 s[96:97], s77, v{MLB+3}\ns_or_b64 vcc, vcc, s[96:97]")
        a(f"s_cbranch_vccnz {L}_r\n{L}_d:")
        cold.append(f"{L}_r:\ns_sleep 4\n{ml_load(b)}\ns_waitcnt vmcnt(0)\ns_sub_u32 s79, s79, 1\ns_cbranch_scc0 {L}\ns_mov_b32 s79, 0\ns_branch {L}_d")
        got.add(b)
        if b == 0: a(f"v_cmp_ne_u32 vcc, s78, v{MLB}\ns_mov_b32 s30, {'vcc_hi' if fast else '1'}")
        M, Ls = MLB + 1, MLB + 2
        a(f"v_max_f32_dpp v{M}, v{MLB}, v{MLB} row_ror:8 {DPPM}")
        for k in (4, 2, 1): a(f"v_max_f32_dpp v{M}, v{M}, v{M} row_ror:{k} {DPPM}")
        rows_allreduce("v_max_f32", M, 8, both=False)
        a(f"v_sub_f32 v8, v{MLB}, v{M}\nv_mul_f32 v8, s93, v8\nv_exp_f32 v8, v8\nv_mul_f32 v{Ls}, v{Ls}, v8")
        for k in (8, 4, 2, 1): a(f"v_add_f32_dpp v{Ls}, v{Ls}, v{Ls} row_ror:{k} {DPPM}")
        rows_allreduce("v_add_f32", Ls, 8, both=False)
        a(f"v_rcp_f32 v{Ls}, v{Ls}\nv_readfirstlane_b32 s4, v{M}\nv_readfirstlane_b32 s5, v{Ls}")
    def it_p(b, u0):
        R = [S[b] + u for u in range(u0, min(u0 + 4, NG))]
        for s in R: a(f"v_subrev_f32 v{s}, s4, v{s}")
        for s in R: a(f"v_mul_f32 v{s}, s93, v{s}")
        for s in R: a(f"v_exp_f32 v{s}, v{s}")
        for s in R: a(f"v_mul_f32 v{s}, s5, v{s}")
        for s in R: a(f"v_cvt_pk_bf16_f32 v{s}, v{s}, v{s}")
    def it_vb(i):
        b, n = divmod(i - 2 * PH, PH)
        for r in range(4): a(f"v_and_b32_dpp v{BV + (i & 1)*4 + r}, v{S[b] + (n >> 2)}, v{10+r} row_newbcast:{4*(n & 3)} {DPPM}")
    def it_v(i): mfma(ACC, RING + (i % NB) * 4, BV + (i & 1) * 4, i % PH == 0)
    def it_opub(b):
        Ls = a.lab("olast")
        if b == 1: stamp(2)
        a(f"s_mov_b32 s95, {OP + b * 0x20000}\ns_mov_b64 exec, s[88:89]")
        a(f"ds_write_b128 v62, v[{ACC}:{ACC+3}] offset:{ORED + b * 2048}")
        a(f"s_mov_b64 exec, 1\nds_add_rtn_u32 v8, v61, v5 offset:{CNT + 4*b}\ns_mov_b32 exec_lo, -1")
        for w in range(4): a(f"ds_read_b128 v[{16+4*w}:{19+4*w}], v15 offset:{ORED + b * 2048 + w * 512}")
        a("s_waitcnt lgkmcnt(0)\nv_readfirstlane_b32 s96, v8")
        add4(16, 16, 20); add4(24, 24, 28)
        a(f"s_cmp_lg_u32 s96, 2\ns_cbranch_scc1 {Ls}\ns_cmp_lg_u32 s30, 0")
        add4(16, 16, 24)
        a(f"s_cbranch_scc1 {Ls}_far\nbuffer_store_dwordx4 v[16:19], v63, {sWS}, s95 offen")
        cold.append(f"{Ls}_far:\nbuffer_store_dwordx4 v[16:19], v63, {sWS}, s95 offen sc0 sc1\ns_branch {Ls}")
        if b == 1: stamp(3)
        a(f"{Ls}:\ns_mov_b64 exec, -1")
    F = lambda fn, *x: (lambda: fn(*x))
    for b in range(2):
        add(30, None, F(it_qfrag, b))
        for n in range(PH):
            add(4, PH * b + n, F(it_k, PH * b + n))
            if n & 3 == 0 and n: add(12, None, F(it_kred, b, (n >> 2) - 1))
            if b == 1 and PH + n == ml0:
                add(40, ("ml", 0), F(it_mlget, 0))
                for u0 in range(0, NG, 4): add(24, None, F(it_p, 0, u0))
        add(16, None, F(it_kred, b, NG - 1)); add(20, None, F(it_max, b))
        for u0 in range(0, NG, 4): add(20, None, F(it_sum, b, u0))
        add(40, None, F(it_mlpub, b))
    for b in range(2):
        for n in range(PH):
            i = (2 + b) * PH + n
            add(4, None, F(it_vb, i)); add(4, i, F(it_v, i))
            if b == 0 and i == ml1:
                add(40, ("ml", 1), F(it_mlget, 1))
                for u0 in range(0, NG, 4): add(24, None, F(it_p, 1, u0))
        add(40, None, F(it_opub, b))
    consumed = [-1]
    def run_items(bud, force=False):
        while items:
            cost, needs, fn = items[0]
            if needs is not None:
                if needs not in ld_idx: return
                if ld_idx[needs] > landed[0]:
                    if not force: return
                    wait_vm(ld_idx[needs])
            if bud <= 0 and not force: return
            items.pop(0); fn(); bud -= cost
            if isinstance(needs, int): consumed[0] = needs
    def act(i, lastc):
        if bias: a(f"s_add_i32 s68, s68, {bias * nref}")
        if fin and lastc:
            a(f"s_add_i32 s69, s68, {fin[2] * nref}\ns_max_i32 s69, s69, 0\ns_min_u32 s69, s69, 0x1000\ns_mul_i32 s69, s69, {int(fin[1]*655.36/nref)}\ns_lshr_b32 s69, s69, 16\ns_sub_u32 s62, {4*PH}, s69")
        else:
            a(f"s_max_i32 s69, s68, 0\ns_min_u32 s69, s69, 0x4000\ns_mul_i32 s69, s69, {int(gb*655.36/nref)}\ns_lshr_b32 s69, s69, 16\ns_add_u32 s62, s69, {i+1}")
        a(f"s_sub_i32 s69, 0, s68\ns_max_i32 s69, s69, 0\ns_min_u32 s69, s69, 0x4000\ns_mul_i32 s69, s69, {int(gs*655.36/nref)}\ns_lshr_b32 s69, s69, 16\ns_add_u32 s63, s69, {i+1}")
    k0 = 1 if ph0 <= setup_at else 0
    cpts = [c for c in range(ph0 + k0 * E + dl + dw, 4 * PH - 4, E)]
    for i in range(4 * PH):
        while consumed[0] < i - NB:
            n0 = len(items); run_items(1); assert len(items) < n0, "ring stall"
        so = address(i)
        if ctl and i > cpts[0]:
            last = fin and i > cpts[-1]
            wait_vm(ld_idx[i - (fin[0] if last else ctl[0])])
            n = [len(vm) - 1 - ld_idx[i - d] for d in ctl]
            go = a.lab("go")
            a(f"s_cmpk_{'le' if last else 'gt'}_u32 s62, {i}\ns_cbranch_scc1 {go}\ns_waitcnt vmcnt({n[1]})")
            a(f"s_cmpk_le_u32 s63, {i}\ns_cbranch_scc1 {go}\ns_waitcnt vmcnt({n[2]})\n{go}:")
        elif i >= depth: wait_vm(ld_idx[i - depth])
        issue(i, so)
        if i == depth - 1:
            a("s_load_dwordx2 s[40:41], s[0:1], 88\ns_barrier\ns_branch L_stream"); aux_start(); a("L_stream:"); stamp(0); setup1()
        if i == 2 * depth - 1: setup2()
        if i == setup_at: setup3()
        if ctl:
            k, m = divmod(i - ph0, E)
            if ph0 + k * E + dl + dw in cpts:
                lastc = ph0 + k * E + dl + dw == cpts[-1]
                w = 0 if k == k0 else (fin[3] if fin and lastc else ex)
                if m == dl + dw - 1 and w: a("s_memrealtime s[74:75]")
                if m == 0: a("s_memrealtime s[60:61]")
                if m == 1:
                    sk = a.lab("ref")
                    a(f"s_cmp_lg_u32 s64, 0\ns_cbranch_scc1 {sk}_r\n{sk}:")
                    cold.append(f"{sk}_r:\ns_waitcnt lgkmcnt(0)\nv_mov_b32 v6, s60\nv_mov_b32 v7, s77\nv_mov_b32 v8, s60\nv_mov_b32 v9, s77\ns_mov_b64 exec, 0xff\n"
                                f"buffer_store_dwordx4 v[6:9], v15, {sWS}, s65 offen offset:{128*k} sc0 sc1\ns_mov_b64 exec, -1\ns_branch {sk}")
                if m == dl:
                    for q in range(nref): a(f"s_load_dwordx2 s[{44+2*q}:{45+2*q}], s[66:67], {q*RS + 128*k}")
                if m == dl + dw:
                    a("s_waitcnt lgkmcnt(0)\ns_mov_b32 s68, 0")
                    for q in range(nref):
                        a(f"s_sub_u32 s69, s60, s{44+2*q}\ns_cmp_eq_u32 s{45+2*q}, s77\ns_cselect_b32 s69, s69, {-14*dl}\ns_add_u32 s68, s68, s69")
                    if ex or fin:
                        a(f"s_mul_i32 s69, s60, {nref}\ns_sub_u32 s69, s69, s68\ns_sub_u32 s76, s69, s2\ns_mov_b32 s2, s69")
                    if w:
                        a(f"s_mul_i32 s96, s76, {round(256 * (dl + dw - 1) / E)}\ns_lshr_b32 s96, s96, 8\ns_sub_u32 s69, s74, s60\ns_mul_i32 s69, s69, {nref}")
                        a(f"s_sub_i32 s69, s69, s96\ns_mul_i32 s69, s69, {w}\ns_ashr_i32 s69, s69, 4\ns_add_i32 s68, s68, s69")
                    act(i, lastc)
            for c in cpts[1:]:
                for d in (fmids if c == cpts[-1] else mids):
                    if i == c + d - 1: a("s_memrealtime s[74:75]")
                    if i == c + d:
                        a(f"s_mul_i32 s96, s76, {round(256 * (dl + dw - 1 + d) / E)}\ns_lshr_b32 s96, s96, 8\ns_add_u32 s96, s96, s2")
                        a(f"s_waitcnt lgkmcnt(0)\ns_mul_i32 s68, s74, {nref}\ns_sub_u32 s68, s68, s96")
                        act(i, c == cpts[-1])
        for gi in [k for k, g in enumerate(gates) if g == i]:
            assert 0 in got
            a(f"s_mov_b64 exec, 1\nds_write_b32 v61, v5 offset:{PRG + 4*gi}\ns_mov_b64 exec, -1")
        if early:
            el = [0, depth, depth + 2, 2 * depth, 18, 26, 34]
            if i in el: stamp(4 + el.index(i))
        elif i in (34, 68, 102, 136, 170, 204, 238): stamp(3 + i // 34)
        if i == ml0: ml_issue(0)
        if i == ml1: ml_issue(1)
        if i >= P - 1: run_items(budget)
    run_items(0, force=True)
    if bell and sbell:
        a(f"s_cmp_eq_u32 s71, 0\ns_cbranch_scc1 L_sdone\ns_cmp_ge_u32 s99, {8*npoll}\ns_cbranch_scc1 L_sdone")
        a(f"s_lshr_b32 s96, s6, 5\ns_bfe_u32 s97, s6, 0x20003\ns_lshl_b32 s97, s97, 3\ns_add_u32 s97, s97, s96\ns_cmp_ge_u32 s97, 27\ns_cbranch_scc1 L_sdone")
        if packed == 3:
            a("s_lshl_b32 s97, s97, 1\ns_bfe_u32 s96, s6, 0x10002\ns_add_u32 s96, s96, s97\ns_lshl_b32 s96, s96, 8")
            a(f"s_bfe_u32 s97, s99, 0x10003\ns_mul_i32 s97, s97, 0x3080\ns_xor_b32 s96, s96, s97\ns_lshr_b32 s97, s99, 4\ns_lshl_b32 s97, s97, 14\ns_add_u32 s96, s96, s97\ns_add_u32 s96, s96, {BELL}")
        else:
            a(f"s_and_b32 s97, s96, 3\ns_lshl_b32 s97, s97, 10\ns_lshr_b32 s96, s96, 2\ns_mul_i32 s96, s96, {nc*cs}\ns_add_u32 s96, s96, s97")
            a(f"s_bfe_u32 s97, s99, {3 | ((nc.bit_length() - 1) << 16)}\ns_mul_i32 s97, s97, {cs}\ns_add_u32 s96, s96, s97\ns_add_u32 s96, s96, {BELL}")
        a("s_add_u32 s66, s40, s96\ns_addc_u32 s67, s41, 0")
        sg = 1 if packed == 3 else nc
        for w in range(1, npoll // sg): a(f"s_cmp_lt_u32 s99, {8*w*sg}\ns_cbranch_scc1 L_sb\ns_sleep {stag}")
        a("L_sb:")
        if packed: a("s_load_dwordx16 s[44:59], s[66:67], 0 glc")
        else:
            for q in range(8): a(f"s_load_dword s{44+2*q}, s[66:67], {128*q} glc")
        a("s_sub_u32 s79, s79, 1\ns_cbranch_scc1 L_sdone\ns_waitcnt lgkmcnt(0)")
        for q in range(8): a(f"s_cmp_lg_u32 s{44+2*q}, s77\ns_cbranch_scc1 L_sb")
        a(f"ds_write_b32 v61, v5 offset:{HEARD}\nL_sdone:")
    dump_stamps()
    a("s_endpgm")
    flush_cold()

    a("L_aux:")
    a("s_getreg_b32 s78, hwreg(HW_REG_XCC_ID, 0, 4)")
    srd_tail(52, 4096 * 640 * 2); srd_tail(56, 640 * 1728 * 2); srd_tail(60, 640 * 1728 * 2); srd_tail(64, 1728 * 640 * 2); srd_tail(68, 2560)
    a("v_and_b32 v68, 7, v1"); half_masks(64, 68, 69)
    mask64(88, 0xFF00FF00FF00FF00)
    a(f"s_mov_b32 s92, {hx(f2u(1/640))}\ns_mov_b32 s93, {hx(f2u(1e-5))}")
    a("v_and_b32 v70, 31, v1\ns_lshl_b32 s7, s76, 2\nv_lshl_add_u32 v97, v70, 5, s7\ns_lshl_b32 s7, s76, 9\nv_lshl_add_u32 v101, v70, 4, s7")
    for w in range(1, 4): a(f"v_add_u32 v{97+w}, {1024*w}, v97")
    a(f"s_lshl_b32 s84, s6, 11\ns_add_u32 s84, s84, {QP}\ns_lshl_b32 s85, s74, 14\ns_add_u32 s85, s85, {QP}\ns_add_u32 s86, s85, 4096")
    a(f"v_lshrrev_b32 v102, 5, v1\nv_lshl_add_u32 v101, v102, 13, v101\nv_add_u32 v102, {QPB - QP}, v101")
    a("v_bfe_u32 v103, v1, 2, 1\nv_lshlrev_b32 v103, 8, v103\nv_bfe_u32 v70, v1, 3, 2\nv_lshl_or_b32 v103, v70, 6, v103\nv_and_b32 v70, 3, v1\nv_lshl_or_b32 v103, v70, 2, v103")
    a("s_lshl_b32 s7, s76, 4\nv_add_u32 v103, s7, v103")
    a("s_waitcnt lgkmcnt(0)")
    for n, p in ((52, 16), (56, 20), (60, 22), (64, 24), (68, 26), (40, 30)): a(f"s_mov_b64 s[{n}:{n+1}], s[{p}:{p+1}]")
    a("s_load_dword s77, s[40:41], 0")
    stamp(0)
    a("s_lshr_b32 s7, s73, 3\ns_and_b32 s39, s75, 3\ns_cbranch_scc0 L_role2")
    a("s_sub_u32 s39, s75, 1\ns_lshl_b32 s39, s39, 2\ns_add_u32 s39, s39, s7\ns_cmp_lt_u32 s39, 10\ns_cselect_b32 s38, 1, 0\ns_branch L_role")
    a("L_role2:\ns_lshl_b32 s39, s7, 3\ns_add_u32 s39, s39, s72\ns_cmp_lt_u32 s39, 27\ns_cselect_b32 s38, 2, 0\ns_lshl_b32 s39, s39, 1\ns_lshr_b32 s7, s75, 2\ns_add_u32 s39, s39, s7")
    a("L_role:")
    a("s_waitcnt vmcnt(10)")
    for i in range(10): unpack(44 + 2 * i, 45 + 2 * i, 8 + i)
    def red32(v):
        for k in (8, 4, 2, 1): a(f"v_add_f32_dpp v{v}, v{v}, v{v} row_ror:{k} {DPPM}")
        rows_allreduce("v_add_f32", v, 71, both=False)
    pk("add", 8, 44, 46)
    for i in range(2, 10): pk("add", 8, 8, 44 + 2 * i)
    a("v_add_f32 v8, v8, v9"); red32(8)
    a("v_mul_f32 v8, s92, v8")
    for i in range(10): a(f"v_pk_add_f32 v[{44+2*i}:{45+2*i}], v[{44+2*i}:{45+2*i}], v[8:9] op_sel_hi:[1,0] neg_lo:[0,1] neg_hi:[0,1]")
    pk("mul", 10, 44, 44)
    for i in range(1, 10): a(f"v_pk_fma_f32 v[10:11], v[{44+2*i}:{45+2*i}], v[{44+2*i}:{45+2*i}], v[10:11]")
    a("v_add_f32 v10, v10, v11"); red32(10)
    a("v_mul_f32 v10, s92, v10")
    bfr(10, 10); bfr(8, 8); a("v_add_f32 v10, s93, v10"); bfr(10, 10); a("v_sqrt_f32 v10, v10"); bfr(10, 10); a("v_rcp_f32 v10, v10")
    a("v_readlane_b32 s80, v8, 0\nv_readlane_b32 s81, v8, 32\nv_readlane_b32 s82, v10, 0\nv_readlane_b32 s83, v10, 32")
    a("v_mov_b32 v8, s80\nv_mov_b32 v9, s81\nv_mov_b32 v10, s82\nv_mov_b32 v11, s83")
    a("v_cndmask_b32 v8, v8, v9, s[88:89]\nv_cndmask_b32 v10, v10, v11, s[88:89]")
    a("s_waitcnt vmcnt(5)")
    for i in range(5): a(f"v_lshlrev_b32 v{18+i}, 16, v{18+i}\nv_sub_f32 v{18+i}, v{18+i}, v8")
    for i in range(5): bfr(18 + i, 18 + i)
    for i in range(5): a(f"v_mul_f32 v{18+i}, v{18+i}, v10\nv_cvt_pk_bf16_f32 v{18+i}, v{18+i}, v{18+i}")
    for i in range(6):
        if i < 5:
            for r in range(4): a(f"v_and_b32 v{44+4*i+r}, v{18+i}, v{64+r}")
        if i: a(f"s_waitcnt vmcnt({5-i})"); mfma(72, 20 + 4 * i, 40 + 4 * i, i == 1)
    a("v_mov_b32 v61, 0\ns_waitcnt lgkmcnt(0)"); next_tag()
    a("s_add_u32 s83, s77, s78\ns_add_u32 s83, s83, 1")
    a(f"ds_write_b128 v96, v[72:75] offset:{QRED}")
    L = loop("qred")
    for w in range(4): a(f"ds_read2_b32 v[{76+2*w}:{77+2*w}], v{97+w} offset0:0 offset1:4")
    a("s_waitcnt lgkmcnt(0)"); pk("add", 76, 76, 78); pk("add", 80, 80, 82); pk("add", 76, 76, 80)
    a("v_cmp_u_f32 vcc, v76, v77"); retry(L)
    a("v_mov_b32 v78, v77\nv_mov_b32 v77, s83\nv_mov_b32 v79, s83\ns_mov_b32 exec_hi, 0")
    a(f"buffer_store_dwordx4 v[76:79], v101, {sWS}, s84 offen\ns_mov_b64 exec, -1\ns_add_u32 s84, s84, {QPB - QP}\ns_mov_b32 s87, 0")
    stamp(1)
    if qpre: a(f"s_sleep {qpre}")
    a("v_mov_b32 v15, v101\ns_mov_b32 s7, s83")
    L = loop("qg")
    for k in range(4): a(f"buffer_load_dwordx4 v[{80+4*k}:{83+4*k}], v15, {sWS}, s{85+(k>>1)} offen offset:{2048*(k&1)} sc1")
    a("s_waitcnt vmcnt(0)")
    for k in range(8): a(f"v_xor_b32 v{81+2*k}, s7, v{81+2*k}")
    a("v_or3_b32 v81, v81, v83, v85\nv_or3_b32 v87, v87, v89, v91\nv_or3_b32 v81, v81, v93, v95\nv_or_b32 v81, v81, v87\nv_cmp_ne_u32 vcc, 0, v81")
    a(f"s_cbranch_vccnz {L}_r\n{L}_d:")
    cold.append(f"{L}_r:\ns_sleep {qsleep}\ns_add_u32 s87, s87, 1\ns_cmp_lg_u32 s87, {qB}\ns_cbranch_scc1 {L}_s\n"
                f"v_mov_b32 v77, s77\nv_mov_b32 v79, s77\ns_mov_b32 exec_hi, 0\nbuffer_store_dwordx4 v[76:79], v101, {sWS}, s84 offen sc0 sc1\ns_mov_b64 exec, -1\n"
                f"{L}_s:\ns_cmp_gt_u32 s87, {qB}\ns_cselect_b32 s7, s87, 0\ns_bitcmp1_b32 s7, 0\ns_cselect_b64 vcc, -1, 0\ns_cselect_b32 s7, s77, s83\n"
                f"v_cndmask_b32 v15, v101, v102, vcc\ns_sub_u32 s79, s79, 1\ns_cbranch_scc0 {L}\ns_mov_b32 s79, 0\ns_branch {L}_d")
    a("v_add_f32 v80, v80, v84\nv_add_f32 v82, v82, v86\nv_add_f32 v88, v88, v92\nv_add_f32 v90, v90, v94\nv_add_f32 v80, v80, v88\nv_add_f32 v82, v82, v90")
    a("v_mov_b32 v81, v80\nv_mov_b32 v83, v82\nv_permlane32_swap_b32 v80, v81\nv_permlane32_swap_b32 v82, v83\nv_add_f32 v80, v80, v81\nv_add_f32 v82, v82, v83")
    a(f"v_cvt_pk_bf16_f32 v80, v80, v82\nv_min_u32 v80, -2, v80\nds_write_b32 v103, v80 offset:{QF}")
    stamp(2)
    a("s_mov_b32 s84, s38\ns_mov_b32 s85, s39")
    a("s_cmp_lg_u32 s76, 0\ns_cbranch_scc1 L_noclr")
    a("v_and_b32 v8, 31, v1\nv_lshlrev_b32 v10, 4, v8\nv_lshrrev_b32 v9, 5, v1\nv_lshl_or_b32 v8, v9, 17, v10")
    a(f"s_lshl_b32 s7, s6, 9\ns_add_u32 s7, s7, {OP}\nbuffer_store_dwordx4 v[112:115], v8, {sWS}, s7 offen sc0 sc1")
    a("s_cmp_lg_u32 s84, 1\ns_cbranch_scc1 L_clr2")
    a("v_mul_u32_u24 v8, 20480, v7\nv_lshl_add_u32 v8, v6, 4, v8")
    a(f"s_mul_i32 s7, s72, 2560\ns_lshl_b32 s80, s85, 8\ns_add_u32 s7, s7, s80\ns_add_u32 s7, s7, {YP}")
    a(f"s_mov_b32 exec_hi, 0\nbuffer_store_dwordx4 v[112:115], v8, {sWS}, s7 offen sc0 sc1\ns_mov_b64 exec, -1")
    a("L_clr2:\ns_cmp_lg_u32 s84, 2\ns_cbranch_scc1 L_clr3")
    a(f"v_lshlrev_b32 v8, 4, v1\ns_mul_i32 s7, s85, 2560\ns_add_u32 s7, s7, {DP}")
    for k in range(3): a(("s_mov_b32 exec_hi, 0\n" if k == 2 else "") + f"buffer_store_dwordx4 v[112:115], v8, {sWS}, s7 offen offset:{1024*k} sc0 sc1")
    a("s_mov_b64 exec, -1")
    a(f"L_clr3:\ns_waitcnt vmcnt(0)\nds_write_b32 v61, v61 offset:{CLR}")
    a("L_noclr:")
    a("s_mov_b32 s90, 0x05040100\ns_mov_b32 s91, 0x07060302\ns_mov_b32 s98, 0")
    a("v_and_b32 v8, 1, v1\nv_mul_u32_u24 v8, 0xaaaa, v8\nv_or_b32 v60, 0x4444, v8")
    a("s_cmp_eq_u32 s84, 2\ns_cbranch_scc1 L_ffn\ns_cmp_eq_u32 s84, 1\ns_cbranch_scc1 L_wo")
    if bell:
        a("s_cmp_lg_u32 s73, 27\ns_cbranch_scc1 L_done\ns_cmp_lg_u32 s76, 1\ns_cbranch_scc1 L_done")
        a(f"v_and_b32 v2, 31, v1\nv_lshlrev_b32 v2, 9, v2\ns_lshl_b32 s94, s72, 14\ns_add_u32 s94, s94, {OP + 0x20000}")
        a(f"v_bfe_u32 v3, v1, 3, 2\nv_lshlrev_b32 v3, 10, v3\nv_lshrrev_b32 v9, 5, v1\nv_mul_u32_u24 v9, {nc*cs}, v9\nv_add_u32 v3, v3, v9\nv_and_b32 v9, 7, v1\nv_lshl_add_u32 v3, v9, 4, v3")
        for m in range(nc): a(f"s_lshl_b32 s{80+m}, s72, 7\ns_add_u32 s{80+m}, s{80+m}, {BELL + m*cs}")
        for r in range(4): a(f"v_mov_b32 v{12+r}, s77")
        if packed == 3:
            a(f"v_lshlrev_b32 v3, 8, v1\nv_xor_b32 v10, 0x3080, v3\ns_lshl_b32 s95, s72, 3\ns_add_u32 s95, s95, {BELL}\ns_add_u32 s96, s95, 0x4000")
        elif packed:
            if packed == 2:
                a(f"s_and_b32 s7, s72, 3\ns_lshl_b32 s7, s7, 10\ns_lshr_b32 s95, s72, 2\ns_mul_i32 s95, s95, {nc*cs}\ns_add_u32 s7, s7, s95\ns_add_u32 s7, s7, {BELL}")
                a(f"v_lshrrev_b32 v3, 3, v1\nv_mul_u32_u24 v3, {cs}, v3\nv_lshl_add_u32 v3, v9, 4, v3\ns_mov_b64 exec, {hx((1 << (8*nc)) - 1)}")
                a(f"buffer_store_dwordx4 v[112:115], v3, {sWS}, s7 offen sc0 sc1\ns_mov_b64 exec, -1")
            a(f"v_and_b32 v3, 3, v1\nv_lshlrev_b32 v3, 10, v3\nv_lshrrev_b32 v9, 2, v1\nv_mul_u32_u24 v9, {cs}, v9\nv_add_u32 v3, v3, v9\ns_lshl_b32 s95, s72, 3\ns_add_u32 s95, s95, {BELL}")
        wait_lds(CNT + 4, 3, 4)
        a("s_mov_b32 exec_hi, 0")
        L = loop("bw")
        a(f"buffer_load_dword v9, v2, {sWS}, s94 offen sc1\ns_waitcnt vmcnt(0)\nv_cmp_eq_u32 vcc, -1, v9"); retry(L)
        if ring: a(f"s_sleep {ring}")
        if packed == 3:
            a("s_mov_b32 exec_hi, 0x3fffff")
            for m in range(npoll): a(f"buffer_store_dwordx2 v[12:13], {'v10' if m & 1 else 'v3'}, {sWS}, {'s96' if m & 2 else 's95'} offen sc0 sc1")
        elif packed: a(f"s_mov_b64 exec, {hx((1 << (8*nc)) - 1)}\nbuffer_store_dwordx2 v[12:13], v3, {sWS}, s95 offen sc0 sc1")
        else:
            a("s_mov_b64 exec, -1")
            for m in range(nc): a(f"buffer_store_dwordx4 v[12:15], v3, {sWS}, s{80+m} offen sc0 sc1")
        stamp(3)
        a("L_done:")
    dump_stamps()
    a("s_endpgm")
    flush_cold()

    def proof(r):
        a(f"v_lshlrev_b32 v{r}, 7, v{r}\ns_mov_b32 s7, {ML + 64}")
        L = loop("pf")
        a(f"buffer_load_dwordx2 v[64:65], v{r}, {sWS}, s7 offen sc1\ns_waitcnt vmcnt(0)\nv_cmp_ne_u32 vcc, s77, v65"); retry(L, 16)
    def staged(nbatch, nld, win, load_fn, finish_fn):
        n = nbatch * nld
        for i in range(n + win):
            if i >= win:
                a(f"s_waitcnt vmcnt({min(n, i) - (i - win) - 1})")
                if (i - win + 1) % nld == 0: finish_fn((i - win) // nld, ((i - win) // nld) & 1)
            if i < n: load_fn(i // nld, i % nld, (i // nld) & 1)

    a("L_wo:")
    a("s_lshl_b32 s80, s72, 2\ns_add_u32 s80, s80, s76\ns_lshl_b32 s7, s80, 7\nv_lshrrev_b32 v8, 5, v1\nv_lshl_add_u32 v8, v8, 4, s7")
    a("v_bfe_u32 v9, v1, 4, 1\nv_lshl_add_u32 v8, v9, 1, v8\nv_mul_u32_u24 v8, 1280, v8\ns_lshl_b32 s7, s85, 7\nv_lshl_add_u32 v9, v6, 3, s7\nv_add_u32 v2, v8, v9")
    def wo_load(k, n, slot):
        i, u, e = k >> 1, 2 * (k & 1) + (n >> 1), n & 1
        reg = 64 + slot * 8 + n * 2
        a(f"s_mov_b32 s7, {(64*(u >> 1) + (u & 1) + 32*(i >> 1) + 4*(i & 1) + 8*e) * 1280}\nbuffer_load_dwordx2 v[{reg}:{reg+1}], v2, {sWO}, s7 offen nt")
    def wo_finish(k, slot):
        for p in range(2):
            i, u, t = k >> 1, 2 * (k & 1) + p, 64 + slot * 8 + p * 4
            for q in range(4): a(f"v_perm_b32 v{128 + (i*2 + (q >> 1))*8 + 2*u + (q & 1)}, v{t + 2 + (q>>1)}, v{t + (q>>1)}, s{90 + (q&1)}")
    staged(8, 4, wo_w, wo_load, wo_finish)
    stamp(3)
    wait_lds(PRG, 1, 8)
    a("s_lshl_b32 s7, s80, 3\nv_and_b32 v9, 7, v1\nv_add_u32 v9, s7, v9"); proof(9)
    a(f"s_lshl_b32 s94, s80, 12\ns_add_u32 s94, s94, {OP}\nv_lshlrev_b32 v59, 4, v6\nv_lshl_or_b32 v2, v7, 10, v59")
    a(f"v_add_u32 v5, {RED}, v59\ns_lshl_b32 s7, s76, 8\nv_add_u32 v3, s7, v5")
    a(f"s_mul_i32 s95, s72, 2560\ns_lshl_b32 s7, s85, 8\ns_add_u32 s95, s95, s7\ns_add_u32 s95, s95, {YP}")
    wait_lds(PRG + 4, 1, 8)
    a("L_wo_b:")
    stamp(4)
    for r in (96, 98, 100, 102): zero2(r)
    L = loop("h1")
    for k, off in enumerate((0, 512, 256, 768)): a(f"buffer_load_dwordx4 v[{64+4*k}:{67+4*k}], v2, {sWS}, s94 offen offset:{off} sc1")
    a("s_waitcnt vmcnt(2)"); add4(64, 64, 68); pk("add", 80, 64, 66)
    a("s_waitcnt vmcnt(0)"); add4(68, 72, 76); pk("add", 80, 80, 68); pk("add", 80, 80, 70)
    a("v_cmp_u_f32 vcc, v80, v81\ns_mov_b64 exec, -1")
    retry(L, gentle=16, pre="s_mov_b64 exec, vcc\n", post="s_mov_b64 exec, -1\n")
    stamp(5)
    for r in range(4): a(f"v_permlane32_swap_b32 v{64+r}, v{68+r}")
    add4(64, 64, 68)
    a("v_permlane16_swap_b32 v64, v66\nv_permlane16_swap_b32 v65, v67"); pk("add", 64, 64, 66)
    a("v_cvt_pk_bf16_f32 v72, v64, v65")
    def wo_b(i, rs=range(4)):
        for r in rs: a(f"v_mov_b32_dpp v{80+4*i+r}, v72 row_newbcast:{4*i+r} {DPPM}")
    wo_b(0); wo_b(1, (0, 1))
    fill = [(1, (2, 3)), (2, (0, 1)), (2, (2, 3)), (3, (0, 1)), (3, (2, 3))]
    for i in range(4):
        for qq in range(2):
            smf(96 + 4 * qq, 80 + 4 * i, 128 + (i * 2 + qq) * 8)
            if fill: wo_b(*fill.pop(0))
    a("s_cmp_lg_u32 s76, 0\ns_mov_b64 exec, 0xffff\nds_write_b64 v3, v[96:97]\nds_write_b64 v3, v[100:101] offset:8\ns_cbranch_scc1 L_wo_next")
    L = loop("yr")
    for w in range(4): a(f"ds_read_b128 v[{64+4*w}:{67+4*w}], v5 offset:{256*w}")
    for w in range(1, 4):
        a(f"s_waitcnt lgkmcnt({0 if diag else 3-w})"); add4(64, 64, 64 + 4 * w)
    nan4(64, 68); retry(L)
    a(f"buffer_store_dwordx4 v[64:67], v59, {sWS}, s95 offen sc0 sc1")
    stamp(6)
    a("L_wo_next:\ns_mov_b64 exec, -1\ns_cmp_lg_u32 s98, 0\ns_cbranch_scc1 L_wo_end")
    a("s_add_u32 s94, s94, 0x20000\ns_add_u32 s95, s95, 20480\nv_add_u32 v3, 1024, v3\nv_add_u32 v5, 1024, v5\ns_mov_b32 s98, 1\ns_waitcnt vmcnt(0)")
    wait_lds(CNT + 4, 3, 2)
    a("s_branch L_wo_b\nL_wo_end:")
    dump_stamps()
    a("s_endpgm")
    flush_cold()

    GU, DN, HF, AF = 112, 192, 16, 36
    a("L_ffn:")
    a("s_lshl_b32 s7, s85, 5\nv_lshl_add_u32 v8, v7, 2, s7\nv_mul_u32_u24 v8, 1280, v8\ns_lshl_b32 s7, s76, 8\nv_lshl_add_u32 v9, v6, 4, s7\nv_add_u32 v2, v8, v9")
    def dn_block(blk):
        def ld(u, e, slot):
            r = 64 + slot * 8 + 4 * e
            a(f"s_mov_b32 s7, {(16*(u >> 1) + 2*(u & 1) + e) * 1280 + 1024*blk}\nbuffer_load_dwordx4 v[{r}:{r+3}], v2, {sWD}, s7 offen nt")
        def fin(u, slot):
            for t in range(4):
                for par in range(2): a(f"v_perm_b32 v{DN + 32*blk + 8*t + 2*u + par}, v{68 + slot*8 + t}, v{64 + slot*8 + t}, s{90+par}")
        staged(4, 2, dn_w, ld, fin)
    dn_block(0)
    a("s_cmp_lg_u32 s76, 0\ns_cbranch_scc1 L_dn2")
    dn_block(1)
    a("L_dn2:\ns_mul_i32 s7, s76, 160\nv_lshrrev_b32 v8, 5, v1\nv_mul_u32_u24 v8, 40, v8\nv_bfe_u32 v9, v1, 4, 1\nv_lshl_add_u32 v8, v9, 2, v8\nv_add_u32 v8, s7, v8")
    a("v_mul_u32_u24 v8, 3456, v8\ns_lshl_b32 s7, s85, 6\nv_lshl_add_u32 v9, v6, 2, s7\nv_add_u32 v2, v8, v9")
    def gu_load(k, n, slot):
        (m, i), u, e = divmod(k, 5), n >> 1, n & 1
        if e == 0: a(f"s_mov_b32 s7, {(80*(u >> 1) + 2*(u & 1) + 8*i) * 3456}")
        a(f"buffer_load_dword v{64 + slot*8 + n}, v2, {sWU if m else sWG}, s7 offen offset:{3456*e} nt")
    def gu_finish(k, slot):
        m, i = divmod(k, 5)
        for u in range(4):
            for par in range(2): a(f"v_perm_b32 v{GU + (i*2 + par)*8 + 2*u + m}, v{65 + slot*8 + 2*u}, v{64 + slot*8 + 2*u}, s{90+par}")
    staged(10, 8, gu_w, gu_load, gu_finish)
    stamp(3)
    wait_lds(PRG, 1, 8)
    a("s_mul_i32 s7, s76, 5\ns_lshr_b32 s7, s7, 1\nv_lshrrev_b32 v8, 3, v1\nv_min_u32 v8, 2, v8\nv_add_u32 v8, s7, v8")
    a("v_and_b32 v9, 3, v8\nv_lshrrev_b32 v8, 2, v8\nv_lshl_add_u32 v8, v9, 3, v8\nv_and_b32 v9, 7, v1\nv_lshl_add_u32 v8, v9, 5, v8\nv_add_u32 v44, 1, v8")
    proof(44)
    a("s_cmp_lt_u32 s85, 40\ns_cselect_b32 s87, s76, 0\ns_cmp_lg_u32 s87, 3\ns_cbranch_scc1 L_pf2")
    a("v_min_u32 v8, 53, v1\nv_bfe_u32 v9, v8, 1, 3\nv_lshrrev_b32 v10, 4, v8\nv_and_b32 v8, 1, v8\nv_lshl_add_u32 v8, v10, 1, v8\nv_lshlrev_b32 v8, 2, v8\nv_lshl_add_u32 v44, v9, 5, v8")
    proof(44)
    a("L_pf2:\ns_mul_i32 s7, s76, 40\nv_mul_u32_u24 v8, 10, v7\nv_add3_u32 v8, v8, v6, s7")
    a(f"v_lshlrev_b32 v2, 4, v8\nv_lshlrev_b32 v3, 3, v8\nv_cmp_gt_u32 vcc, 10, v6\nv_add_u32 v5, {HTAB}, v2\nv_mov_b32 v11, {DUMP - 2560}\nv_cndmask_b32 v5, v11, v5, vcc")
    a(f"buffer_load_dwordx2 v[46:47], v3, {sX}, 0 offen\nbuffer_load_dwordx2 v[44:45], v3, {sX}, 0 offen offset:1280")
    a(f"s_lshl_b32 s7, s76, 3\ns_add_u32 s7, s7, {STAT + 4}\nv_and_b32 v8, 4, v1\nv_sub_u32 v50, s7, v8\nv_cmp_gt_u32 vcc, 16, v1\nv_cndmask_b32 v50, v11, v50, vcc\nv_mov_b32 v51, {STAT}")
    a(f"s_lshl_b32 s7, s76, 8\ns_add_u32 s7, s7, {RED}\nv_lshl_add_u32 v52, v6, 4, s7\nv_lshl_add_u32 v52, v7, 11, v52")
    a(f"v_and_b32 v11, 7, v1\nv_lshl_add_u32 v8, v7, 3, v11\nv_lshlrev_b32 v8, 3, v8\nv_add_u32 v53, {RED}, v8\nv_lshrrev_b32 v49, 3, v1\nv_mul_u32_u24 v49, {cs}, v49\nv_lshl_add_u32 v49, v11, 7, v49")
    a("s_lshl_b32 s7, s76, 8\ns_add_u32 s7, s7, 1280\nv_lshl_add_u32 v54, v6, 4, s7\nv_mul_u32_u24 v8, 1280, v7\nv_sub_u32 v54, v54, v8")
    half_masks(12, 11, 8)
    for r in range(4): a(f"v_and_b32 v{12+r}, 0x3f803f80, v{12+r}")
    for r in range(20): a(f"v_mov_b32 v{HF+r}, 0x3f803f80")
    a(f"v_lshrrev_b32 v8, 2, v1\nv_mul_u32_u24 v9, 2560, v8\nv_and_b32 v10, 3, v1\nv_lshl_add_u32 v55, v10, 4, v9\ns_lshl_b32 s7, s85, 6\nv_add_u32 v55, s7, v55")
    a(f"v_cmp_gt_u32 vcc, 6, v8\nv_mov_b32 v10, {hx(OOB)}\nv_cndmask_b32 v56, v10, v55, vcc")
    a("v_and_b32 v8, 16, v1\nv_or_b32 v8, v8, v11\nv_lshrrev_b32 v9, 5, v1\nv_lshl_or_b32 v8, v9, 3, v8")
    a(f"s_lshl_b32 s7, s85, 5\nv_add_u32 v8, s7, v8\nv_lshlrev_b32 v57, 1, v8\nv_lshlrev_b32 v58, 2, v8\nv_add_u32 v58, {HTAB}, v58")
    for k in range(4): a(f"s_mov_b32 s{80+k}, {YP + 5120*k}")
    mask64(50, 0x03FF03FF03FF03FF); mask64(4, 0x00FF00FF00FF00FF); mask64(88, 0xFFFFFFFF)
    for k in (32, 33, 34, 35, 95, 97): a(f"s_mov_b32 s{k}, {hx(OOB)}")
    c1 = -2.0 * 0.7978845608028654 * 1.4426950408889634
    a(f"s_mov_b32 s96, {hx(f2u(c1 * 0.044715))}\nv_mov_b32 v59, {hx(f2u(c1))}\ns_and_b32 s94, s72, 3\ns_lshl_b32 s94, s94, 10\ns_lshr_b32 s7, s72, 2\ns_mul_i32 s7, s7, {nc*cs}\ns_add_u32 s94, s94, s7\ns_add_u32 s94, s94, {BELL}")
    a("s_waitcnt vmcnt(0)"); unpack(40, 41, 46); unpack(42, 43, 47)
    for r in (96, 98, 100, 102): zero2(r)
    wait_lds(PRG + 8, 1, 8)
    a("L_ffn_b:")
    stamp(4)
    a("s_mov_b64 exec, s[50:51]")
    L = loop("h2")
    for k in range(8): a(f"buffer_load_dwordx4 v[{64+4*k}:{67+4*k}], v2, {sWS}, s{80+(k>>1)} offen offset:{2560*(k&1)} sc1")
    for k in range(8):
        a(f"s_waitcnt vmcnt({7-k})"); add4(108, 108 if k else 40, 64 + 4 * k)
    a("v_cvt_pk_bf16_f32 v10, v108, v109\nv_cvt_pk_bf16_f32 v11, v110, v111")
    nan4(108, 8); retry(L, gentle=16)
    a("s_mov_b64 exec, -1")
    stamp(5)
    def gu_b(i, rs=range(4)):
        for r in rs: a(f"v_mov_b32_dpp v{HF+4*i+r}, v{10+(r&1)} row_newbcast:{2*i+(r>>1)} row_mask:0xf bank_mask:0x5")
    gu_b(0); gu_b(1, (0, 1))
    fill = [F(gu_b, 1, (2, 3))] + [F(gu_b, i, rs) for i in (2, 3, 4) for rs in ((0, 1), (2, 3))]
    fill += [F(a, "ds_write_b128 v5, v[108:111]")] + [F(a, f"v_mov_b64 v[{64+8*k}:{65+8*k}], 0\nv_mov_b64 v[{68+8*k}:{69+8*k}], 0") for k in range(4)]
    for i in range(5):
        for q in range(3):
            if q == 0: mfma(104, HF + 4 * i, HF + 4 * i, i == 0)
            else: smf(92 + 4 * q, HF + 4 * i, GU + (i * 2 + q - 1) * 8)
            if fill: fill.pop(0)()
    a("s_mov_b64 exec, s[88:89]\nds_write_b32 v50, v104\nds_write_b64 v52, v[96:97]\nds_write_b64 v52, v[100:101] offset:8\ns_mov_b64 exec, -1")
    stamp(6)
    L = loop("gr")
    a("ds_read_b128 v[104:107], v51\nds_read_b128 v[108:111], v51 offset:16")
    a("ds_read2_b64 v[96:99], v53 offset0:0 offset1:32\nds_read2_b64 v[100:103], v53 offset0:64 offset1:96")
    a(f"s_waitcnt lgkmcnt({0 if diag else 2})"); add4(104, 104, 108); pk("add", 104, 104, 106)
    a("v_mul_f32 v104, s92, v104\nv_mul_f32 v105, s92, v105\nv_fma_f32 v105, -v104, v104, v105\nv_max_f32 v106, 0, v105\nv_add_f32 v106, s93, v106\nv_rsq_f32 v106, v106")
    a("s_waitcnt lgkmcnt(0)"); add4(96, 96, 100); pk("add", 96, 96, 98)
    a("v_add_f32 v105, v105, v96\nv_cmp_u_f32 vcc, v105, v97\ns_cmp_eq_u32 s98, 0")
    retry(L, post="s_cmp_eq_u32 s98, 0\n")
    a("s_cbranch_scc1 L_cs\nL_csd:")
    cold.append("L_cs:\nv_add_u32 v8, 2048, v53\nds_read2_b64 v[100:103], v8 offset0:0 offset1:32\nds_read2_b64 v[108:111], v8 offset0:64 offset1:96\ns_waitcnt lgkmcnt(0)\n"
                "v_pk_add_f32 v[100:101], v[100:101], v[102:103]\nv_pk_add_f32 v[108:109], v[108:109], v[110:111]\nv_pk_add_f32 v[62:63], v[100:101], v[108:109]\ns_branch L_csd")
    a("v_pk_fma_f32 v[96:97], v[62:63], v[104:105], v[96:97] op_sel_hi:[1,0,1] neg_lo:[0,1,0] neg_hi:[0,1,0]")
    a("v_pk_mul_f32 v[96:97], v[96:97], v[106:107] op_sel_hi:[1,0]")
    a("v_mul_f32 v98, v96, v96\nv_fma_f32 v98, v98, s96, v59\nv_mul_f32 v98, v98, v96\nv_exp_f32 v98, v98\nv_mul_f32 v96, v96, v97")
    a("v_add_f32 v98, 1.0, v98\nv_rcp_f32 v98, v98\nds_read_b32 v48, v58\nv_mul_f32 v96, v96, v98\ns_cmp_eq_u32 s98, 0")
    a(f"v_mov_b32_dpp v97, v96 quad_perm:[1,1,3,3] {DPPM}\nv_cvt_pk_bf16_f32 v96, v96, v97")
    def dn_a(bank): return "\n".join(f"v_mov_b32_dpp v{AF+r}, v96 row_newbcast:{2*r} row_mask:0xf bank_mask:{bank}" for r in range(4))
    a("s_cbranch_scc1 L_keep\nL_kept:\ns_cmp_lg_u32 s76, 0")
    cold.append("L_keep:\n" + dn_a("0xa") + "\ns_branch L_kept")
    a(dn_a("0x5"))
    for t in range(4): smf(64 + 4 * t, AF, DN + 8 * t)
    a("s_cbranch_scc1 L_dn3")
    for t in range(4, 8): smf(64 + 4 * t, AF, DN + 8 * t)
    a("L_dn3:\ns_mov_b32 exec_hi, 0")
    for blk in range(2):
        if blk: a("s_cbranch_scc1 L_dn4")
        for t in range(4): a(f"v_cvt_pk_bf16_f32 v{96+4*blk+t}, v{64+16*blk+4*t}, v{65+16*blk+4*t}")
        a(f"buffer_store_dwordx4 v[{96+4*blk}:{99+4*blk}], v54, {sWS}, s95 offen offset:{1024*blk} sc0 sc1")
    a("L_dn4:\ns_mov_b64 exec, -1")
    stamp(7)
    a("s_cmp_lg_u32 s87, 3\ns_cbranch_scc1 L_ffn_next")
    if pre3: a(f"s_sleep {pre3}")
    L = loop("h3")
    for k in range(4): a(f"buffer_load_dwordx4 v[{64+4*k}:{67+4*k}], {'v56' if k == 3 else 'v55'}, {sWS}, s{32+k} offen sc1")
    for k in range(4):
        a(f"s_waitcnt vmcnt({3-k})" + (" lgkmcnt(0)" if k == 0 else "")); mfma(80, 64 + 4 * k, 12, k == 0)
    a("v_permlane32_swap_b32 v80, v81\nv_permlane32_swap_b32 v82, v83\nv_add_f32 v80, v80, v81\nv_add_f32 v82, v82, v83\nv_cmp_u_f32 vcc, v80, v82")
    a("v_permlane16_swap_b32 v80, v82\nv_add_f32 v80, v80, v48\nv_add_f32 v80, v80, v82")
    retry(L)
    stamp(8)
    a(f"v_cvt_pk_bf16_f32 v80, v80, v80\ns_mov_b64 exec, s[4:5]\nbuffer_store_short v80, v57, {sOUT}, s97 offen\ns_mov_b64 exec, -1")
    stamp(9)
    a("s_cmp_lg_u32 s85, 0\ns_cbranch_scc1 L_ffn_next")
    a(f"v_mov_b32 v8, s77\ns_mov_b64 exec, 1\nbuffer_store_dword v8, v61, {sWS}, s97 offen\ns_mov_b64 exec, -1")
    a("L_ffn_next:\ns_cmp_lg_u32 s98, 0\ns_cbranch_scc1 L_ffn_end")
    for k in range(4): a(f"s_add_u32 s{80+k}, s{80+k}, 20480\ns_mov_b32 s{32+k}, {DP + 40960*k}")
    a(f"s_mul_i32 s95, s85, 2560\ns_add_u32 s95, s95, {DP}\ns_mov_b32 s97, 0\ns_mov_b32 s98, 1\ns_mov_b32 s88, 0xffff")
    a("v_add_u32 v5, 2560, v5\nv_add_u32 v50, 128, v50\nv_add_u32 v51, 128, v51\nv_add_u32 v52, 1024, v52\nv_add_u32 v53, 1024, v53")
    unpack(40, 41, 44); unpack(42, 43, 45)
    for r in (96, 98, 100, 102): zero2(r)
    wait_lds(CNT + 4, 3, 2)
    if bell and sbell:
        wait_lds(HEARD, 1, 0)
        if pre2: a(f"s_sleep {pre2}")
    elif bell:
        if nc < 8: a(f"s_mov_b32 exec_hi, 0\ns_mov_b32 exec_lo, {hx((1 << (8*nc)) - 1)}")
        L = loop("bell")
        a(f"buffer_load_dword v9, v49, {sWS}, s94 offen sc1\ns_waitcnt vmcnt(0)\nv_cmp_ne_u32 vcc, s77, v9")
        for sh in (32, 16, 8):
            if 8 * nc > sh: a(f"s_lshr_b64 s[36:37], vcc, {sh}\ns_and_b64 vcc, vcc, s[36:37]")
        retry(L)
        if pre2: a(f"s_sleep {pre2}")
    a("s_branch L_ffn_b\nL_ffn_end:")
    dump_stamps()
    a("L_exit:\ns_endpgm")
    flush_cold()
    a("L_code_end:")

    hdr = open("cdna_kernels/" + NAME + ".s.ref").read().split("; Override launch")[0]
    out = [hdr.rstrip(), f"; @launch grid=(256,1,1) block=(512,1,1) lds={LDSZ}", '.amdgcn_target "amdgcn-amd-amdhsa--gfx950"']
    out += a.finish()
    out.append(f""".section .rodata,"a"
.p2align 6
.amdhsa_kernel {kname}
  .amdhsa_next_free_vgpr 256
  .amdhsa_next_free_sgpr 102
  .amdhsa_accum_offset 256
  .amdhsa_group_segment_fixed_size 0
  .amdhsa_kernarg_size 96
  .amdhsa_user_sgpr_count 2
  .amdhsa_user_sgpr_kernarg_segment_ptr 1
  .amdhsa_system_sgpr_workgroup_id_x 1
  .amdhsa_float_denorm_mode_32 3
.end_amdhsa_kernel""")
    return "\n".join(out) + "\n"

if __name__ == "__main__":
    kw = eval("dict(" + (sys.argv[2] if len(sys.argv) > 2 else "") + ")")
    open(sys.argv[1], "w").write(gen(**kw))
```

```python
import sys, struct
from asmlib import Asm

NAME = "sequential_preLN__mha_block_cached__geglu_ffn__decode"
def f2u(x): return struct.unpack("<I", struct.pack("<f", x))[0]
def hx(x): return "0x%08x" % (x & 0xffffffff)

REF, BELL, QP, OP, YP, DP, ML, DIAG, QPB, WSZ = 0x1000, 0x170000, 0x10000, 0x90000, 0x140000, 0xE0000, 0x130000, 0x1a0000, 0x200000, 0x280000
RS = 4352
OOB = 0x7ff00000
HEARD, PF = 4632, 0x180000
QRED, QF, CNT, MCNT, NEAR, PRG, MRED, STAT, RED, ORED, HTAB, DUMP, LDSZ = 0, 4096, 4608, 4616, 4624, 4640, 4672, 4864, 5120, 8192, 12288, 22016, 24576
sK, sV, sWS, sX, sWQ, sWO, sWG, sWU, sWD, sOUT = [f"s[{n}:{n+3}]" for n in range(32, 72, 4)]
DPPM = "row_mask:0xf bank_mask:0xf"
LOG2E = f2u(1.4426950408889634)
MFMA = "v_mfma_f32_16x16x32_bf16"

def gen(depth=5, ctl=(8, 6, 5), E=24, dl=11, dw=12, nref=8, gb=20, gs=24, bias=0, ph0=17, ex=16, fin=(14, 16, 10, 16), mids=(11,), fmids=(6,),
        P=39, budget=56, ml0=124, ml1=194, gates=(222, 250), qpre=24, qsleep=2, qB=6, wo_w=2, gu_w=4, dn_w=2,
        pre2=0, pre3=12, ring=0, nc=2, cs=12288, late=4, ffb=50, ffb_from=230, bell=True, fast=True, setup_at=20, SPIN=0x100000, diag=False, early=False, skip='', warm=1, dsched=None, cpf=2, wqfirst=False, bar=3, mlnear=True):
    a = Asm()
    cold = []
    kname = NAME + "_kernel"
    def stamp(k):
        if diag and k == 0: a("s_mov_b32 s8, s100")
        elif diag: a(f"s_memrealtime s[{8+2*k}:{9+2*k}]")
    def dump_stamps():
        if not diag: return
        a("s_waitcnt lgkmcnt(0)\ns_mov_b64 exec, 1\ns_lshl_b32 s90, s6, 3\ns_add_u32 s90, s90, s3\ns_lshl_b32 s90, s90, 6")
        a(f"s_add_u32 s90, s90, {DIAG}\nv_mov_b32 v5, 0")
        for k in range(11): a(f"v_mov_b32 v{112+k}, s{8+2*k}")
        a("v_mov_b32 v123, s78")
        for q in range(3): a(f"buffer_store_dwordx4 v[{112+4*q}:{115+4*q}], v5, {sWS}, s90 offen offset:{16*q}")
    def srd_tail(n, size): a(f"s_mov_b32 s{n+2}, {hx(size)}\ns_mov_b32 s{n+3}, 0x20000")
    def bfr(d, s): a(f"v_cvt_pk_bf16_f32 v{d}, v{s}, v{s}\nv_and_b32 v{d}, 0xffff0000, v{d}")
    def unpack(d0, d1, s): a(f"v_lshlrev_b32 v{d0}, 16, v{s}\nv_and_b32 v{d1}, 0xffff0000, v{s}")
    def pk(op, d, x, y): a(f"v_pk_{op}_f32 v[{d}:{d+1}], v[{x}:{x+1}], v[{y}:{y+1}]")
    def add4(d, x, y): pk("add", d, x, y); pk("add", d + 2, x + 2, y + 2)
    def mask64(n, v): a(f"s_mov_b32 s{n}, {hx(v)}\ns_mov_b32 s{n+1}, {hx(v >> 32)}")
    def mfma(d, A, B, first): a(f"{MFMA} v[{d}:{d+3}], v[{A}:{A+3}], v[{B}:{B+3}], {'0' if first else f'v[{d}:{d+3}]'}")
    def smf(d, A, B): a(f"v_smfmac_f32_16x16x64_bf16 v[{d}:{d+3}], v[{A}:{A+3}], v[{B}:{B+7}], v60")
    def zero2(r): a(f"v_mov_b64 v[{r}:{r+1}], 0")
    def loop(base):
        L = a.lab(base); a(L + ":"); return L
    def retry(L, sleep=0, gentle=0, pre='', post=''):
        a(f"s_cbranch_vccnz {L}_r\n{L}_d:")
        t = f"{L}_r:\n" + pre
        if sleep: t += f"s_sleep {sleep}\n"
        if gentle: t += f"s_cmp_lg_u32 s98, 0\ns_cbranch_scc1 {L}_n\ns_sleep {gentle}\n{L}_n:\n"
        cold.append(t + f"s_sub_u32 s79, s79, 1\ns_cbranch_scc0 {L}\ns_mov_b32 s79, 0\n{post}s_branch {L}_d")
    def flush_cold():
        for t in cold: a(t)
        cold.clear()
    def empty_check(regs, t):
        regs = list(regs)
        a(f"v_max3_u32 v{t}, v{regs[0]}, v{regs[1]}, v{regs[2]}"); regs = regs[3:]
        while len(regs) >= 2: a(f"v_max3_u32 v{t}, v{t}, v{regs[0]}, v{regs[1]}"); regs = regs[2:]
        if regs: a(f"v_max_u32 v{t}, v{t}, v{regs[0]}")
        a(f"v_cmp_eq_u32 vcc, -1, v{t}")
    def nan4(x, t): pk("add", t, x, x + 2); a(f"v_cmp_u_f32 vcc, v{t}, v{t+1}")
    def rows_allreduce(op, v, t, both=True):
        a(f"v_mov_b32 v{t}, v{v}\nv_permlane16_swap_b32 v{v}, v{t}\n{op} v{v}, v{v}, v{t}")
        if both: a(f"v_mov_b32 v{t}, v{v}\nv_permlane32_swap_b32 v{v}, v{t}\n{op} v{v}, v{v}, v{t}")
    def half_masks(first, esrc, t0):
        a(f"v_and_b32 v{t0}, 1, v{esrc}\nv_lshlrev_b32 v{t0}, 4, v{t0}\nv_mov_b32 v{t0+1}, 0xffff\nv_lshlrev_b32 v{t0}, v{t0}, v{t0+1}")
        a(f"v_lshrrev_b32 v{t0+1}, 1, v{esrc}")
        for r in range(4): a(f"v_cmp_eq_u32 vcc, {r}, v{t0+1}\nv_cndmask_b32 v{first+r}, 0, v{t0}, vcc")
    def wait_lds(addr, val, sleep):
        L = loop("lds")
        a(f"ds_read_b32 v8, v61 offset:{addr}\ns_waitcnt lgkmcnt(0)\nv_cmp_ne_u32 vcc, {val}, v8")
        retry(L, sleep)
    def tag_field(d, pos):
        a(f"v_and_b32 v{d}, 3, v{pos}\nv_mul_u32_u24 v{d}, 7, v{d}\nv_lshrrev_b32 v{d}, v{d}, s77\nv_and_b32 v{d}, 0xffe, v{d}\nv_and_or_b32 v{d}, s77, 1, v{d}")
    def untag(x, f): a(f"v_xor_b32 v{x}, v{x}, v{f}")
    def tag_acc(acc, x, y, first): a(f"v_or_b32 v{acc}, v{x}, v{y}" if first else f"v_or3_b32 v{acc}, v{acc}, v{x}, v{y}")
    def tag_test(acc): a(f"v_and_b32 v{acc}, 0xfff, v{acc}\nv_cmp_ne_u32 vcc, 0, v{acc}")
    def next_tag(): a("s_mul_i32 s77, s77, 1664525\ns_add_u32 s77, s77, 1013904223")

    a(f".text\n.globl {kname}\n.p2align 8\n.type {kname},@function\n{kname}:")
    a("s_cmp_ge_u32 s2, 256\ns_cbranch_scc1 L_exit")
    if diag: a("s_memrealtime s[100:101]")
    a("s_load_dwordx8 s[8:15], s[0:1], 0")
    a("s_getpc_b64 s[4:5]\nL_pc:")
    if cpf == 0: a("v_lshlrev_b32 v4, 7, v0")
    else:
        a(f"s_lshr_b32 s3, s2, {3 + cpf - 1}\nv_lshrrev_b32 v4, {5 - (cpf - 1)}, v0\nv_lshlrev_b32 v4, {5 - (cpf - 1)}, v4\nv_add_lshl_u32 v4, v4, s3, 7")
    a("v_min_u32 v4, L_code_end-L_pc-4, v4\nglobal_load_dword v4, v4, s[4:5]")
    a("v_lshrrev_b32 v5, 6, v0\nv_and_b32 v1, 63, v0\nv_readfirstlane_b32 s3, v5")
    a("s_and_b32 s72, s2, 7\ns_lshr_b32 s73, s2, 3\ns_lshl_b32 s6, s72, 5\ns_add_u32 s6, s6, s73")
    a("s_lshr_b32 s74, s6, 3\ns_and_b32 s75, s6, 7\ns_and_b32 s76, s3, 3")
    a("v_and_b32 v6, 15, v1\nv_lshrrev_b32 v7, 4, v1")
    srd_tail(40, WSZ)
    a(f"s_mov_b32 s79, {SPIN}\ns_cmp_lt_u32 s3, 4\ns_cbranch_scc1 L_aux0")
    def aux_start():
        a("L_aux0:\nv_lshlrev_b32 v96, 4, v0\nv_mov_b32 v112, -1\nv_mov_b32 v113, -1\nv_mov_b32 v114, -1\nv_mov_b32 v115, -1")
        a("ds_write_b128 v96, v[112:115]\nds_write_b128 v96, v[112:115] offset:4096")
        a("v_and_b32 v8, 31, v1\nv_lshlrev_b32 v8, 3, v8\nv_lshrrev_b32 v9, 5, v1\nv_mul_u32_u24 v9, 1280, v9\nv_add_u32 v2, v8, v9")
        a("s_mul_i32 s7, s75, 80\ns_mul_i32 s80, s76, 20\ns_add_u32 s7, s7, s80\nv_add_u32 v8, s7, v7")
        a("v_bfe_u32 v9, v1, 3, 1\nv_mul_u32_u24 v9, 1280, v9\nv_lshl_add_u32 v3, v8, 1, v9")
        a("s_lshl_b32 s7, s74, 8\nv_lshlrev_b32 v8, 13, v8\nv_lshl_add_u32 v9, v6, 4, s7\nv_add_u32 v5, v8, v9")
        srd_tail(44, 2560); srd_tail(48, 640 * 4096 * 2)
        a("s_mov_b32 s7, 0\ns_waitcnt lgkmcnt(0)\ns_mov_b64 s[44:45], s[8:9]\ns_mov_b64 s[48:49], s[14:15]")
        def l1():
            for i in range(5): a(f"buffer_load_dwordx2 v[{8+2*i}:{9+2*i}], v2, {sX}, 0 offen offset:{256*i}")
        def l2():
            for i in range(5): a(f"buffer_load_ushort v{18+i}, v3, {sX}, 0 offen offset:{8*i}")
        def l3():
            for i in range(5): a(f"buffer_load_dwordx4 v[{24+4*i}:{27+4*i}], v5, {sWQ}, s7 offen nt" + ("\ns_add_u32 s7, s7, 0x8000" if i < 4 else ""))
        for n, f in enumerate({0: (l1, l2, l3), 1: (l3, l1, l2), 2: (l1, l3, l2)}[int(wqfirst)]):
            if n == bar: a("s_barrier")
            f()
        a("s_load_dwordx8 s[16:23], s[0:1], 32\ns_load_dwordx8 s[24:31], s[0:1], 64")
        if bar == 3: a("s_barrier")
        a("s_branch L_aux")

    a("s_setprio 2")
    a("v_bfe_u32 v8, v1, 2, 2\nv_lshlrev_b32 v8, 8, v8\nv_lshl_or_b32 v8, v7, 6, v8\nv_and_b32 v9, 3, v1\nv_lshl_or_b32 v2, v9, 4, v8")
    a("s_and_b32 s80, s75, 3\ns_cselect_b32 s71, 0, 0x80000000\ns_lshl_b32 s70, s75, 18")
    a("s_lshl_b32 s7, s74, 21\ns_lshl_b32 s80, s76, 10\ns_add_u32 s7, s7, s80\nv_add_u32 v2, s7, v2\nv_lshl_add_u32 v3, v1, 4, s7")
    srd_tail(32, 1 << 27); srd_tail(36, 1 << 27)
    a("s_waitcnt lgkmcnt(0)\ns_mov_b64 s[32:33], s[10:11]\ns_mov_b64 s[36:37], s[12:13]")
    RING, NB, PH, NG = 100, 39, 68, 17
    BK, DK, ACC, BV, MLB, MLS, RMAX, S, NINF = 16, 32, 40, 44, 52, 56, 60, [64, 81], 98
    vm, landed, ld_idx, items, got = ["code"], [-1], {}, [], set()
    def wait_vm(idx):
        if idx > landed[0]:
            a(f"s_waitcnt vmcnt({len(vm) - 1 - idx})"); landed[0] = idx
    def kind(n):
        k, r = divmod(n, 17)
        if r == 16: return ("hole", k)
        m = 16 * k + r
        return ("opt" if (m & 3) == ((m >> 2) & 3) else "own", m)
    def address(i):
        ph, n = divmod(i, PH); b = ph & 1
        kd, m = kind(n)
        if kd == "hole": a(f"s_add_u32 s73, s72, {hx((b << 26) + m * 65536)}"); return "s73"
        a(f"s_add_u32 s7, s70, {hx(b << 26)}" if m == 0 else "s_addk_i32 s7, 0x1000")
        if kd == "own": return "s7"
        a("s_or_b32 s73, s7, s71"); return "s73"
    def issue(i, so):
        isv = i >= 2 * PH; r = RING + (i % NB) * 4
        a(f"buffer_load_dwordx4 v[{r}:{r+3}], {'v3' if isv else 'v2'}, {sV if isv else sK}, {so} offen nt")
        ld_idx[i] = len(vm); vm.append(i)
    def add(cost, needs, fn): items.append((cost, needs, fn))
    def setup1():
        a("s_getreg_b32 s78, hwreg(HW_REG_XCC_ID, 0, 4)")
        a("s_and_b32 s72, s75, 4\ns_lshl_b32 s72, s72, 18\ns_and_b32 s80, s75, 3\ns_mul_i32 s80, s80, 20480\ns_add_u32 s72, s72, s80")
        half_masks(10, 6, 8)
        a("v_and_b32 v9, 3, v1\nv_lshlrev_b32 v9, 4, v9\nv_lshl_or_b32 v14, v7, 6, v9")
        a("v_and_b32 v15, 31, v1\nv_lshlrev_b32 v15, 4, v15")
        a("v_lshl_add_u32 v9, v7, 3, v6\nv_lshlrev_b32 v9, 4, v9\ns_lshl_b32 s80, s76, 9\nv_add_u32 v62, s80, v9")
        a("s_lshl_b32 s80, s6, 9\nv_add_u32 v63, s80, v15")
        a(f"v_mov_b32 v61, 0\nv_mov_b32 v5, 1\nv_mov_b32 v{NINF}, 0xff800000")
    def setup2():
        a("s_waitcnt lgkmcnt(0)\ns_load_dword s77, s[40:41], 0")
        a(f"s_lshr_b32 s90, s6, 5\ns_lshl_b32 s90, s90, 12\ns_add_u32 s90, s90, {ML}\ns_lshl_b32 s91, s6, 7\ns_add_u32 s91, s91, {ML}")
        a("v_bfe_u32 v9, v1, 2, 3\nv_lshlrev_b32 v9, 7, v9\nv_and_b32 v4, 3, v1\nv_lshl_or_b32 v0, v4, 4, v9\ns_and_b32 s80, s74, 3\ns_lshl_b32 s80, s80, 10\nv_add_u32 v0, s80, v0")
        a("v_and_b32 v8, 31, v1\nv_min_u32 v8, 11, v8\nv_and_b32 v9, 3, v8\nv_lshrrev_b32 v8, 2, v8\nv_lshl_add_u32 v8, v9, 3, v8\nv_lshlrev_b32 v8, 7, v8\nv_add_u32 v8, 192, v8")
        a("v_cmp_gt_u32 vcc, 32, v1\nv_cndmask_b32 v99, v8, v0, vcc\nv_lshlrev_b32 v4, 3, v4")
        a("s_lshl_b32 s99, s76, 3\ns_ashr_i32 s98, s71, 31")
        if ctl:
            a(f"s_sub_u32 s65, s2, {256 - nref}\ns_cselect_b32 s64, 0, 1\ns_cmp_eq_u32 s76, 0\ns_cselect_b32 s64, s64, 0\ns_mul_i32 s65, s65, {RS}\ns_add_u32 s65, s65, {REF}")
            a(f"s_add_u32 s66, s40, {REF}\ns_addc_u32 s67, s41, 0\ns_mov_b32 s62, 0\ns_mov_b32 s63, 0")
        for t in range(4): mask64(80 + 2 * t, 0x000F000F000F000F << (4 * t))
        mask64(88, 0x00FF00FF00FF00FF)
        a(f"s_mov_b32 s92, {hx(f2u(128 ** -0.5))}\ns_mov_b32 s93, {hx(LOG2E)}")
    def setup3():
        a("s_waitcnt lgkmcnt(0)"); next_tag(); tag_field(1, 1)
    def it_qfrag(b):
        L = loop("q")
        a(f"ds_read_b128 v[{BV}:{BV+3}], v14 offset:{QF + b * 256}\ns_waitcnt lgkmcnt(0)")
        empty_check(range(BV, BV + 4), BV + 4); retry(L, 1)
        if b == 0:
            stamp(1); a(f"ds_read_b32 v8, v61 offset:{NEAR}\ns_waitcnt lgkmcnt(0)\nv_readfirstlane_b32 s31, v8")
        for t in range(4):
            for r in range(4): a(f"v_cndmask_b32 v{BK + 4*t + r}, 0, v{BV + r}, s[{80+2*t}:{81+2*t}]")
    def it_k(i):
        n = i % PH
        mfma(DK + ((n >> 2) & 1) * 4, RING + (i % NB) * 4, BK + 4 * (n & 3), n & 3 == 0)
    def it_kred(b, u):
        d = DK + (u & 1) * 4; s = S[b] + u
        a(f"v_mov_b32_dpp v{s}, v{d} quad_perm:[0,0,0,0] {DPPM}")
        for r in range(1, 4): a(f"v_add_f32_dpp v{s}, v{d+r}, v{s} quad_perm:[{r},{r},{r},{r}] {DPPM}")
        bfr(s, s); a(f"v_mul_f32 v{s}, s92, v{s}"); bfr(s, s)
        om = sum(0x000F000F << (4 * t) for t in range(4) if kind(4 * u + t)[0] == "opt")
        if om: a(f"s_and_b32 s0, s98, {hx(om)}\ns_mov_b32 s1, s0\nv_cndmask_b32 v{s}, v{s}, v{NINF}, s[0:1]")
        a(f"v_mov_b32 v{RMAX}, v{s}" if u == 0 else f"v_max_f32 v{RMAX}, v{RMAX}, v{s}")
    def it_max(b):
        a(f"v_max_f32_dpp v{RMAX}, v{RMAX}, v{RMAX} row_ror:8 {DPPM}\nv_max_f32_dpp v{RMAX}, v{RMAX}, v{RMAX} row_ror:4 {DPPM}")
        rows_allreduce("v_max_f32", RMAX, BV)
        a(f"v_mov_b32 v{MLS}, v{RMAX}\nv_mov_b32 v{MLS+1}, 0")
    def it_sum(b, u0):
        n = min(4, NG - u0)
        for u in range(n): a(f"v_sub_f32 v{BV+u}, v{S[b]+u0+u}, v{MLS}")
        for u in range(n): a(f"v_mul_f32 v{BV+u}, s93, v{BV+u}")
        for u in range(n): a(f"v_exp_f32 v{BV+u}, v{BV+u}")
        for u in range(n): a(f"v_add_f32 v{MLS+1}, v{MLS+1}, v{BV+u}")
    def it_mlpub(b):
        l, Ls = MLS + 1, a.lab("mlast")
        a(f"v_add_f32_dpp v{l}, v{l}, v{l} row_ror:8 {DPPM}\nv_add_f32_dpp v{l}, v{l}, v{l} row_ror:4 {DPPM}")
        rows_allreduce("v_add_f32", l, BV)
        a(f"v_mov_b32 v8, s99\ns_mov_b64 exec, 1\nds_write_b64 v8, v[{MLS}:{MLS+1}] offset:{MRED + 32*b}")
        a(f"ds_add_rtn_u32 v8, v61, v5 offset:{MCNT + 4*b}\ns_mov_b64 exec, -1")
        a(f"ds_read_b64 v[{BV}:{BV+1}], v4 offset:{MRED + 32*b}\ns_waitcnt lgkmcnt(0)\nv_readfirstlane_b32 s96, v8")
        a(f"s_cmp_lg_u32 s96, 2\ns_cbranch_scc1 {Ls}")
        a(f"v_mov_b32 v8, s78\nv_cndmask_b32 v{MLS}, v8, v{BV}, s[80:81]\nv_mov_b32 v{MLS+1}, s77\nv_mov_b32 v{MLS+2}, v{BV+1}\nv_mov_b32 v{MLS+3}, s77")
        a(f"s_add_u32 s96, s91, {b * 32768}\ns_mov_b64 exec, 0xff\ns_cmp_lg_u32 s31, {0 if mlnear else 7}\ns_cbranch_scc1 {Ls}_far")
        a(f"buffer_store_dwordx4 v[{MLS}:{MLS+3}], v15, {sWS}, s96 offen\n{Ls}:\ns_mov_b64 exec, -1")
        cold.append(f"{Ls}_far:\nbuffer_store_dwordx4 v[{MLS}:{MLS+3}], v15, {sWS}, s96 offen sc0 sc1\ns_branch {Ls}")
    def ml_load(b): return f"buffer_load_dwordx4 v[{MLB}:{MLB+3}], {'v0' if b else 'v99'}, {sWS}, s94 offen sc1"
    def ml_issue(b):
        a(f"s_add_u32 s94, s90, {b * 32768}\n" + ml_load(b))
        ld_idx[("ml", b)] = len(vm); vm.append("ml")
    def it_mlget(b):
        L = loop("ml")
        a(f"v_cmp_ne_u32 vcc, s77, v{MLB+1}\nv_cmp_ne_u32 s[96:97], s77, v{MLB+3}\ns_or_b64 vcc, vcc, s[96:97]")
        if b == 0: a("s_mov_b32 s30, vcc_hi\ns_mov_b32 vcc_hi, 0")
        a(f"s_cmp_lg_u32 vcc_lo, 0\ns_cbranch_scc1 {L}_r\n{L}_d:")
        cold.append(f"{L}_r:\ns_sleep 4\n{ml_load(b)}\ns_waitcnt vmcnt(0)\ns_sub_u32 s79, s79, 1\ns_cbranch_scc0 {L}\ns_mov_b32 s79, 0\ns_branch {L}_d")
        got.add(b)
        if b == 0: a(f"v_cmp_ne_u32 vcc, s78, v{MLB}\ns_or_b32 s30, s30, {'vcc_hi' if fast else '1'}")
        M, Ls = MLB + 1, MLB + 2
        a(f"v_max_f32_dpp v{M}, v{MLB}, v{MLB} row_ror:8 {DPPM}")
        for k in (4, 2, 1): a(f"v_max_f32_dpp v{M}, v{M}, v{M} row_ror:{k} {DPPM}")
        rows_allreduce("v_max_f32", M, 8, both=False)
        a(f"v_sub_f32 v8, v{MLB}, v{M}\nv_mul_f32 v8, s93, v8\nv_exp_f32 v8, v8\nv_mul_f32 v{Ls}, v{Ls}, v8")
        for k in (8, 4, 2, 1): a(f"v_add_f32_dpp v{Ls}, v{Ls}, v{Ls} row_ror:{k} {DPPM}")
        rows_allreduce("v_add_f32", Ls, 8, both=False)
        a(f"v_rcp_f32 v{Ls}, v{Ls}\nv_readfirstlane_b32 s4, v{M}\nv_readfirstlane_b32 s5, v{Ls}")
    def it_p(b, u0):
        R = [S[b] + u for u in range(u0, min(u0 + 4, NG))]
        for s in R: a(f"v_subrev_f32 v{s}, s4, v{s}")
        for s in R: a(f"v_mul_f32 v{s}, s93, v{s}")
        for s in R: a(f"v_exp_f32 v{s}, v{s}")
        for s in R: a(f"v_mul_f32 v{s}, s5, v{s}")
        for s in R: a(f"v_cvt_pk_bf16_f32 v{s}, v{s}, v{s}")
    def it_vb(i):
        b, n = divmod(i - 2 * PH, PH)
        for r in range(4): a(f"v_and_b32_dpp v{BV + (i & 1)*4 + r}, v{S[b] + (n >> 2)}, v{10+r} row_newbcast:{4*(n & 3)} {DPPM}")
    def it_v(i): mfma(ACC, RING + (i % NB) * 4, BV + (i & 1) * 4, i % PH == 0)
    def it_opub(b):
        Ls = a.lab("olast")
        if b == 1: stamp(2)
        a(f"s_mov_b32 s95, {OP + b * 0x20000}\ns_movk_i32 s97, 0xfff\ns_mov_b64 exec, s[88:89]")
        a(f"ds_write_b128 v62, v[{ACC}:{ACC+3}] offset:{ORED + b * 2048}")
        a(f"s_mov_b64 exec, 1\nds_add_rtn_u32 v8, v61, v5 offset:{CNT + 4*b}\ns_mov_b32 exec_lo, -1")
        for w in range(4): a(f"ds_read_b128 v[{16+4*w}:{19+4*w}], v15 offset:{ORED + b * 2048 + w * 512}")
        a("s_waitcnt lgkmcnt(0)\nv_readfirstlane_b32 s96, v8")
        add4(16, 16, 20); add4(24, 24, 28)
        a(f"s_cmp_lg_u32 s96, 2\ns_cbranch_scc1 {Ls}\ns_cmp_lg_u32 s30, 0")
        add4(16, 16, 24); a("v_bfi_b32 v16, s97, v1, v16")
        a(f"s_cbranch_scc1 {Ls}_far\nbuffer_store_dwordx4 v[16:19], v63, {sWS}, s95 offen")
        cold.append(f"{Ls}_far:\nbuffer_store_dwordx4 v[16:19], v63, {sWS}, s95 offen sc0 sc1\ns_branch {Ls}")
        if b == 1: stamp(3)
        a(f"{Ls}:\ns_mov_b64 exec, -1")
    F = lambda fn, *x: (lambda: fn(*x))
    for b in range(2):
        add(30, None, F(it_qfrag, b))
        for n in range(PH):
            add(4, PH * b + n, F(it_k, PH * b + n))
            if n & 3 == 0 and n: add(12, None, F(it_kred, b, (n >> 2) - 1))
            if b == 1 and PH + n == ml0:
                add(40, ("ml", 0), F(it_mlget, 0))
                for u0 in range(0, NG, 4): add(24, None, F(it_p, 0, u0))
        add(16, None, F(it_kred, b, NG - 1)); add(20, None, F(it_max, b))
        for u0 in range(0, NG, 4): add(20, None, F(it_sum, b, u0))
        add(40, None, F(it_mlpub, b))
    for b in range(2):
        for n in range(PH):
            i = (2 + b) * PH + n
            add(4, None, F(it_vb, i)); add(4, i, F(it_v, i))
            if b == 0 and i == ml1:
                add(40, ("ml", 1), F(it_mlget, 1))
                for u0 in range(0, NG, 4): add(24, None, F(it_p, 1, u0))
        add(40, None, F(it_opub, b))
    consumed = [-1]
    def run_items(bud, force=False):
        while items:
            cost, needs, fn = items[0]
            if needs is not None:
                if needs not in ld_idx: return
                if ld_idx[needs] > landed[0]:
                    if not force: return
                    wait_vm(ld_idx[needs])
            if bud <= 0 and not force: return
            items.pop(0); fn(); bud -= cost
            if isinstance(needs, int): consumed[0] = needs
    def act(i, lastc):
        if bias: a(f"s_add_i32 s68, s68, {bias * nref}")
        if ffb and i >= ffb_from: a(f"s_and_b32 s69, s98, {ffb * nref}\ns_add_i32 s68, s68, s69")
        if fin and lastc:
            a(f"s_add_i32 s69, s68, {fin[2] * nref}\ns_max_i32 s69, s69, 0\ns_min_u32 s69, s69, 0x1000\ns_mul_i32 s69, s69, {int(fin[1]*655.36/nref)}\ns_lshr_b32 s69, s69, 16\ns_sub_u32 s62, {4*PH}, s69")
        else:
            a(f"s_max_i32 s69, s68, 0\ns_min_u32 s69, s69, 0x4000\ns_mul_i32 s69, s69, {int(gb*655.36/nref)}\ns_lshr_b32 s69, s69, 16\ns_add_u32 s62, s69, {i+1}")
        a(f"s_sub_i32 s69, 0, s68\ns_max_i32 s69, s69, 0\ns_min_u32 s69, s69, 0x4000\ns_mul_i32 s69, s69, {int(gs*655.36/nref)}\ns_lshr_b32 s69, s69, 16\ns_add_u32 s63, s69, {i+1}")
    k0 = 1 if ph0 <= setup_at else 0
    cpts = [c for c in range(ph0 + k0 * E + dl + dw, 4 * PH - 4, E)]
    for i in range(4 * PH):
        while consumed[0] < i - NB:
            n0 = len(items); run_items(1); assert len(items) < n0, "ring stall"
        so = address(i)
        if ctl and i > cpts[0]:
            last = fin and i > cpts[-1]
            wait_vm(ld_idx[i - (fin[0] if last else ctl[0])])
            n = [len(vm) - 1 - ld_idx[i - d] for d in ctl]
            go = a.lab("go")
            a(f"s_cmpk_{'le' if last else 'gt'}_u32 s62, {i}\ns_cbranch_scc1 {go}\ns_waitcnt vmcnt({n[1]})")
            a(f"s_cmpk_le_u32 s63, {i}\ns_cbranch_scc1 {go}\ns_waitcnt vmcnt({n[2]})\n{go}:")
        else:
            d = depth
            for (frm, dd) in (dsched or ()):
                if i >= frm: d = dd
            if i >= d: wait_vm(ld_idx[i - d])
        issue(i, so)
        if i == depth - 1:
            a("s_load_dwordx2 s[40:41], s[0:1], 88\ns_barrier\ns_branch L_stream"); aux_start(); a("L_stream:"); stamp(0); setup1()
        if i == 2 * depth - 1: setup2()
        if i == setup_at: setup3()
        if ctl:
            k, m = divmod(i - ph0, E)
            if ph0 + k * E + dl + dw in cpts:
                lastc = ph0 + k * E + dl + dw == cpts[-1]
                w = 0 if k == k0 else (fin[3] if fin and lastc else ex)
                if m == dl + dw - 1 and w: a("s_memrealtime s[74:75]")
                if m == 0: a("s_memrealtime s[60:61]")
                if m == 1:
                    sk = a.lab("ref")
                    a(f"s_cmp_lg_u32 s64, 0\ns_cbranch_scc1 {sk}_r\n{sk}:")
                    cold.append(f"{sk}_r:\ns_waitcnt lgkmcnt(0)\nv_mov_b32 v6, s60\nv_mov_b32 v7, s77\nv_mov_b32 v8, s60\nv_mov_b32 v9, s77\ns_mov_b64 exec, 0xff\n"
                                f"buffer_store_dwordx4 v[6:9], v15, {sWS}, s65 offen offset:{128*k} sc0 sc1\ns_mov_b64 exec, -1\ns_branch {sk}")
                if m == dl:
                    for q in range(nref): a(f"s_load_dwordx2 s[{44+2*q}:{45+2*q}], s[66:67], {q*RS + 128*k}")
                if m == dl + dw:
                    a("s_waitcnt lgkmcnt(0)\ns_mov_b32 s68, 0")
                    for q in range(nref):
                        a(f"s_sub_u32 s69, s60, s{44+2*q}\ns_cmp_eq_u32 s{45+2*q}, s77\ns_cselect_b32 s69, s69, {-14*dl}\ns_add_u32 s68, s68, s69")
                    if ex or fin:
                        a(f"s_mul_i32 s69, s60, {nref}\ns_sub_u32 s69, s69, s68\ns_sub_u32 s76, s69, s2\ns_mov_b32 s2, s69")
                    if w:
                        a(f"s_mul_i32 s96, s76, {round(256 * (dl + dw - 1) / E)}\ns_lshr_b32 s96, s96, 8\ns_sub_u32 s69, s74, s60\ns_mul_i32 s69, s69, {nref}")
                        a(f"s_sub_i32 s69, s69, s96\ns_mul_i32 s69, s69, {w}\ns_ashr_i32 s69, s69, 4\ns_add_i32 s68, s68, s69")
                    act(i, lastc)
            for c in cpts[1:]:
                for d in (fmids if c == cpts[-1] else mids):
                    if i == c + d - 1: a("s_memrealtime s[74:75]")
                    if i == c + d:
                        a(f"s_mul_i32 s96, s76, {round(256 * (dl + dw - 1 + d) / E)}\ns_lshr_b32 s96, s96, 8\ns_add_u32 s96, s96, s2")
                        a(f"s_waitcnt lgkmcnt(0)\ns_mul_i32 s68, s74, {nref}\ns_sub_u32 s68, s68, s96")
                        act(i, c == cpts[-1])
        for gi in [k for k, g in enumerate(gates) if g == i]:
            a(f"s_mov_b64 exec, 1\nds_write_b32 v61, v5 offset:{PRG + 4*gi}\ns_mov_b64 exec, -1")
        if early:
            el = list(early)
            if i in el: stamp(4 + el.index(i))
        elif i in (34, 68, 102, 136, 170, 204, 238): stamp(3 + i // 34)
        if i == ml0: ml_issue(0)
        if i == ml1: ml_issue(1)
        if i >= P - 1: run_items(budget)
    run_items(0, force=True)
    if bell:
        a(f"s_cmp_eq_u32 s71, 0\ns_cbranch_scc1 L_sdone\ns_cmp_ge_u32 s99, {8*nc}\ns_cbranch_scc1 L_sdone")
        a(f"s_lshr_b32 s96, s6, 5\ns_bfe_u32 s97, s6, 0x20003\ns_lshl_b32 s97, s97, 3\ns_add_u32 s97, s97, s96\ns_cmp_ge_u32 s97, 27\ns_cbranch_scc1 L_sdone")
        a(f"s_and_b32 s97, s96, 3\ns_lshl_b32 s97, s97, 10\ns_lshr_b32 s96, s96, 2\ns_mul_i32 s96, s96, {nc*cs}\ns_add_u32 s96, s96, s97")
        a(f"s_bfe_u32 s97, s99, {3 | ((nc.bit_length() - 1) << 16)}\ns_mul_i32 s97, s97, {cs}\ns_add_u32 s96, s96, s97\ns_add_u32 s96, s96, {BELL}")
        a("s_add_u32 s66, s40, s96\ns_addc_u32 s67, s41, 0")
        a("L_sb:")
        for q in range(8): a(f"s_load_dword s{44+2*q}, s[66:67], {128*q} glc")
        a("s_sub_u32 s79, s79, 1\ns_cbranch_scc1 L_sdone\ns_waitcnt lgkmcnt(0)")
        for q in range(8): a(f"s_cmp_lg_u32 s{44+2*q}, s77\ns_cbranch_scc1 L_sb")
        a(f"ds_write_b32 v61, v5 offset:{HEARD}\nL_sdone:")
    dump_stamps()
    a("s_endpgm")
    flush_cold()

    a("L_aux:")
    a("s_getreg_b32 s78, hwreg(HW_REG_XCC_ID, 0, 4)")
    srd_tail(52, 4096 * 640 * 2); srd_tail(56, 640 * 1728 * 2); srd_tail(60, 640 * 1728 * 2); srd_tail(64, 1728 * 640 * 2); srd_tail(68, 2560)
    a("v_and_b32 v68, 7, v1"); half_masks(64, 68, 69)
    mask64(88, 0xFF00FF00FF00FF00)
    a(f"s_mov_b32 s92, {hx(f2u(1/640))}\ns_mov_b32 s93, {hx(f2u(1e-5))}")
    a("s_lshl_b32 s7, s76, 8\nv_lshl_add_u32 v97, v6, 4, s7\nv_lshl_add_u32 v101, v7, 11, v97")
    a(f"s_lshl_b32 s84, s6, 10\ns_add_u32 s84, s84, {QP}\ns_lshl_b32 s85, s74, 13\ns_add_u32 s85, s85, {QP}\nv_add_u32 v102, {QPB - QP}, v101")
    a("v_bfe_u32 v103, v1, 3, 1\nv_lshlrev_b32 v103, 7, v103\nv_and_b32 v70, 22, v1\nv_or_b32 v103, v103, v70\nv_lshrrev_b32 v70, 5, v1\nv_lshl_or_b32 v103, v70, 3, v103")
    a("s_lshl_b32 s7, s76, 5\nv_add_lshl_u32 v103, v103, s7, 1\nv_and_b32 v98, 3, v1\nv_lshlrev_b32 v98, 3, v98")
    a("s_waitcnt lgkmcnt(0)")
    for n, p in ((52, 16), (56, 20), (60, 22), (64, 24), (68, 26), (40, 30)): a(f"s_mov_b64 s[{n}:{n+1}], s[{p}:{p+1}]")
    a("s_load_dword s77, s[40:41], 0")
    stamp(0)
    a("s_lshr_b32 s7, s73, 3\ns_and_b32 s39, s75, 3\ns_cbranch_scc0 L_role2")
    a("s_sub_u32 s39, s75, 1\ns_lshl_b32 s39, s39, 2\ns_add_u32 s39, s39, s7\ns_cmp_lt_u32 s39, 10\ns_cselect_b32 s38, 1, 0\ns_branch L_role")
    a("L_role2:\ns_lshl_b32 s39, s7, 3\ns_add_u32 s39, s39, s72\ns_cmp_lt_u32 s39, 27\ns_cselect_b32 s38, 2, 0\ns_lshl_b32 s39, s39, 1\ns_lshr_b32 s7, s75, 2\ns_add_u32 s39, s39, s7")
    a("L_role:")
    a(f"s_waitcnt vmcnt({5 if wqfirst == 1 else 10})")
    for i in range(10): unpack(44 + 2 * i, 45 + 2 * i, 8 + i)
    def red32(v):
        for k in (8, 4, 2, 1): a(f"v_add_f32_dpp v{v}, v{v}, v{v} row_ror:{k} {DPPM}")
        rows_allreduce("v_add_f32", v, 71, both=False)
    pk("add", 8, 44, 46)
    for i in range(2, 10): pk("add", 8, 8, 44 + 2 * i)
    a("v_add_f32 v8, v8, v9"); red32(8)
    a("v_mul_f32 v8, s92, v8")
    for i in range(10): a(f"v_pk_add_f32 v[{44+2*i}:{45+2*i}], v[{44+2*i}:{45+2*i}], v[8:9] op_sel_hi:[1,0] neg_lo:[0,1] neg_hi:[0,1]")
    pk("mul", 10, 44, 44)
    for i in range(1, 10): a(f"v_pk_fma_f32 v[10:11], v[{44+2*i}:{45+2*i}], v[{44+2*i}:{45+2*i}], v[10:11]")
    a("v_add_f32 v10, v10, v11"); red32(10)
    a("v_mul_f32 v10, s92, v10")
    bfr(10, 10); bfr(8, 8); a("v_add_f32 v10, s93, v10"); bfr(10, 10); a("v_sqrt_f32 v10, v10"); bfr(10, 10); a("v_rcp_f32 v10, v10")
    a("v_readlane_b32 s80, v8, 0\nv_readlane_b32 s81, v8, 32\nv_readlane_b32 s82, v10, 0\nv_readlane_b32 s83, v10, 32")
    a("v_mov_b32 v8, s80\nv_mov_b32 v9, s81\nv_mov_b32 v10, s82\nv_mov_b32 v11, s83")
    a("v_cndmask_b32 v8, v8, v9, s[88:89]\nv_cndmask_b32 v10, v10, v11, s[88:89]")
    a(f"s_waitcnt vmcnt({0 if wqfirst else 5})")
    for i in range(5): a(f"v_lshlrev_b32 v{18+i}, 16, v{18+i}\nv_sub_f32 v{18+i}, v{18+i}, v8")
    for i in range(5): bfr(18 + i, 18 + i)
    for i in range(5): a(f"v_mul_f32 v{18+i}, v{18+i}, v10\nv_cvt_pk_bf16_f32 v{18+i}, v{18+i}, v{18+i}")
    for i in range(6):
        if i < 5:
            for r in range(4): a(f"v_and_b32 v{44+4*i+r}, v{18+i}, v{64+r}")
        if i: a(f"s_waitcnt vmcnt({5-i})"); mfma(72, 20 + 4 * i, 40 + 4 * i, i == 1)
    a("v_mov_b32 v61, 0\ns_waitcnt lgkmcnt(0)"); next_tag()
    a("s_add_u32 s83, s77, s78\ns_add_u32 s83, s83, 1")
    a(f"ds_write_b128 v96, v[72:75] offset:{QRED}")
    def qfields(t): return f"v_lshrrev_b32 v99, v98, {t}\n" + "\n".join(f"v_bfe_u32 v{104+k}, v99, {2*k}, 2" for k in range(4))
    qtag = "\n".join(f"v_bfi_b32 v{76+k}, 3, v{104+k}, v{76+k}" for k in range(4))
    a(qfields("s83"))
    L = loop("qred")
    for w in range(4): a(f"ds_read_b128 v[{76+4*w}:{79+4*w}], v97 offset:{QRED + 1024*w}")
    a("s_waitcnt lgkmcnt(0)"); add4(76, 76, 80); add4(84, 84, 88); add4(76, 76, 84); nan4(76, 80); retry(L)
    a(qtag)
    a(f"s_mov_b64 exec, 0xffff\nbuffer_store_dwordx4 v[76:79], v97, {sWS}, s84 offen\ns_mov_b64 exec, -1\ns_add_u32 s84, s84, {QPB - QP}\ns_mov_b32 s87, 0")
    stamp(1)
    if qpre: a(f"s_sleep {qpre}")
    a("v_mov_b32 v15, v101\ns_mov_b32 s7, s83")
    L = loop("qg")
    for k in range(2): a(f"buffer_load_dwordx4 v[{80+4*k}:{83+4*k}], v15, {sWS}, s85 offen offset:{1024*k} sc1")
    a("s_waitcnt vmcnt(0)")
    for k in range(8): untag(80 + k, 104 + (k & 3))
    a("v_or3_b32 v88, v80, v81, v82\nv_or3_b32 v88, v88, v83, v84\nv_or3_b32 v88, v88, v85, v86\nv_or_b32 v88, v88, v87\nv_and_b32 v88, 3, v88\nv_cmp_ne_u32 vcc, 0, v88")
    a(f"s_cbranch_vccnz {L}_r\n{L}_d:")
    cold.append(f"{L}_r:\ns_sleep {qsleep}\ns_add_u32 s87, s87, 1\ns_cmp_lg_u32 s87, {qB}\ns_cbranch_scc1 {L}_s\n{qfields('s77')}\n{qtag}\n"
                f"s_mov_b64 exec, 0xffff\nbuffer_store_dwordx4 v[76:79], v97, {sWS}, s84 offen sc0 sc1\ns_mov_b64 exec, -1\n"
                f"{L}_s:\ns_cmp_gt_u32 s87, {qB}\ns_cselect_b32 s7, s87, 0\ns_bitcmp1_b32 s7, 0\ns_cselect_b64 vcc, -1, 0\ns_cselect_b32 s7, s77, s83\n"
                f"v_cndmask_b32 v15, v101, v102, vcc\n{qfields('s7')}\ns_sub_u32 s79, s79, 1\ns_cbranch_scc0 {L}\ns_mov_b32 s79, 0\ns_branch {L}_d")
    a(f"s_cmp_lg_u32 s7, s83\ns_cselect_b32 s7, 1, 0\nv_mov_b32 v8, s7\nds_write_b32 v61, v8 offset:{NEAR}")
    add4(80, 80, 84)
    a("v_permlane32_swap_b32 v80, v81\nv_permlane32_swap_b32 v82, v83\nv_add_f32 v80, v80, v81\nv_add_f32 v82, v82, v83\nv_permlane16_swap_b32 v80, v82\nv_add_f32 v80, v80, v82")
    a(f"v_mov_b32_dpp v81, v80 quad_perm:[1,1,3,3] {DPPM}\nv_mov_b32_dpp v82, v80 quad_perm:[0,0,2,2] {DPPM}")
    a(f"v_cvt_pk_bf16_f32 v80, v82, v81\nv_min_u32 v80, -2, v80\nds_write_b32 v103, v80 offset:{QF}")
    stamp(2)
    a("s_mov_b32 s84, s38\ns_mov_b32 s85, s39")
    a("s_cmp_lg_u32 s76, 0\ns_cbranch_scc1 L_noclr\nv_lshlrev_b32 v8, 4, v1")
    if warm: a(f"s_lshl_b32 s7, s6, 9\ns_add_u32 s7, s7, {OP + 0x20000}\ns_mov_b32 exec_hi, 0\nbuffer_load_dwordx4 v[116:119], v8, {sWS}, s7 offen\ns_mov_b64 exec, -1")
    a(f"s_cmp_lg_u32 s84, 2\ns_cbranch_scc1 L_clr3\ns_mul_i32 s7, s85, 2560\ns_add_u32 s7, s7, {DP}")
    for k in range(3): a(("s_mov_b32 exec_hi, 0\n" if k == 2 else "") + f"buffer_store_dwordx4 v[112:115], v8, {sWS}, s7 offen offset:{1024*k} sc0 sc1")
    for r in range(4): a(f"v_mov_b32 v{120+r}, s77")
    a(f"s_lshl_b32 s7, s85, 7\ns_add_u32 s7, s7, {PF}\ns_mov_b64 exec, 0xff\ns_waitcnt vmcnt(0)\nbuffer_store_dwordx4 v[120:123], v8, {sWS}, s7 offen sc0 sc1\ns_mov_b64 exec, -1")
    a("L_clr3:\ns_waitcnt vmcnt(0)")
    a("L_noclr:")
    a("s_mov_b32 s90, 0x05040100\ns_mov_b32 s91, 0x07060302\ns_mov_b32 s98, 0")
    a("v_and_b32 v8, 1, v1\nv_mul_u32_u24 v8, 0xaaaa, v8\nv_or_b32 v60, 0x4444, v8")
    a("s_cmp_eq_u32 s84, 2\ns_cbranch_scc1 L_ffn\ns_cmp_eq_u32 s84, 1\ns_cbranch_scc1 L_wo")
    if bell:
        a("s_cmp_lg_u32 s73, 27\ns_cbranch_scc1 L_done\ns_cmp_lg_u32 s76, 1\ns_cbranch_scc1 L_done")
        a(f"v_and_b32 v2, 31, v1\nv_lshlrev_b32 v2, 9, v2\ns_lshl_b32 s94, s72, 14\ns_add_u32 s94, s94, {OP + 0x20000}")
        a(f"v_bfe_u32 v3, v1, 3, 2\nv_lshlrev_b32 v3, 10, v3\nv_lshrrev_b32 v9, 5, v1\nv_mul_u32_u24 v9, {nc*cs}, v9\nv_add_u32 v3, v3, v9\nv_and_b32 v9, 7, v1\nv_lshl_add_u32 v3, v9, 4, v3")
        for m in range(nc): a(f"s_lshl_b32 s{80+m}, s72, 7\ns_add_u32 s{80+m}, s{80+m}, {BELL + m*cs}")
        for r in range(4): a(f"v_mov_b32 v{12+r}, s77")
        wait_lds(CNT + 4, 3, 4)
        a("s_mov_b32 exec_hi, 0")
        L = loop("bw")
        a(f"buffer_load_dword v9, v2, {sWS}, s94 offen sc1\ns_waitcnt vmcnt(0)\nv_xor_b32 v9, s77, v9"); tag_test(9); retry(L)
        if ring: a(f"s_sleep {ring}")
        a("s_mov_b64 exec, -1")
        for m in range(nc): a(f"buffer_store_dwordx4 v[12:15], v3, {sWS}, s{80+m} offen sc0 sc1")
        stamp(3)
        a("L_done:")
    dump_stamps()
    a("s_endpgm")
    flush_cold()

    def staged(nbatch, nld, win, load_fn, finish_fn):
        n = nbatch * nld
        for i in range(n + win):
            if i >= win:
                a(f"s_waitcnt vmcnt({min(n, i) - (i - win) - 1})")
                if (i - win + 1) % nld == 0: finish_fn((i - win) // nld, ((i - win) // nld) & 1)
            if i < n: load_fn(i // nld, i % nld, (i // nld) & 1)

    a("L_wo:")
    a("s_lshl_b32 s80, s72, 2\ns_add_u32 s80, s80, s76\ns_lshl_b32 s7, s80, 7\nv_lshrrev_b32 v8, 5, v1\nv_lshl_add_u32 v8, v8, 4, s7")
    a("v_bfe_u32 v9, v1, 4, 1\nv_lshl_add_u32 v8, v9, 1, v8\nv_mul_u32_u24 v8, 1280, v8\ns_lshl_b32 s7, s85, 7\nv_lshl_add_u32 v9, v6, 3, s7\nv_add_u32 v2, v8, v9")
    def wo_load(k, n, slot):
        i, u, e = k >> 1, 2 * (k & 1) + (n >> 1), n & 1
        reg = 64 + slot * 8 + n * 2
        a(f"s_mov_b32 s7, {(64*(u >> 1) + (u & 1) + 32*(i >> 1) + 4*(i & 1) + 8*e) * 1280}\nbuffer_load_dwordx2 v[{reg}:{reg+1}], v2, {sWO}, s7 offen nt")
    def wo_finish(k, slot):
        for p in range(2):
            i, u, t = k >> 1, 2 * (k & 1) + p, 64 + slot * 8 + p * 4
            for q in range(4): a(f"v_perm_b32 v{128 + (i*2 + (q >> 1))*8 + 2*u + (q & 1)}, v{t + 2 + (q>>1)}, v{t + (q>>1)}, s{90 + (q&1)}")
    staged(8, 4, wo_w, wo_load, wo_finish)
    stamp(3)
    tag_field(58, 1); a("s_movk_i32 s97, 0xfff")
    a(f"s_lshl_b32 s94, s80, 12\ns_add_u32 s94, s94, {OP}\nv_lshlrev_b32 v59, 4, v6\nv_lshl_or_b32 v2, v7, 10, v59")
    a(f"v_add_u32 v5, {RED}, v59\ns_lshl_b32 s7, s76, 8\nv_add_u32 v3, s7, v5")
    a(f"s_mul_i32 s95, s72, 2560\ns_lshl_b32 s7, s85, 8\ns_add_u32 s95, s95, s7\ns_add_u32 s95, s95, {YP}")
    wait_lds(PRG, 1, 8)
    a("L_wo_b:")
    stamp(4)
    for r in (96, 98, 100, 102): zero2(r)
    L = loop("h1")
    for k, off in enumerate((0, 512, 256, 768)): a(f"buffer_load_dwordx4 v[{64+4*k}:{67+4*k}], v2, {sWS}, s94 offen offset:{off} sc1")
    a("s_waitcnt vmcnt(2)"); untag(64, 58); untag(68, 58); tag_acc(80, 64, 68, True); add4(64, 64, 68)
    a("s_waitcnt vmcnt(1)"); untag(72, 58)
    a("s_waitcnt vmcnt(0)"); untag(76, 58); tag_acc(80, 72, 76, False); tag_test(80); add4(68, 72, 76)
    a("s_mov_b64 exec, -1")
    retry(L, gentle=16, pre="s_wqm_b64 exec, vcc\n", post="s_mov_b64 exec, -1\n")
    stamp(5)
    for r in range(4): a(f"v_permlane32_swap_b32 v{64+r}, v{68+r}")
    add4(64, 64, 68)
    a("v_permlane16_swap_b32 v64, v66\nv_permlane16_swap_b32 v65, v67"); pk("add", 64, 64, 66)
    a("v_cvt_pk_bf16_f32 v72, v64, v65")
    def wo_b(i, rs=range(4)):
        for r in rs: a(f"v_mov_b32_dpp v{80+4*i+r}, v72 row_newbcast:{4*i+r} {DPPM}")
    wo_b(0); wo_b(1, (0, 1))
    fill = [(1, (2, 3)), (2, (0, 1)), (2, (2, 3)), (3, (0, 1)), (3, (2, 3))]
    for i in range(4):
        for qq in range(2):
            smf(96 + 4 * qq, 80 + 4 * i, 128 + (i * 2 + qq) * 8)
            if fill: wo_b(*fill.pop(0))
    a("s_cmp_lg_u32 s76, 0\ns_mov_b64 exec, 0xffff\nds_write_b64 v3, v[96:97]\nds_write_b64 v3, v[100:101] offset:8\ns_cbranch_scc1 L_wo_next")
    L = loop("yr")
    for w in range(4): a(f"ds_read_b128 v[{64+4*w}:{67+4*w}], v5 offset:{256*w}")
    for w in range(1, 4):
        a(f"s_waitcnt lgkmcnt({0 if diag else 3-w})"); add4(64, 64, 64 + 4 * w)
    nan4(64, 68); a("v_bfi_b32 v64, s97, v58, v64"); retry(L)
    a(f"buffer_store_dwordx4 v[64:67], v59, {sWS}, s95 offen sc0 sc1")
    stamp(6)
    a("L_wo_next:\ns_mov_b64 exec, -1\ns_cmp_lg_u32 s98, 0\ns_cbranch_scc1 L_wo_end")
    a("s_add_u32 s94, s94, 0x20000\ns_add_u32 s95, s95, 20480\nv_add_u32 v3, 1024, v3\nv_add_u32 v5, 1024, v5\ns_mov_b32 s98, 1\ns_waitcnt vmcnt(0)")
    wait_lds(CNT + 4, 3, 2)
    a("s_branch L_wo_b\nL_wo_end:")
    dump_stamps()
    a("s_endpgm")
    flush_cold()

    GU, DN, HF, AF = 112, 192, 16, 36
    a("L_ffn:")
    a("s_lshl_b32 s7, s85, 5\nv_lshl_add_u32 v8, v7, 2, s7\nv_mul_u32_u24 v8, 1280, v8\ns_lshl_b32 s7, s76, 8\nv_lshl_add_u32 v9, v6, 4, s7\nv_add_u32 v49, v8, v9")
    def dn_block(blk, us=range(4), burst=False):
        def ld(u, e, slot):
            r = 64 + slot * 8 + 4 * e
            a(f"s_mov_b32 s7, {(16*(u >> 1) + 2*(u & 1) + e) * 1280 + 1024*blk}\nbuffer_load_dwordx4 v[{r}:{r+3}], v49, {sWD}, s7 offen nt")
        def fin(u, slot):
            for t in range(4):
                for par in range(2): a(f"v_perm_b32 v{DN + 32*blk + 8*t + 2*u + par}, v{68 + slot*8 + t}, v{64 + slot*8 + t}, s{90+par}")
        if burst:
            for u in us: ld(u, 0, u); ld(u, 1, u)
            for u in us: a(f"s_waitcnt vmcnt({2*(us[-1] - u)})"); fin(u, u)
        elif us: staged(len(us), 2, dn_w, ld, fin)
    dn_block(0, range(4 - late))
    a("s_cmp_lg_u32 s76, 0\ns_cbranch_scc1 L_dn2")
    dn_block(1)
    a(f"L_dn2:\ns_mul_i32 s7, s76, 160\nv_lshrrev_b32 v10, 5, v1\nv_mul_u32_u24 v8, 40, v10\nv_bfe_u32 v9, v1, 4, 1\nv_lshl_add_u32 v8, v9, 2, v8\nv_add_u32 v8, s7, v8")
    a("v_mul_u32_u24 v8, 3456, v8\ns_lshl_b32 s7, s85, 6\nv_lshl_add_u32 v9, v6, 2, s7\nv_add_u32 v2, v8, v9")
    def gu_load(k, n, slot):
        (m, i), u, e = divmod(k, 5), n >> 1, n & 1
        row = 80*(u >> 1) + 8*i
        if e == 0: a(f"s_mov_b32 s7, {(row + 2*(u & 1)) * 3456}")
        a(f"buffer_load_dword v{64 + slot*8 + n}, v2, {sWU if m else sWG}, s7 offen offset:{3456*e} nt")
    def gu_finish(k, slot):
        m, i = divmod(k, 5)
        for u in range(4):
            for par in range(2): a(f"v_perm_b32 v{GU + (i*2 + par)*8 + 2*u + m}, v{65 + slot*8 + 2*u}, v{64 + slot*8 + 2*u}, s{90+par}")
    staged(10, 8, gu_w, gu_load, gu_finish)
    stamp(3)
    a("s_cmp_lt_u32 s85, 40\ns_cselect_b32 s87, s76, 0\ns_cmp_lg_u32 s87, 3\ns_cbranch_scc1 L_pf2")
    a(f"v_min_u32 v9, 53, v1\nv_lshlrev_b32 v9, 7, v9\ns_mov_b32 s7, {PF}")
    L = loop("pf")
    a(f"buffer_load_dword v8, v9, {sWS}, s7 offen sc1\ns_waitcnt vmcnt(0)\nv_cmp_ne_u32 vcc, s77, v8"); retry(L, 16)
    a("L_pf2:\ns_mul_i32 s7, s76, 40\nv_mul_u32_u24 v8, 10, v7\nv_add3_u32 v8, v8, v6, s7")
    tag_field(4, 8)
    a(f"v_lshlrev_b32 v2, 4, v8\nv_lshlrev_b32 v3, 3, v8\nv_cmp_gt_u32 vcc, 10, v6\nv_add_u32 v5, {HTAB}, v2\nv_mov_b32 v11, {DUMP - 2560}\nv_cndmask_b32 v5, v11, v5, vcc")
    a(f"buffer_load_dwordx2 v[46:47], v3, {sX}, 0 offen\nbuffer_load_dwordx2 v[44:45], v3, {sX}, 0 offen offset:1280")
    a(f"s_lshl_b32 s7, s76, 3\ns_add_u32 s7, s7, {STAT + 4}\nv_and_b32 v8, 4, v1\nv_sub_u32 v50, s7, v8\nv_cmp_gt_u32 vcc, 16, v1\nv_cndmask_b32 v50, v11, v50, vcc\nv_mov_b32 v51, {STAT}")
    a(f"s_lshl_b32 s7, s76, 8\ns_add_u32 s7, s7, {RED}\nv_lshl_add_u32 v52, v6, 4, s7\nv_lshl_add_u32 v52, v7, 11, v52")
    a(f"v_and_b32 v11, 7, v1\nv_lshl_add_u32 v8, v7, 3, v11\nv_lshlrev_b32 v8, 3, v8\nv_add_u32 v53, {RED}, v8")
    a("s_lshl_b32 s7, s76, 8\ns_add_u32 s7, s7, 1280\nv_lshl_add_u32 v54, v6, 4, s7\nv_mul_u32_u24 v8, 1280, v7\nv_sub_u32 v54, v54, v8")
    half_masks(12, 11, 8)
    for r in range(4): a(f"v_and_b32 v{12+r}, 0x3f803f80, v{12+r}")
    for r in range(20): a(f"v_mov_b32 v{HF+r}, 0x3f803f80")
    a(f"v_lshrrev_b32 v8, 2, v1\nv_mul_u32_u24 v9, 2560, v8\nv_and_b32 v10, 3, v1\nv_lshl_add_u32 v55, v10, 4, v9\ns_lshl_b32 s7, s85, 6\nv_add_u32 v55, s7, v55")
    a(f"v_cmp_gt_u32 vcc, 6, v8\nv_mov_b32 v10, {hx(OOB)}\nv_cndmask_b32 v56, v10, v55, vcc")
    a("v_and_b32 v8, 16, v1\nv_or_b32 v8, v8, v11\nv_lshrrev_b32 v9, 5, v1\nv_lshl_or_b32 v8, v9, 3, v8")
    a(f"s_lshl_b32 s7, s85, 5\nv_add_u32 v8, s7, v8\nv_lshlrev_b32 v57, 1, v8\nv_lshlrev_b32 v58, 2, v8\nv_add_u32 v58, {HTAB}, v58")
    for k in range(4): a(f"s_mov_b32 s{80+k}, {YP + 5120*k}")
    mask64(50, 0x03FF03FF03FF03FF); mask64(4, 0x00FF00FF00FF00FF); mask64(88, 0xFFFFFFFF)
    for k in (32, 33, 34, 35, 95, 97): a(f"s_mov_b32 s{k}, {hx(OOB)}")
    c1 = -2.0 * 0.7978845608028654 * 1.4426950408889634
    a(f"s_mov_b32 s96, {hx(f2u(c1 * 0.044715))}\nv_mov_b32 v59, {hx(f2u(c1))}")
    a("s_waitcnt vmcnt(0)"); unpack(40, 41, 46); unpack(42, 43, 47)
    for r in (96, 98, 100, 102): zero2(r)
    wait_lds(PRG + 4, 1, 8)
    a("L_ffn_b:")
    stamp(4)
    a("s_mov_b64 exec, s[50:51]")
    L = loop("h2")
    for k in range(8): a(f"buffer_load_dwordx4 v[{64+4*k}:{67+4*k}], v2, {sWS}, s{80+(k>>1)} offen offset:{2560*(k&1)} sc1")
    for k in range(8):
        a(f"s_waitcnt vmcnt({7-k})"); untag(64 + 4 * k, 4); add4(108, 108 if k else 40, 64 + 4 * k)
        if k & 1: tag_acc(8, 60 + 4 * k, 64 + 4 * k, k == 1)
    tag_test(8)
    a("v_cvt_pk_bf16_f32 v10, v108, v109\nv_cvt_pk_bf16_f32 v11, v110, v111")
    retry(L, gentle=16)
    a("s_mov_b64 exec, -1")
    stamp(5)
    def gu_b(i, rs=range(4)):
        for r in rs: a(f"v_mov_b32_dpp v{HF+4*i+r}, v{10+(r&1)} row_newbcast:{2*i+(r>>1)} row_mask:0xf bank_mask:0x5")
    gu_b(0); gu_b(1, (0, 1))
    fill = [F(gu_b, 1, (2, 3))] + [F(gu_b, i, rs) for i in (2, 3, 4) for rs in ((0, 1), (2, 3))]
    fill += [F(a, "ds_write_b128 v5, v[108:111]")] + [F(a, f"v_mov_b64 v[{64+8*k}:{65+8*k}], 0\nv_mov_b64 v[{68+8*k}:{69+8*k}], 0") for k in range(4)]
    for i in range(5):
        for q in range(3):
            if q == 0: mfma(104, HF + 4 * i, HF + 4 * i, i == 0)
            else: smf(92 + 4 * q, HF + 4 * i, GU + (i * 2 + q - 1) * 8)
            if fill: fill.pop(0)()
    a("s_mov_b64 exec, s[88:89]\nds_write_b32 v50, v104\nds_write_b64 v52, v[96:97]\nds_write_b64 v52, v[100:101] offset:8\ns_mov_b64 exec, -1")
    stamp(6)
    L = loop("gr")
    a("ds_read_b128 v[104:107], v51\nds_read_b128 v[108:111], v51 offset:16")
    a("ds_read2_b64 v[96:99], v53 offset0:0 offset1:32\nds_read2_b64 v[100:103], v53 offset0:64 offset1:96")
    a(f"s_waitcnt lgkmcnt({0 if diag else 2})"); add4(104, 104, 108); pk("add", 104, 104, 106)
    a("v_mul_f32 v104, s92, v104\nv_mul_f32 v105, s92, v105\nv_fma_f32 v105, -v104, v104, v105\nv_max_f32 v106, 0, v105\nv_add_f32 v106, s93, v106\nv_rsq_f32 v106, v106")
    a("s_waitcnt lgkmcnt(0)"); add4(96, 96, 100); pk("add", 96, 96, 98)
    a("v_add_f32 v105, v105, v96\nv_cmp_u_f32 vcc, v105, v97\ns_cmp_eq_u32 s98, 0")
    retry(L, post="s_cmp_eq_u32 s98, 0\n")
    a("s_cbranch_scc1 L_cs\nL_csd:")
    cold.append("L_cs:\nv_add_u32 v8, 2048, v53\nds_read2_b64 v[100:103], v8 offset0:0 offset1:32\nds_read2_b64 v[108:111], v8 offset0:64 offset1:96\ns_waitcnt lgkmcnt(0)\n"
                "v_pk_add_f32 v[100:101], v[100:101], v[102:103]\nv_pk_add_f32 v[108:109], v[108:109], v[110:111]\nv_pk_add_f32 v[62:63], v[100:101], v[108:109]\ns_branch L_csd")
    a("v_pk_fma_f32 v[96:97], v[62:63], v[104:105], v[96:97] op_sel_hi:[1,0,1] neg_lo:[0,1,0] neg_hi:[0,1,0]")
    a("v_pk_mul_f32 v[96:97], v[96:97], v[106:107] op_sel_hi:[1,0]")
    a("v_mul_f32 v98, v96, v96\nv_fma_f32 v98, v98, s96, v59\nv_mul_f32 v98, v98, v96\nv_exp_f32 v98, v98\nv_mul_f32 v96, v96, v97")
    a("v_add_f32 v98, 1.0, v98\nv_rcp_f32 v98, v98\nds_read_b32 v48, v58\nv_mul_f32 v96, v96, v98\ns_cmp_eq_u32 s98, 0")
    a(f"v_mov_b32_dpp v97, v96 quad_perm:[1,1,3,3] {DPPM}\nv_cvt_pk_bf16_f32 v96, v96, v97")
    def dn_a(bank): return "\n".join(f"v_mov_b32_dpp v{AF+r}, v96 row_newbcast:{2*r} row_mask:0xf bank_mask:{bank}" for r in range(4))
    a("s_cbranch_scc1 L_keep\nL_kept:\ns_cmp_lg_u32 s76, 0")
    cold.append("L_keep:\n" + dn_a("0xa") + "\ns_branch L_kept")
    a(dn_a("0x5"))
    for t in range(4): smf(64 + 4 * t, AF, DN + 8 * t)
    a("s_cbranch_scc1 L_dn3")
    for t in range(4, 8): smf(64 + 4 * t, AF, DN + 8 * t)
    a("L_dn3:\ns_mov_b32 exec_hi, 0")
    for blk in range(2):
        if blk: a("s_cbranch_scc1 L_dn4")
        for t in range(4): a(f"v_cvt_pk_bf16_f32 v{96+4*blk+t}, v{64+16*blk+4*t}, v{65+16*blk+4*t}")
        a(f"buffer_store_dwordx4 v[{96+4*blk}:{99+4*blk}], v54, {sWS}, s95 offen offset:{1024*blk} sc0 sc1")
    a("L_dn4:\ns_mov_b64 exec, -1")
    stamp(7)
    a("s_cmp_lg_u32 s87, 3\ns_cbranch_scc1 L_ffn_next")
    if pre3: a(f"s_sleep {pre3}")
    L = loop("h3")
    for k in range(4): a(f"buffer_load_dwordx4 v[{64+4*k}:{67+4*k}], {'v56' if k == 3 else 'v55'}, {sWS}, s{32+k} offen sc1")
    for k in range(4):
        a(f"s_waitcnt vmcnt({3-k})" + (" lgkmcnt(0)" if k == 0 else "")); mfma(80, 64 + 4 * k, 12, k == 0)
    a("v_permlane32_swap_b32 v80, v81\nv_permlane32_swap_b32 v82, v83\nv_add_f32 v80, v80, v81\nv_add_f32 v82, v82, v83\nv_cmp_u_f32 vcc, v80, v82")
    a("v_permlane16_swap_b32 v80, v82\nv_add_f32 v80, v80, v48\nv_add_f32 v80, v80, v82")
    retry(L)
    stamp(8)
    a(f"v_cvt_pk_bf16_f32 v80, v80, v80\ns_mov_b64 exec, s[4:5]\nbuffer_store_short v80, v57, {sOUT}, s97 offen\ns_mov_b64 exec, -1")
    stamp(9)
    a("s_cmp_lg_u32 s85, 0\ns_cbranch_scc1 L_ffn_next")
    a(f"v_mov_b32 v8, s77\ns_mov_b64 exec, 1\nbuffer_store_dword v8, v61, {sWS}, s97 offen\ns_mov_b64 exec, -1")
    a("L_ffn_next:\ns_cmp_lg_u32 s98, 0\ns_cbranch_scc1 L_ffn_end")
    for k in range(4): a(f"s_add_u32 s{80+k}, s{80+k}, 20480\ns_mov_b32 s{32+k}, {DP + 40960*k}")
    a(f"s_mul_i32 s95, s85, 2560\ns_add_u32 s95, s95, {DP}\ns_mov_b32 s97, 0\ns_mov_b32 s98, 1\ns_mov_b32 s88, 0xffff")
    a("v_add_u32 v5, 2560, v5\nv_add_u32 v50, 128, v50\nv_add_u32 v51, 128, v51\nv_add_u32 v52, 1024, v52\nv_add_u32 v53, 1024, v53")
    unpack(40, 41, 44); unpack(42, 43, 45)
    for r in (96, 98, 100, 102): zero2(r)
    wait_lds(CNT + 4, 3, 2)
    if late:
        a("s_waitcnt vmcnt(0)\ns_sleep 2"); dn_block(0, range(4 - late, 4), True); stamp(3)
    if bell:
        wait_lds(HEARD, 1, 0)
        if pre2: a(f"s_sleep {pre2}")
    a("s_branch L_ffn_b\nL_ffn_end:")
    dump_stamps()
    a("L_exit:\ns_endpgm")
    flush_cold()
    a("L_code_end:")

    hdr = open("cdna_kernels/" + NAME + ".s.ref").read().split("; Override launch")[0]
    out = [hdr.rstrip(), f"; @launch grid=(256,1,1) block=(512,1,1) lds={LDSZ}", '.amdgcn_target "amdgcn-amd-amdhsa--gfx950"']
    out += a.finish()
    out.append(f""".section .rodata,"a"
.p2align 6
.amdhsa_kernel {kname}
  .amdhsa_next_free_vgpr 256
  .amdhsa_next_free_sgpr 102
  .amdhsa_accum_offset 256
  .amdhsa_group_segment_fixed_size 0
  .amdhsa_kernarg_size 96
  .amdhsa_user_sgpr_count 2
  .amdhsa_user_sgpr_kernarg_segment_ptr 1
  .amdhsa_system_sgpr_workgroup_id_x 1
  .amdhsa_float_denorm_mode_32 3
.end_amdhsa_kernel""")
    return "\n".join(out) + "\n"

if __name__ == "__main__":
    kw = eval("dict(" + (sys.argv[2] if len(sys.argv) > 2 else "") + ")")
    open(sys.argv[1], "w").write(gen(**kw))
```

```python
import sys, struct
from asmlib import Asm

NAME = "sequential_preLN__mha_block_cached__geglu_ffn__decode"
def f2u(x): return struct.unpack("<I", struct.pack("<f", x))[0]
def hx(x): return "0x%08x" % (x & 0xffffffff)

REF, BELL, QP, OP, YP, DP, ML, DIAG, QPB, WSZ = 0x1000, 0x170000, 0x10000, 0x90000, 0x140000, 0xE0000, 0x130000, 0x1a0000, 0x200000, 0x280000
RS = 4352
OOB = 0x7ff00000
HEARD, PF = 4632, 0x180000
QRED, QF, CNT, MCNT, NEAR, PRG, MRED, STAT, RED, ORED, HTAB, DUMP, LDSZ = 0, 4096, 4608, 4616, 4624, 4640, 4672, 4864, 5120, 8192, 12288, 22016, 24576
sK, sV, sWS, sX, sWQ, sWO, sWG, sWU, sWD, sOUT = [f"s[{n}:{n+3}]" for n in range(32, 72, 4)]
DPPM = "row_mask:0xf bank_mask:0xf"
LOG2E = f2u(1.4426950408889634)
MFMA = "v_mfma_f32_16x16x32_bf16"

def gen(depth=5, ctl=(8, 6, 5), E=24, dl=11, dw=12, nref=8, gb=20, gs=24, bias=0, ph0=17, ex=16, fin=(14, 16, 10, 16), mids=(11,), fmids=(6,),
        P=39, budget=56, ml0=124, ml1=194, gates=(222, 250), qpre=24, qsleep=2, qB=6, wo_w=2, gu_w=4, dn_w=2,
        pre2=0, pre3=12, ring=0, nc=2, cs=12288, late=4, ffb=35, ffb_from=230, bell=True, fast=True, setup_at=20, SPIN=0x100000, diag=False, early=False, few=False, oflag=True, probe=None, noclr=False, skip='', warm=1, dsched=None, cpf=2, wqfirst=False, bar=3, mlnear=True):
    a = Asm()
    cold = []
    kname = NAME + "_kernel"
    if probe: diag = few = True
    def stamp(k):
        if few and k not in (0, 2, 9): return
        if diag and k == 0: a("s_mov_b32 s8, s100\ns_mov_b32 s26, s100")
        elif diag: a(f"s_memrealtime s[{8+2*k}:{9+2*k}]")
    def dump_stamps():
        if not diag: return
        if probe: a("s_sleep 127\ns_sleep 127")
        a("s_waitcnt lgkmcnt(0)\ns_mov_b64 exec, 1\ns_lshl_b32 s90, s6, 3\ns_add_u32 s90, s90, s3\ns_lshl_b32 s90, s90, 6")
        a(f"s_add_u32 s90, s90, {DIAG}\nv_mov_b32 v5, 0")
        for k in range(11): a(f"v_mov_b32 v{112+k}, s{8+2*k}")
        a("v_mov_b32 v123, s78")
        for q in range(3): a(f"buffer_store_dwordx4 v[{112+4*q}:{115+4*q}], v5, {sWS}, s90 offen offset:{16*q} {'sc0 sc1' if probe else ''}")
    def srd_tail(n, size): a(f"s_mov_b32 s{n+2}, {hx(size)}\ns_mov_b32 s{n+3}, 0x20000")
    def bfr(d, s): a(f"v_cvt_pk_bf16_f32 v{d}, v{s}, v{s}\nv_and_b32 v{d}, 0xffff0000, v{d}")
    def unpack(d0, d1, s): a(f"v_lshlrev_b32 v{d0}, 16, v{s}\nv_and_b32 v{d1}, 0xffff0000, v{s}")
    def pk(op, d, x, y): a(f"v_pk_{op}_f32 v[{d}:{d+1}], v[{x}:{x+1}], v[{y}:{y+1}]")
    def add4(d, x, y): pk("add", d, x, y); pk("add", d + 2, x + 2, y + 2)
    def mask64(n, v): a(f"s_mov_b32 s{n}, {hx(v)}\ns_mov_b32 s{n+1}, {hx(v >> 32)}")
    def mfma(d, A, B, first): a(f"{MFMA} v[{d}:{d+3}], v[{A}:{A+3}], v[{B}:{B+3}], {'0' if first else f'v[{d}:{d+3}]'}")
    def smf(d, A, B): a(f"v_smfmac_f32_16x16x64_bf16 v[{d}:{d+3}], v[{A}:{A+3}], v[{B}:{B+7}], v60")
    def zero2(r): a(f"v_mov_b64 v[{r}:{r+1}], 0")
    def loop(base):
        L = a.lab(base); a(L + ":"); return L
    def retry(L, sleep=0, gentle=0, pre='', post=''):
        a(f"s_cbranch_vccnz {L}_r\n{L}_d:")
        t = f"{L}_r:\n" + pre
        if sleep: t += f"s_sleep {sleep}\n"
        if gentle: t += f"s_cmp_lg_u32 s98, 0\ns_cbranch_scc1 {L}_n\ns_sleep {gentle}\n{L}_n:\n"
        cold.append(t + f"s_sub_u32 s79, s79, 1\ns_cbranch_scc0 {L}\ns_mov_b32 s79, 0\n{post}s_branch {L}_d")
    def flush_cold():
        for t in cold: a(t)
        cold.clear()
    def empty_check(regs, t):
        regs = list(regs)
        a(f"v_max3_u32 v{t}, v{regs[0]}, v{regs[1]}, v{regs[2]}"); regs = regs[3:]
        while len(regs) >= 2: a(f"v_max3_u32 v{t}, v{t}, v{regs[0]}, v{regs[1]}"); regs = regs[2:]
        if regs: a(f"v_max_u32 v{t}, v{t}, v{regs[0]}")
        a(f"v_cmp_eq_u32 vcc, -1, v{t}")
    def nan4(x, t): pk("add", t, x, x + 2); a(f"v_cmp_u_f32 vcc, v{t}, v{t+1}")
    def rows_allreduce(op, v, t, both=True):
        a(f"v_mov_b32 v{t}, v{v}\nv_permlane16_swap_b32 v{v}, v{t}\n{op} v{v}, v{v}, v{t}")
        if both: a(f"v_mov_b32 v{t}, v{v}\nv_permlane32_swap_b32 v{v}, v{t}\n{op} v{v}, v{v}, v{t}")
    def half_masks(first, esrc, t0):
        a(f"v_and_b32 v{t0}, 1, v{esrc}\nv_lshlrev_b32 v{t0}, 4, v{t0}\nv_mov_b32 v{t0+1}, 0xffff\nv_lshlrev_b32 v{t0}, v{t0}, v{t0+1}")
        a(f"v_lshrrev_b32 v{t0+1}, 1, v{esrc}")
        for r in range(4): a(f"v_cmp_eq_u32 vcc, {r}, v{t0+1}\nv_cndmask_b32 v{first+r}, 0, v{t0}, vcc")
    def wait_lds(addr, val, sleep):
        L = loop("lds")
        a(f"ds_read_b32 v8, v61 offset:{addr}\ns_waitcnt lgkmcnt(0)\nv_cmp_ne_u32 vcc, {val}, v8")
        retry(L, sleep)
    def tag_field(d, pos):
        a(f"v_and_b32 v{d}, 3, v{pos}\nv_mul_u32_u24 v{d}, 7, v{d}\nv_lshrrev_b32 v{d}, v{d}, s77\nv_and_b32 v{d}, 0xffe, v{d}\nv_and_or_b32 v{d}, s77, 1, v{d}")
    def untag(x, f): a(f"v_xor_b32 v{x}, v{x}, v{f}")
    def tag_acc(acc, x, y, first): a(f"v_or_b32 v{acc}, v{x}, v{y}" if first else f"v_or3_b32 v{acc}, v{acc}, v{x}, v{y}")
    def tag_test(acc): a(f"v_and_b32 v{acc}, 0xfff, v{acc}\nv_cmp_ne_u32 vcc, 0, v{acc}")
    def next_tag(): a("s_mul_i32 s77, s77, 1664525\ns_add_u32 s77, s77, 1013904223")

    a(f".text\n.globl {kname}\n.p2align 8\n.type {kname},@function\n{kname}:")
    a("s_cmp_ge_u32 s2, 256\ns_cbranch_scc1 L_exit")
    if diag: a("s_memrealtime s[100:101]")
    a("s_load_dwordx8 s[8:15], s[0:1], 0")
    a("s_getpc_b64 s[4:5]\nL_pc:")
    if cpf == 0: a("v_lshlrev_b32 v4, 7, v0")
    else:
        a(f"s_lshr_b32 s3, s2, {3 + cpf - 1}\nv_lshrrev_b32 v4, {5 - (cpf - 1)}, v0\nv_lshlrev_b32 v4, {5 - (cpf - 1)}, v4\nv_add_lshl_u32 v4, v4, s3, 7")
    a("v_min_u32 v4, L_code_end-L_pc-4, v4\nglobal_load_dword v4, v4, s[4:5]")
    a("v_lshrrev_b32 v5, 6, v0\nv_and_b32 v1, 63, v0\nv_readfirstlane_b32 s3, v5")
    a("s_and_b32 s72, s2, 7\ns_lshr_b32 s73, s2, 3\ns_lshl_b32 s6, s72, 5\ns_add_u32 s6, s6, s73")
    a("s_lshr_b32 s74, s6, 3\ns_and_b32 s75, s6, 7\ns_and_b32 s76, s3, 3")
    a("v_and_b32 v6, 15, v1\nv_lshrrev_b32 v7, 4, v1")
    srd_tail(40, WSZ)
    a(f"s_mov_b32 s79, {SPIN}\ns_cmp_lt_u32 s3, 4\ns_cbranch_scc1 L_aux0")
    def aux_start():
        a("L_aux0:\nv_lshlrev_b32 v96, 4, v0\nv_mov_b32 v112, -1\nv_mov_b32 v113, -1\nv_mov_b32 v114, -1\nv_mov_b32 v115, -1")
        a("ds_write_b128 v96, v[112:115]\nds_write_b128 v96, v[112:115] offset:4096")
        a("v_and_b32 v8, 31, v1\nv_lshlrev_b32 v8, 3, v8\nv_lshrrev_b32 v9, 5, v1\nv_mul_u32_u24 v9, 1280, v9\nv_add_u32 v2, v8, v9")
        a("s_mul_i32 s7, s75, 80\ns_mul_i32 s80, s76, 20\ns_add_u32 s7, s7, s80\nv_add_u32 v8, s7, v7")
        a("v_bfe_u32 v9, v1, 3, 1\nv_mul_u32_u24 v9, 1280, v9\nv_lshl_add_u32 v3, v8, 1, v9")
        a("s_lshl_b32 s7, s74, 8\nv_lshlrev_b32 v8, 13, v8\nv_lshl_add_u32 v9, v6, 4, s7\nv_add_u32 v5, v8, v9")
        srd_tail(44, 2560); srd_tail(48, 640 * 4096 * 2)
        a("s_mov_b32 s7, 0\ns_waitcnt lgkmcnt(0)\ns_mov_b64 s[44:45], s[8:9]\ns_mov_b64 s[48:49], s[14:15]")
        def l1():
            for i in range(5): a(f"buffer_load_dwordx2 v[{8+2*i}:{9+2*i}], v2, {sX}, 0 offen offset:{256*i}")
        def l2():
            for i in range(5): a(f"buffer_load_ushort v{18+i}, v3, {sX}, 0 offen offset:{8*i}")
        def l3():
            for i in range(5): a(f"buffer_load_dwordx4 v[{24+4*i}:{27+4*i}], v5, {sWQ}, s7 offen nt" + ("\ns_add_u32 s7, s7, 0x8000" if i < 4 else ""))
        for n, f in enumerate({0: (l1, l2, l3), 1: (l3, l1, l2), 2: (l1, l3, l2)}[int(wqfirst)]):
            if n == bar: a("s_barrier")
            f()
        a("s_load_dwordx8 s[16:23], s[0:1], 32\ns_load_dwordx8 s[24:31], s[0:1], 64")
        if bar == 3: a("s_barrier")
        a("s_branch L_aux")

    a("s_setprio 2")
    a("v_bfe_u32 v8, v1, 2, 2\nv_lshlrev_b32 v8, 8, v8\nv_lshl_or_b32 v8, v7, 6, v8\nv_and_b32 v9, 3, v1\nv_lshl_or_b32 v2, v9, 4, v8")
    a("s_and_b32 s80, s75, 3\ns_cselect_b32 s71, 0, 0x80000000\ns_lshl_b32 s70, s75, 18")
    a("s_lshl_b32 s7, s74, 21\ns_lshl_b32 s80, s76, 10\ns_add_u32 s7, s7, s80\nv_add_u32 v2, s7, v2\nv_lshl_add_u32 v3, v1, 4, s7")
    srd_tail(32, 1 << 27); srd_tail(36, 1 << 27)
    a("s_waitcnt lgkmcnt(0)\ns_mov_b64 s[32:33], s[10:11]\ns_mov_b64 s[36:37], s[12:13]")
    RING, NB, PH, NG = 100, 39, 68, 17
    BK, DK, ACC, BV, MLB, MLS, RMAX, S, NINF = 16, 32, 40, 44, 52, 56, 60, [64, 81], 98
    vm, landed, ld_idx, items, got = ["code"], [-1], {}, [], set()
    def wait_vm(idx):
        if idx > landed[0]:
            a(f"s_waitcnt vmcnt({len(vm) - 1 - idx})"); landed[0] = idx
    def kind(n):
        k, r = divmod(n, 17)
        if r == 16: return ("hole", k)
        m = 16 * k + r
        return ("opt" if (m & 3) == ((m >> 2) & 3) else "own", m)
    def address(i):
        ph, n = divmod(i, PH); b = ph & 1
        kd, m = kind(n)
        if kd == "hole": a(f"s_add_u32 s73, s72, {hx((b << 26) + m * 65536)}"); return "s73"
        a(f"s_add_u32 s7, s70, {hx(b << 26)}" if m == 0 else "s_addk_i32 s7, 0x1000")
        if kd == "own": return "s7"
        a("s_or_b32 s73, s7, s71"); return "s73"
    def issue(i, so):
        isv = i >= 2 * PH; r = RING + (i % NB) * 4
        a(f"buffer_load_dwordx4 v[{r}:{r+3}], {'v3' if isv else 'v2'}, {sV if isv else sK}, {so} offen nt")
        ld_idx[i] = len(vm); vm.append(i)
    def add(cost, needs, fn): items.append((cost, needs, fn))
    def setup1():
        a("s_getreg_b32 s78, hwreg(HW_REG_XCC_ID, 0, 4)")
        a("s_and_b32 s72, s75, 4\ns_lshl_b32 s72, s72, 18\ns_and_b32 s80, s75, 3\ns_mul_i32 s80, s80, 20480\ns_add_u32 s72, s72, s80")
        half_masks(10, 6, 8)
        a("v_and_b32 v9, 3, v1\nv_lshlrev_b32 v9, 4, v9\nv_lshl_or_b32 v14, v7, 6, v9")
        a("v_and_b32 v15, 31, v1\nv_lshlrev_b32 v15, 4, v15")
        a("v_lshl_add_u32 v9, v7, 3, v6\nv_lshlrev_b32 v9, 4, v9\ns_lshl_b32 s80, s76, 9\nv_add_u32 v62, s80, v9")
        a("s_lshl_b32 s80, s6, 9\nv_add_u32 v63, s80, v15")
        a(f"v_mov_b32 v61, 0\nv_mov_b32 v5, 1\nv_mov_b32 v{NINF}, 0xff800000")
    def setup2():
        a("s_waitcnt lgkmcnt(0)\ns_load_dword s77, s[40:41], 0")
        a(f"s_lshr_b32 s90, s6, 5\ns_lshl_b32 s90, s90, 12\ns_add_u32 s90, s90, {ML}\ns_lshl_b32 s91, s6, 7\ns_add_u32 s91, s91, {ML}")
        a("v_bfe_u32 v9, v1, 2, 3\nv_lshlrev_b32 v9, 7, v9\nv_and_b32 v4, 3, v1\nv_lshl_or_b32 v0, v4, 4, v9\ns_and_b32 s80, s74, 3\ns_lshl_b32 s80, s80, 10\nv_add_u32 v0, s80, v0")
        a("v_and_b32 v8, 31, v1\nv_min_u32 v8, 11, v8\nv_and_b32 v9, 3, v8\nv_lshrrev_b32 v8, 2, v8\nv_lshl_add_u32 v8, v9, 3, v8\nv_lshlrev_b32 v8, 7, v8\nv_add_u32 v8, 192, v8")
        a("v_cmp_gt_u32 vcc, 32, v1\nv_cndmask_b32 v99, v8, v0, vcc\nv_lshlrev_b32 v4, 3, v4")
        a("s_lshl_b32 s99, s76, 3\ns_ashr_i32 s98, s71, 31")
        if ctl:
            a(f"s_sub_u32 s65, s2, {256 - nref}\ns_cselect_b32 s64, 0, 1\ns_cmp_eq_u32 s76, 0\ns_cselect_b32 s64, s64, 0\ns_mul_i32 s65, s65, {RS}\ns_add_u32 s65, s65, {REF}")
            a(f"s_add_u32 s66, s40, {REF}\ns_addc_u32 s67, s41, 0\ns_mov_b32 s62, 0\ns_mov_b32 s63, 0")
        for t in range(4): mask64(80 + 2 * t, 0x000F000F000F000F << (4 * t))
        mask64(88, 0x00FF00FF00FF00FF)
        a(f"s_mov_b32 s92, {hx(f2u(128 ** -0.5))}\ns_mov_b32 s93, {hx(LOG2E)}")
    def setup3():
        a("s_waitcnt lgkmcnt(0)"); next_tag(); tag_field(1, 1)
    def it_qfrag(b):
        L = loop("q")
        a(f"ds_read_b128 v[{BV}:{BV+3}], v14 offset:{QF + b * 256}\ns_waitcnt lgkmcnt(0)")
        empty_check(range(BV, BV + 4), BV + 4); retry(L, 1)
        if b == 0:
            stamp(1); a(f"ds_read_b32 v8, v61 offset:{NEAR}\ns_waitcnt lgkmcnt(0)\nv_readfirstlane_b32 s31, v8")
        for t in range(4):
            for r in range(4): a(f"v_cndmask_b32 v{BK + 4*t + r}, 0, v{BV + r}, s[{80+2*t}:{81+2*t}]")
    def it_k(i):
        n = i % PH
        mfma(DK + ((n >> 2) & 1) * 4, RING + (i % NB) * 4, BK + 4 * (n & 3), n & 3 == 0)
    def it_kred(b, u):
        d = DK + (u & 1) * 4; s = S[b] + u
        a(f"v_mov_b32_dpp v{s}, v{d} quad_perm:[0,0,0,0] {DPPM}")
        for r in range(1, 4): a(f"v_add_f32_dpp v{s}, v{d+r}, v{s} quad_perm:[{r},{r},{r},{r}] {DPPM}")
        bfr(s, s); a(f"v_mul_f32 v{s}, s92, v{s}"); bfr(s, s)
        om = sum(0x000F000F << (4 * t) for t in range(4) if kind(4 * u + t)[0] == "opt")
        if om: a(f"s_and_b32 s0, s98, {hx(om)}\ns_mov_b32 s1, s0\nv_cndmask_b32 v{s}, v{s}, v{NINF}, s[0:1]")
        a(f"v_mov_b32 v{RMAX}, v{s}" if u == 0 else f"v_max_f32 v{RMAX}, v{RMAX}, v{s}")
    def it_max(b):
        a(f"v_max_f32_dpp v{RMAX}, v{RMAX}, v{RMAX} row_ror:8 {DPPM}\nv_max_f32_dpp v{RMAX}, v{RMAX}, v{RMAX} row_ror:4 {DPPM}")
        rows_allreduce("v_max_f32", RMAX, BV)
        a(f"v_mov_b32 v{MLS}, v{RMAX}\nv_mov_b32 v{MLS+1}, 0")
    def it_sum(b, u0):
        n = min(4, NG - u0)
        for u in range(n): a(f"v_sub_f32 v{BV+u}, v{S[b]+u0+u}, v{MLS}")
        for u in range(n): a(f"v_mul_f32 v{BV+u}, s93, v{BV+u}")
        for u in range(n): a(f"v_exp_f32 v{BV+u}, v{BV+u}")
        for u in range(n): a(f"v_add_f32 v{MLS+1}, v{MLS+1}, v{BV+u}")
    def it_mlpub(b):
        l, Ls = MLS + 1, a.lab("mlast")
        a(f"v_add_f32_dpp v{l}, v{l}, v{l} row_ror:8 {DPPM}\nv_add_f32_dpp v{l}, v{l}, v{l} row_ror:4 {DPPM}")
        rows_allreduce("v_add_f32", l, BV)
        a(f"v_mov_b32 v8, s99\ns_mov_b64 exec, 1\nds_write_b64 v8, v[{MLS}:{MLS+1}] offset:{MRED + 32*b}")
        a(f"ds_add_rtn_u32 v8, v61, v5 offset:{MCNT + 4*b}\ns_mov_b64 exec, -1")
        a(f"ds_read_b64 v[{BV}:{BV+1}], v4 offset:{MRED + 32*b}\ns_waitcnt lgkmcnt(0)\nv_readfirstlane_b32 s96, v8")
        a(f"s_cmp_lg_u32 s96, 2\ns_cbranch_scc1 {Ls}")
        a(f"v_mov_b32 v8, s78\nv_cndmask_b32 v{MLS}, v8, v{BV}, s[80:81]\nv_mov_b32 v{MLS+1}, s77\nv_mov_b32 v{MLS+2}, v{BV+1}\nv_mov_b32 v{MLS+3}, s77")
        a(f"s_add_u32 s96, s91, {b * 32768}\ns_mov_b64 exec, 0xff\ns_cmp_lg_u32 s31, {0 if mlnear else 7}\ns_cbranch_scc1 {Ls}_far")
        a(f"buffer_store_dwordx4 v[{MLS}:{MLS+3}], v15, {sWS}, s96 offen\n{Ls}:\ns_mov_b64 exec, -1")
        cold.append(f"{Ls}_far:\nbuffer_store_dwordx4 v[{MLS}:{MLS+3}], v15, {sWS}, s96 offen sc0 sc1\ns_branch {Ls}")
    def ml_load(b): return f"buffer_load_dwordx4 v[{MLB}:{MLB+3}], {'v0' if b else 'v99'}, {sWS}, s94 offen sc1"
    def ml_issue(b):
        a(f"s_add_u32 s94, s90, {b * 32768}\n" + ml_load(b))
        ld_idx[("ml", b)] = len(vm); vm.append("ml")
    def it_mlget(b):
        L = loop("ml")
        a(f"v_cmp_ne_u32 vcc, s77, v{MLB+1}\nv_cmp_ne_u32 s[96:97], s77, v{MLB+3}\ns_or_b64 vcc, vcc, s[96:97]")
        if b == 0: a("s_mov_b32 s30, vcc_hi\ns_mov_b32 vcc_hi, 0")
        a(f"s_cmp_lg_u32 vcc_lo, 0\ns_cbranch_scc1 {L}_r\n{L}_d:")
        cold.append(f"{L}_r:\ns_sleep 4\n{ml_load(b)}\ns_waitcnt vmcnt(0)\ns_sub_u32 s79, s79, 1\ns_cbranch_scc0 {L}\ns_mov_b32 s79, 0\ns_branch {L}_d")
        got.add(b)
        if b == 0: a(f"v_cmp_ne_u32 vcc, s78, v{MLB}\ns_or_b32 s30, s30, {'vcc_hi' if fast else '1'}")
        M, Ls = MLB + 1, MLB + 2
        a(f"v_max_f32_dpp v{M}, v{MLB}, v{MLB} row_ror:8 {DPPM}")
        for k in (4, 2, 1): a(f"v_max_f32_dpp v{M}, v{M}, v{M} row_ror:{k} {DPPM}")
        rows_allreduce("v_max_f32", M, 8, both=False)
        a(f"v_sub_f32 v8, v{MLB}, v{M}\nv_mul_f32 v8, s93, v8\nv_exp_f32 v8, v8\nv_mul_f32 v{Ls}, v{Ls}, v8")
        for k in (8, 4, 2, 1): a(f"v_add_f32_dpp v{Ls}, v{Ls}, v{Ls} row_ror:{k} {DPPM}")
        rows_allreduce("v_add_f32", Ls, 8, both=False)
        a(f"v_rcp_f32 v{Ls}, v{Ls}\nv_readfirstlane_b32 s4, v{M}\nv_readfirstlane_b32 s5, v{Ls}")
    def it_p(b, u0):
        R = [S[b] + u for u in range(u0, min(u0 + 4, NG))]
        for s in R: a(f"v_subrev_f32 v{s}, s4, v{s}")
        for s in R: a(f"v_mul_f32 v{s}, s93, v{s}")
        for s in R: a(f"v_exp_f32 v{s}, v{s}")
        for s in R: a(f"v_mul_f32 v{s}, s5, v{s}")
        for s in R: a(f"v_cvt_pk_bf16_f32 v{s}, v{s}, v{s}")
    def it_vb(i):
        b, n = divmod(i - 2 * PH, PH)
        for r in range(4): a(f"v_and_b32_dpp v{BV + (i & 1)*4 + r}, v{S[b] + (n >> 2)}, v{10+r} row_newbcast:{4*(n & 3)} {DPPM}")
    def it_v(i): mfma(ACC, RING + (i % NB) * 4, BV + (i & 1) * 4, i % PH == 0)
    def it_opub(b):
        Ls = a.lab("olast")
        if b == 1: stamp(2)
        a(f"s_mov_b32 s95, {OP + b * 0x20000}\ns_movk_i32 s97, 0xfff\ns_mov_b64 exec, s[88:89]")
        a(f"ds_write_b128 v62, v[{ACC}:{ACC+3}] offset:{ORED + b * 2048}")
        a(f"s_mov_b64 exec, 1\nds_add_rtn_u32 v8, v61, v5 offset:{CNT + 4*b}\ns_mov_b32 exec_lo, -1")
        for w in range(4): a(f"ds_read_b128 v[{16+4*w}:{19+4*w}], v15 offset:{ORED + b * 2048 + w * 512}")
        a("s_waitcnt lgkmcnt(0)\nv_readfirstlane_b32 s96, v8")
        add4(16, 16, 20); add4(24, 24, 28)
        a(f"s_cmp_lg_u32 s96, 2\ns_cbranch_scc1 {Ls}\ns_cmp_lg_u32 s30, 0")
        add4(16, 16, 24); a("v_bfi_b32 v16, s97, v1, v16")
        a(f"s_cbranch_scc1 {Ls}_far\nbuffer_store_dwordx4 v[16:19], v63, {sWS}, s95 offen\n{Ls}_st:")
        cold.append(f"{Ls}_far:\nbuffer_store_dwordx4 v[16:19], v63, {sWS}, s95 offen sc0 sc1\ns_branch {Ls}_st")
        if b == 1:
            if oflag: a(f"ds_write_b32 v61, v5 offset:{PRG + 8}")
            stamp(3)
        a(f"{Ls}:\ns_mov_b64 exec, -1")
    F = lambda fn, *x: (lambda: fn(*x))
    for b in range(2):
        add(30, None, F(it_qfrag, b))
        for n in range(PH):
            add(4, PH * b + n, F(it_k, PH * b + n))
            if n & 3 == 0 and n: add(12, None, F(it_kred, b, (n >> 2) - 1))
            if b == 1 and PH + n == ml0:
                add(40, ("ml", 0), F(it_mlget, 0))
                for u0 in range(0, NG, 4): add(24, None, F(it_p, 0, u0))
        add(16, None, F(it_kred, b, NG - 1)); add(20, None, F(it_max, b))
        for u0 in range(0, NG, 4): add(20, None, F(it_sum, b, u0))
        add(40, None, F(it_mlpub, b))
    for b in range(2):
        for n in range(PH):
            i = (2 + b) * PH + n
            add(4, None, F(it_vb, i)); add(4, i, F(it_v, i))
            if b == 0 and i == ml1:
                add(40, ("ml", 1), F(it_mlget, 1))
                for u0 in range(0, NG, 4): add(24, None, F(it_p, 1, u0))
        add(40, None, F(it_opub, b))
    consumed = [-1]
    def run_items(bud, force=False):
        while items:
            cost, needs, fn = items[0]
            if needs is not None:
                if needs not in ld_idx: return
                if ld_idx[needs] > landed[0]:
                    if not force: return
                    wait_vm(ld_idx[needs])
            if bud <= 0 and not force: return
            items.pop(0); fn(); bud -= cost
            if isinstance(needs, int): consumed[0] = needs
    def act(i, lastc):
        if bias: a(f"s_add_i32 s68, s68, {bias * nref}")
        if ffb and i >= ffb_from: a(f"s_and_b32 s69, s98, {ffb * nref}\ns_add_i32 s68, s68, s69")
        if fin and lastc:
            a(f"s_add_i32 s69, s68, {fin[2] * nref}\ns_max_i32 s69, s69, 0\ns_min_u32 s69, s69, 0x1000\ns_mul_i32 s69, s69, {int(fin[1]*655.36/nref)}\ns_lshr_b32 s69, s69, 16\ns_sub_u32 s62, {4*PH}, s69")
        else:
            a(f"s_max_i32 s69, s68, 0\ns_min_u32 s69, s69, 0x4000\ns_mul_i32 s69, s69, {int(gb*655.36/nref)}\ns_lshr_b32 s69, s69, 16\ns_add_u32 s62, s69, {i+1}")
        a(f"s_sub_i32 s69, 0, s68\ns_max_i32 s69, s69, 0\ns_min_u32 s69, s69, 0x4000\ns_mul_i32 s69, s69, {int(gs*655.36/nref)}\ns_lshr_b32 s69, s69, 16\ns_add_u32 s63, s69, {i+1}")
    k0 = 1 if ph0 <= setup_at else 0
    cpts = [c for c in range(ph0 + k0 * E + dl + dw, 4 * PH - 4, E)]
    for i in range(4 * PH):
        while consumed[0] < i - NB:
            n0 = len(items); run_items(1); assert len(items) < n0, "ring stall"
        so = address(i)
        if ctl and i > cpts[0]:
            last = fin and i > cpts[-1]
            wait_vm(ld_idx[i - (fin[0] if last else ctl[0])])
            n = [len(vm) - 1 - ld_idx[i - d] for d in ctl]
            go = a.lab("go")
            a(f"s_cmpk_{'le' if last else 'gt'}_u32 s62, {i}\ns_cbranch_scc1 {go}\ns_waitcnt vmcnt({n[1]})")
            a(f"s_cmpk_le_u32 s63, {i}\ns_cbranch_scc1 {go}\ns_waitcnt vmcnt({n[2]})\n{go}:")
        else:
            d = depth
            for (frm, dd) in (dsched or ()):
                if i >= frm: d = dd
            if i >= d: wait_vm(ld_idx[i - d])
        issue(i, so)
        if i == depth - 1:
            a("s_load_dwordx2 s[40:41], s[0:1], 88\ns_barrier\ns_branch L_stream"); aux_start(); a("L_stream:"); stamp(0); setup1()
        if i == 2 * depth - 1: setup2()
        if i == setup_at: setup3()
        if ctl:
            k, m = divmod(i - ph0, E)
            if ph0 + k * E + dl + dw in cpts:
                lastc = ph0 + k * E + dl + dw == cpts[-1]
                w = 0 if k == k0 else (fin[3] if fin and lastc else ex)
                if m == dl + dw - 1 and w: a("s_memrealtime s[74:75]")
                if m == 0: a("s_memrealtime s[60:61]")
                if m == 1:
                    sk = a.lab("ref")
                    a(f"s_cmp_lg_u32 s64, 0\ns_cbranch_scc1 {sk}_r\n{sk}:")
                    cold.append(f"{sk}_r:\ns_waitcnt lgkmcnt(0)\nv_mov_b32 v6, s60\nv_mov_b32 v7, s77\nv_mov_b32 v8, s60\nv_mov_b32 v9, s77\ns_mov_b64 exec, 0xff\n"
                                f"buffer_store_dwordx4 v[6:9], v15, {sWS}, s65 offen offset:{128*k} sc0 sc1\ns_mov_b64 exec, -1\ns_branch {sk}")
                if m == dl:
                    for q in range(nref): a(f"s_load_dwordx2 s[{44+2*q}:{45+2*q}], s[66:67], {q*RS + 128*k}")
                if m == dl + dw:
                    a("s_waitcnt lgkmcnt(0)\ns_mov_b32 s68, 0")
                    for q in range(nref):
                        a(f"s_sub_u32 s69, s60, s{44+2*q}\ns_cmp_eq_u32 s{45+2*q}, s77\ns_cselect_b32 s69, s69, {-14*dl}\ns_add_u32 s68, s68, s69")
                    if ex or fin:
                        a(f"s_mul_i32 s69, s60, {nref}\ns_sub_u32 s69, s69, s68\ns_sub_u32 s76, s69, s2\ns_mov_b32 s2, s69")
                    if w:
                        a(f"s_mul_i32 s96, s76, {round(256 * (dl + dw - 1) / E)}\ns_lshr_b32 s96, s96, 8\ns_sub_u32 s69, s74, s60\ns_mul_i32 s69, s69, {nref}")
                        a(f"s_sub_i32 s69, s69, s96\ns_mul_i32 s69, s69, {w}\ns_ashr_i32 s69, s69, 4\ns_add_i32 s68, s68, s69")
                    act(i, lastc)
            for c in cpts[1:]:
                for d in (fmids if c == cpts[-1] else mids):
                    if i == c + d - 1: a("s_memrealtime s[74:75]")
                    if i == c + d:
                        a(f"s_mul_i32 s96, s76, {round(256 * (dl + dw - 1 + d) / E)}\ns_lshr_b32 s96, s96, 8\ns_add_u32 s96, s96, s2")
                        a(f"s_waitcnt lgkmcnt(0)\ns_mul_i32 s68, s74, {nref}\ns_sub_u32 s68, s68, s96")
                        act(i, c == cpts[-1])
        for gi in [k for k, g in enumerate(gates) if g == i]:
            a(f"s_mov_b64 exec, 1\nds_write_b32 v61, v5 offset:{PRG + 4*gi}\ns_mov_b64 exec, -1")
        if early:
            el = list(early)
            if i in el: stamp(4 + el.index(i))
        elif i in (34, 68, 102, 136, 170, 204, 238): stamp(3 + i // 34)
        if i == ml0: ml_issue(0)
        if i == ml1: ml_issue(1)
        if i >= P - 1: run_items(budget)
    run_items(0, force=True)
    if bell:
        a(f"s_cmp_eq_u32 s71, 0\ns_cbranch_scc1 L_sdone\ns_cmp_ge_u32 s99, {8*nc}\ns_cbranch_scc1 L_sdone")
        a(f"s_lshr_b32 s96, s6, 5\ns_bfe_u32 s97, s6, 0x20003\ns_lshl_b32 s97, s97, 3\ns_add_u32 s97, s97, s96\ns_cmp_ge_u32 s97, 27\ns_cbranch_scc1 L_sdone")
        a(f"s_and_b32 s97, s96, 3\ns_lshl_b32 s97, s97, 10\ns_lshr_b32 s96, s96, 2\ns_mul_i32 s96, s96, {nc*cs}\ns_add_u32 s96, s96, s97")
        a(f"s_bfe_u32 s97, s99, {3 | ((nc.bit_length() - 1) << 16)}\ns_mul_i32 s97, s97, {cs}\ns_add_u32 s96, s96, s97\ns_add_u32 s96, s96, {BELL}")
        a("s_add_u32 s66, s40, s96\ns_addc_u32 s67, s41, 0")
        a("L_sb:")
        for q in range(8): a(f"s_load_dword s{44+2*q}, s[66:67], {128*q} glc")
        a("s_sub_u32 s79, s79, 1\ns_cbranch_scc1 L_sdone\ns_waitcnt lgkmcnt(0)")
        for q in range(8): a(f"s_cmp_lg_u32 s{44+2*q}, s77\ns_cbranch_scc1 L_sb")
        a(f"ds_write_b32 v61, v5 offset:{HEARD}\nL_sdone:")
    dump_stamps()
    a("s_endpgm")
    flush_cold()

    a("L_aux:")
    a("s_getreg_b32 s78, hwreg(HW_REG_XCC_ID, 0, 4)")
    srd_tail(52, 4096 * 640 * 2); srd_tail(56, 640 * 1728 * 2); srd_tail(60, 640 * 1728 * 2); srd_tail(64, 1728 * 640 * 2); srd_tail(68, 2560)
    a("v_and_b32 v68, 7, v1"); half_masks(64, 68, 69)
    mask64(88, 0xFF00FF00FF00FF00)
    a(f"s_mov_b32 s92, {hx(f2u(1/640))}\ns_mov_b32 s93, {hx(f2u(1e-5))}")
    a("s_lshl_b32 s7, s76, 8\nv_lshl_add_u32 v97, v6, 4, s7\nv_lshl_add_u32 v101, v7, 11, v97")
    a(f"s_lshl_b32 s84, s6, 10\ns_add_u32 s84, s84, {QP}\ns_lshl_b32 s85, s74, 13\ns_add_u32 s85, s85, {QP}\nv_add_u32 v102, {QPB - QP}, v101")
    a("v_bfe_u32 v103, v1, 3, 1\nv_lshlrev_b32 v103, 7, v103\nv_and_b32 v70, 22, v1\nv_or_b32 v103, v103, v70\nv_lshrrev_b32 v70, 5, v1\nv_lshl_or_b32 v103, v70, 3, v103")
    a("s_lshl_b32 s7, s76, 5\nv_add_lshl_u32 v103, v103, s7, 1\nv_and_b32 v98, 3, v1\nv_lshlrev_b32 v98, 3, v98")
    a("s_waitcnt lgkmcnt(0)")
    for n, p in ((52, 16), (56, 20), (60, 22), (64, 24), (68, 26), (40, 30)): a(f"s_mov_b64 s[{n}:{n+1}], s[{p}:{p+1}]")
    a("s_load_dword s77, s[40:41], 0")
    stamp(0)
    a("s_lshr_b32 s7, s73, 3\ns_and_b32 s39, s75, 3\ns_cbranch_scc0 L_role2")
    a("s_sub_u32 s39, s75, 1\ns_lshl_b32 s39, s39, 2\ns_add_u32 s39, s39, s7\ns_cmp_lt_u32 s39, 10\ns_cselect_b32 s38, 1, 0\ns_branch L_role")
    a("L_role2:\ns_lshl_b32 s39, s7, 3\ns_add_u32 s39, s39, s72\ns_cmp_lt_u32 s39, 27\ns_cselect_b32 s38, 2, 0\ns_lshl_b32 s39, s39, 1\ns_lshr_b32 s7, s75, 2\ns_add_u32 s39, s39, s7")
    a("L_role:")
    a(f"s_waitcnt vmcnt({5 if wqfirst == 1 else 10})")
    for i in range(10): unpack(44 + 2 * i, 45 + 2 * i, 8 + i)
    def red32(v):
        for k in (8, 4, 2, 1): a(f"v_add_f32_dpp v{v}, v{v}, v{v} row_ror:{k} {DPPM}")
        rows_allreduce("v_add_f32", v, 71, both=False)
    pk("add", 8, 44, 46)
    for i in range(2, 10): pk("add", 8, 8, 44 + 2 * i)
    a("v_add_f32 v8, v8, v9"); red32(8)
    a("v_mul_f32 v8, s92, v8")
    for i in range(10): a(f"v_pk_add_f32 v[{44+2*i}:{45+2*i}], v[{44+2*i}:{45+2*i}], v[8:9] op_sel_hi:[1,0] neg_lo:[0,1] neg_hi:[0,1]")
    pk("mul", 10, 44, 44)
    for i in range(1, 10): a(f"v_pk_fma_f32 v[10:11], v[{44+2*i}:{45+2*i}], v[{44+2*i}:{45+2*i}], v[10:11]")
    a("v_add_f32 v10, v10, v11"); red32(10)
    a("v_mul_f32 v10, s92, v10")
    bfr(10, 10); bfr(8, 8); a("v_add_f32 v10, s93, v10"); bfr(10, 10); a("v_sqrt_f32 v10, v10"); bfr(10, 10); a("v_rcp_f32 v10, v10")
    a("v_readlane_b32 s80, v8, 0\nv_readlane_b32 s81, v8, 32\nv_readlane_b32 s82, v10, 0\nv_readlane_b32 s83, v10, 32")
    a("v_mov_b32 v8, s80\nv_mov_b32 v9, s81\nv_mov_b32 v10, s82\nv_mov_b32 v11, s83")
    a("v_cndmask_b32 v8, v8, v9, s[88:89]\nv_cndmask_b32 v10, v10, v11, s[88:89]")
    a(f"s_waitcnt vmcnt({0 if wqfirst else 5})")
    for i in range(5): a(f"v_lshlrev_b32 v{18+i}, 16, v{18+i}\nv_sub_f32 v{18+i}, v{18+i}, v8")
    for i in range(5): bfr(18 + i, 18 + i)
    for i in range(5): a(f"v_mul_f32 v{18+i}, v{18+i}, v10\nv_cvt_pk_bf16_f32 v{18+i}, v{18+i}, v{18+i}")
    for i in range(6):
        if i < 5:
            for r in range(4): a(f"v_and_b32 v{44+4*i+r}, v{18+i}, v{64+r}")
        if i: a(f"s_waitcnt vmcnt({5-i})"); mfma(72, 20 + 4 * i, 40 + 4 * i, i == 1)
    a("v_mov_b32 v61, 0\ns_waitcnt lgkmcnt(0)"); next_tag()
    a("s_add_u32 s83, s77, s78\ns_add_u32 s83, s83, 1")
    a(f"ds_write_b128 v96, v[72:75] offset:{QRED}")
    def qfields(t): return f"v_lshrrev_b32 v99, v98, {t}\n" + "\n".join(f"v_bfe_u32 v{104+k}, v99, {2*k}, 2" for k in range(4))
    qtag = "\n".join(f"v_bfi_b32 v{76+k}, 3, v{104+k}, v{76+k}" for k in range(4))
    a(qfields("s83"))
    L = loop("qred")
    for w in range(4): a(f"ds_read_b128 v[{76+4*w}:{79+4*w}], v97 offset:{QRED + 1024*w}")
    a("s_waitcnt lgkmcnt(0)"); add4(76, 76, 80); add4(84, 84, 88); add4(76, 76, 84); nan4(76, 80); retry(L)
    a(qtag)
    a(f"s_mov_b64 exec, 0xffff\nbuffer_store_dwordx4 v[76:79], v97, {sWS}, s84 offen\ns_mov_b64 exec, -1\ns_add_u32 s84, s84, {QPB - QP}\ns_mov_b32 s87, 0")
    stamp(1)
    if qpre: a(f"s_sleep {qpre}")
    a("v_mov_b32 v15, v101\ns_mov_b32 s7, s83")
    L = loop("qg")
    for k in range(2): a(f"buffer_load_dwordx4 v[{80+4*k}:{83+4*k}], v15, {sWS}, s85 offen offset:{1024*k} sc1")
    a("s_waitcnt vmcnt(0)")
    for k in range(8): untag(80 + k, 104 + (k & 3))
    a("v_or3_b32 v88, v80, v81, v82\nv_or3_b32 v88, v88, v83, v84\nv_or3_b32 v88, v88, v85, v86\nv_or_b32 v88, v88, v87\nv_and_b32 v88, 3, v88\nv_cmp_ne_u32 vcc, 0, v88")
    a(f"s_cbranch_vccnz {L}_r\n{L}_d:")
    cold.append(f"{L}_r:\ns_sleep {qsleep}\ns_add_u32 s87, s87, 1\ns_cmp_lg_u32 s87, {qB}\ns_cbranch_scc1 {L}_s\n{qfields('s77')}\n{qtag}\n"
                f"s_mov_b64 exec, 0xffff\nbuffer_store_dwordx4 v[76:79], v97, {sWS}, s84 offen sc0 sc1\ns_mov_b64 exec, -1\n"
                f"{L}_s:\ns_cmp_gt_u32 s87, {qB}\ns_cselect_b32 s7, s87, 0\ns_bitcmp1_b32 s7, 0\ns_cselect_b64 vcc, -1, 0\ns_cselect_b32 s7, s77, s83\n"
                f"v_cndmask_b32 v15, v101, v102, vcc\n{qfields('s7')}\ns_sub_u32 s79, s79, 1\ns_cbranch_scc0 {L}\ns_mov_b32 s79, 0\ns_branch {L}_d")
    a(f"s_cmp_lg_u32 s7, s83\ns_cselect_b32 s7, 1, 0\nv_mov_b32 v8, s7\nds_write_b32 v61, v8 offset:{NEAR}")
    add4(80, 80, 84)
    a("v_permlane32_swap_b32 v80, v81\nv_permlane32_swap_b32 v82, v83\nv_add_f32 v80, v80, v81\nv_add_f32 v82, v82, v83\nv_permlane16_swap_b32 v80, v82\nv_add_f32 v80, v80, v82")
    a(f"v_mov_b32_dpp v81, v80 quad_perm:[1,1,3,3] {DPPM}\nv_mov_b32_dpp v82, v80 quad_perm:[0,0,2,2] {DPPM}")
    a(f"v_cvt_pk_bf16_f32 v80, v82, v81\nv_min_u32 v80, -2, v80\nds_write_b32 v103, v80 offset:{QF}")
    stamp(2)
    a("s_mov_b32 s84, s38\ns_mov_b32 s85, s39")
    a("s_cmp_lg_u32 s76, 0\ns_cbranch_scc1 L_noclr\nv_lshlrev_b32 v8, 4, v1")
    if warm: a(f"s_lshl_b32 s7, s6, 9\ns_add_u32 s7, s7, {OP + 0x20000}\ns_mov_b32 exec_hi, 0\nbuffer_load_dwordx4 v[116:119], v8, {sWS}, s7 offen\ns_mov_b64 exec, -1")
    a(f"s_cmp_lg_u32 s84, 2\ns_cbranch_scc1 L_clr3\ns_mul_i32 s7, s85, 2560\ns_add_u32 s7, s7, {DP}")
    for k in range(0 if noclr else 3): a(("s_mov_b32 exec_hi, 0\n" if k == 2 else "") + f"buffer_store_dwordx4 v[112:115], v8, {sWS}, s7 offen offset:{1024*k} sc0 sc1")
    for r in range(4): a(f"v_mov_b32 v{120+r}, s77")
    a(f"s_lshl_b32 s7, s85, 7\ns_add_u32 s7, s7, {PF}\ns_mov_b64 exec, 0xff\ns_waitcnt vmcnt(0)\nbuffer_store_dwordx4 v[120:123], v8, {sWS}, s7 offen sc0 sc1\ns_mov_b64 exec, -1")
    a("L_clr3:\ns_waitcnt vmcnt(0)")
    a("L_noclr:")
    a("s_mov_b32 s90, 0x05040100\ns_mov_b32 s91, 0x07060302\ns_mov_b32 s98, 0")
    a("v_and_b32 v8, 1, v1\nv_mul_u32_u24 v8, 0xaaaa, v8\nv_or_b32 v60, 0x4444, v8")
    a("s_cmp_eq_u32 s84, 2\ns_cbranch_scc1 L_ffn\ns_cmp_eq_u32 s84, 1\ns_cbranch_scc1 L_wo")
    if bell:
        a("s_cmp_lg_u32 s73, 27\ns_cbranch_scc1 L_done\ns_cmp_lg_u32 s76, 1\ns_cbranch_scc1 L_done")
        a(f"v_and_b32 v2, 31, v1\nv_lshlrev_b32 v2, 9, v2\ns_lshl_b32 s94, s72, 14\ns_add_u32 s94, s94, {OP + 0x20000}")
        a(f"v_bfe_u32 v3, v1, 3, 2\nv_lshlrev_b32 v3, 10, v3\nv_lshrrev_b32 v9, 5, v1\nv_mul_u32_u24 v9, {nc*cs}, v9\nv_add_u32 v3, v3, v9\nv_and_b32 v9, 7, v1\nv_lshl_add_u32 v3, v9, 4, v3")
        for m in range(nc): a(f"s_lshl_b32 s{80+m}, s72, 7\ns_add_u32 s{80+m}, s{80+m}, {BELL + m*cs}")
        for r in range(4): a(f"v_mov_b32 v{12+r}, s77")
        wait_lds(CNT + 4, 3, 4)
        a("s_mov_b32 exec_hi, 0")
        L = loop("bw")
        a(f"buffer_load_dword v9, v2, {sWS}, s94 offen sc1\ns_waitcnt vmcnt(0)\nv_xor_b32 v9, s77, v9"); tag_test(9); retry(L)
        if ring: a(f"s_sleep {ring}")
        a("s_mov_b64 exec, -1")
        for m in range(nc): a(f"buffer_store_dwordx4 v[12:15], v3, {sWS}, s{80+m} offen sc0 sc1")
        stamp(3)
        a("L_done:")
    if probe:
        (opa, wa, ia), (opb, wb, ib), k = probe
        a("s_cmp_lg_u32 s6, 255\ns_cbranch_scc1 L_noprobe\ns_cmp_lg_u32 s76, 1\ns_cbranch_scc1 L_noprobe")
        a("L_pw:\ns_sleep 32\ns_memrealtime s[96:97]\ns_waitcnt lgkmcnt(0)\ns_sub_u32 s96, s96, s8\ns_cmp_lt_u32 s96, 6000\ns_cbranch_scc1 L_pw\nv_lshlrev_b32 v8, 9, v1")
        def red(dst, op, w0, idx):
            for q in range(4):
                a(f"s_mov_b32 s7, {DIAG + q * 32768}")
                for w in range(4): a(f"buffer_load_dword v{64 + 4*q + w}, v8, {sWS}, s7 offen offset:{64*(w0 + (w if w0 == 4 else 0)) + 4*idx} sc1")
            a("s_waitcnt vmcnt(0)")
            for r in range(16): a(f"v_subrev_u32 v{64+r}, s8, v{64+r}")
            ins = {"min": "v_min_i32", "max": "v_max_i32", "mean": "v_add_u32"}[op]
            for r in range(1, 16): a(f"{ins} v64, v64, v{64+r}")
            for kk in (8, 4, 2, 1): a(f"{ins}_dpp v64, v64, v64 row_ror:{kk} {DPPM}")
            rows_allreduce(ins, 64, 65)
            a(f"v_readfirstlane_b32 s{dst}, v64")
            if op == "mean": a(f"s_ashr_i32 s{dst}, s{dst}, 10")
        red(94, opa, wa, ia); red(95, opb, wb, ib)
        a(f"s_sub_i32 s95, s94, s95\ns_mul_i32 s95, s95, {k}\ns_add_i32 s95, s95, 7000\ns_min_u32 s95, s95, 60000")
        a("L_pw2:\ns_sleep 2\ns_memrealtime s[96:97]\ns_waitcnt lgkmcnt(0)\ns_sub_u32 s96, s96, s8\ns_cmp_lt_u32 s96, s95\ns_cbranch_scc1 L_pw2\nL_noprobe:")
    dump_stamps()
    a("s_endpgm")
    flush_cold()

    def staged(nbatch, nld, win, load_fn, finish_fn):
        n = nbatch * nld
        for i in range(n + win):
            if i >= win:
                a(f"s_waitcnt vmcnt({min(n, i) - (i - win) - 1})")
                if (i - win + 1) % nld == 0: finish_fn((i - win) // nld, ((i - win) // nld) & 1)
            if i < n: load_fn(i // nld, i % nld, (i // nld) & 1)

    a("L_wo:")
    a("s_lshl_b32 s80, s72, 2\ns_add_u32 s80, s80, s76\ns_lshl_b32 s7, s80, 7\nv_lshrrev_b32 v8, 5, v1\nv_lshl_add_u32 v8, v8, 4, s7")
    a("v_bfe_u32 v9, v1, 4, 1\nv_lshl_add_u32 v8, v9, 1, v8\nv_mul_u32_u24 v8, 1280, v8\ns_lshl_b32 s7, s85, 7\nv_lshl_add_u32 v9, v6, 3, s7\nv_add_u32 v2, v8, v9")
    def wo_load(k, n, slot):
        i, u, e = k >> 1, 2 * (k & 1) + (n >> 1), n & 1
        reg = 64 + slot * 8 + n * 2
        a(f"s_mov_b32 s7, {(64*(u >> 1) + (u & 1) + 32*(i >> 1) + 4*(i & 1) + 8*e) * 1280}\nbuffer_load_dwordx2 v[{reg}:{reg+1}], v2, {sWO}, s7 offen nt")
    def wo_finish(k, slot):
        for p in range(2):
            i, u, t = k >> 1, 2 * (k & 1) + p, 64 + slot * 8 + p * 4
            for q in range(4): a(f"v_perm_b32 v{128 + (i*2 + (q >> 1))*8 + 2*u + (q & 1)}, v{t + 2 + (q>>1)}, v{t + (q>>1)}, s{90 + (q&1)}")
    staged(8, 4, wo_w, wo_load, wo_finish)
    stamp(3)
    tag_field(58, 1); a("s_movk_i32 s97, 0xfff")
    a(f"s_lshl_b32 s94, s80, 12\ns_add_u32 s94, s94, {OP}\nv_lshlrev_b32 v59, 4, v6\nv_lshl_or_b32 v2, v7, 10, v59")
    a(f"v_add_u32 v5, {RED}, v59\ns_lshl_b32 s7, s76, 8\nv_add_u32 v3, s7, v5")
    a(f"s_mul_i32 s95, s72, 2560\ns_lshl_b32 s7, s85, 8\ns_add_u32 s95, s95, s7\ns_add_u32 s95, s95, {YP}")
    wait_lds(PRG, 1, 8)
    a("L_wo_b:")
    stamp(4)
    for r in (96, 98, 100, 102): zero2(r)
    L = loop("h1")
    for k, off in enumerate((0, 512, 256, 768)): a(f"buffer_load_dwordx4 v[{64+4*k}:{67+4*k}], v2, {sWS}, s94 offen offset:{off} sc1")
    a("s_waitcnt vmcnt(2)"); untag(64, 58); untag(68, 58); tag_acc(80, 64, 68, True); add4(64, 64, 68)
    a("s_waitcnt vmcnt(1)"); untag(72, 58)
    a("s_waitcnt vmcnt(0)"); untag(76, 58); tag_acc(80, 72, 76, False); tag_test(80); add4(68, 72, 76)
    a("s_mov_b64 exec, -1")
    retry(L, gentle=16, pre="s_wqm_b64 exec, vcc\n", post="s_mov_b64 exec, -1\n")
    stamp(5)
    for r in range(4): a(f"v_permlane32_swap_b32 v{64+r}, v{68+r}")
    add4(64, 64, 68)
    a("v_permlane16_swap_b32 v64, v66\nv_permlane16_swap_b32 v65, v67"); pk("add", 64, 64, 66)
    a("v_cvt_pk_bf16_f32 v72, v64, v65")
    def wo_b(i, rs=range(4)):
        for r in rs: a(f"v_mov_b32_dpp v{80+4*i+r}, v72 row_newbcast:{4*i+r} {DPPM}")
    wo_b(0); wo_b(1, (0, 1))
    fill = [(1, (2, 3)), (2, (0, 1)), (2, (2, 3)), (3, (0, 1)), (3, (2, 3))]
    for i in range(4):
        for qq in range(2):
            smf(96 + 4 * qq, 80 + 4 * i, 128 + (i * 2 + qq) * 8)
            if fill: wo_b(*fill.pop(0))
    a("s_cmp_lg_u32 s76, 0\ns_mov_b64 exec, 0xffff\nds_write_b64 v3, v[96:97]\nds_write_b64 v3, v[100:101] offset:8\ns_cbranch_scc1 L_wo_next")
    L = loop("yr")
    for w in range(4): a(f"ds_read_b128 v[{64+4*w}:{67+4*w}], v5 offset:{256*w}")
    for w in range(1, 4):
        a(f"s_waitcnt lgkmcnt({0 if diag and not few else 3-w})"); add4(64, 64, 64 + 4 * w)
    nan4(64, 68); a("v_bfi_b32 v64, s97, v58, v64"); retry(L)
    a(f"buffer_store_dwordx4 v[64:67], v59, {sWS}, s95 offen sc0 sc1")
    stamp(6)
    a("L_wo_next:\ns_mov_b64 exec, -1\ns_cmp_lg_u32 s98, 0\ns_cbranch_scc1 L_wo_end")
    a("s_add_u32 s94, s94, 0x20000\ns_add_u32 s95, s95, 20480\nv_add_u32 v3, 1024, v3\nv_add_u32 v5, 1024, v5\ns_mov_b32 s98, 1\ns_waitcnt vmcnt(0)")
    wait_lds(CNT + 4, 3, 2)
    a("s_branch L_wo_b\nL_wo_end:")
    dump_stamps()
    a("s_endpgm")
    flush_cold()

    GU, DN, HF, AF = 112, 192, 16, 36
    a("L_ffn:")
    a("s_lshl_b32 s7, s85, 5\nv_lshl_add_u32 v8, v7, 2, s7\nv_mul_u32_u24 v8, 1280, v8\ns_lshl_b32 s7, s76, 8\nv_lshl_add_u32 v9, v6, 4, s7\nv_add_u32 v49, v8, v9")
    def dn_block(blk, us=range(4), burst=False):
        def ld(u, e, slot):
            r = 64 + slot * 8 + 4 * e
            a(f"s_mov_b32 s7, {(16*(u >> 1) + 2*(u & 1) + e) * 1280 + 1024*blk}\nbuffer_load_dwordx4 v[{r}:{r+3}], v49, {sWD}, s7 offen nt")
        def fin(u, slot):
            for t in range(4):
                for par in range(2): a(f"v_perm_b32 v{DN + 32*blk + 8*t + 2*u + par}, v{68 + slot*8 + t}, v{64 + slot*8 + t}, s{90+par}")
        if burst:
            for u in us: ld(u, 0, u); ld(u, 1, u)
            for u in us: a(f"s_waitcnt vmcnt({2*(us[-1] - u)})"); fin(u, u)
        elif us: staged(len(us), 2, dn_w, ld, fin)
    dn_block(0, range(4 - late))
    a("s_cmp_lg_u32 s76, 0\ns_cbranch_scc1 L_dn2")
    dn_block(1)
    a(f"L_dn2:\ns_mul_i32 s7, s76, 160\nv_lshrrev_b32 v10, 5, v1\nv_mul_u32_u24 v8, 40, v10\nv_bfe_u32 v9, v1, 4, 1\nv_lshl_add_u32 v8, v9, 2, v8\nv_add_u32 v8, s7, v8")
    a("v_mul_u32_u24 v8, 3456, v8\ns_lshl_b32 s7, s85, 6\nv_lshl_add_u32 v9, v6, 2, s7\nv_add_u32 v2, v8, v9")
    def gu_load(k, n, slot):
        (m, i), u, e = divmod(k, 5), n >> 1, n & 1
        row = 80*(u >> 1) + 8*i
        if e == 0: a(f"s_mov_b32 s7, {(row + 2*(u & 1)) * 3456}")
        a(f"buffer_load_dword v{64 + slot*8 + n}, v2, {sWU if m else sWG}, s7 offen offset:{3456*e} nt")
    def gu_finish(k, slot):
        m, i = divmod(k, 5)
        for u in range(4):
            for par in range(2): a(f"v_perm_b32 v{GU + (i*2 + par)*8 + 2*u + m}, v{65 + slot*8 + 2*u}, v{64 + slot*8 + 2*u}, s{90+par}")
    staged(10, 8, gu_w, gu_load, gu_finish)
    stamp(3)
    a("s_cmp_lt_u32 s85, 40\ns_cselect_b32 s87, s76, 0\ns_cmp_lg_u32 s87, 3\ns_cbranch_scc1 L_pf2")
    a(f"v_min_u32 v9, 53, v1\nv_lshlrev_b32 v9, 7, v9\ns_mov_b32 s7, {PF}")
    L = loop("pf")
    a(f"buffer_load_dword v8, v9, {sWS}, s7 offen sc1\ns_waitcnt vmcnt(0)\nv_cmp_ne_u32 vcc, s77, v8"); retry(L, 16)
    a("L_pf2:\ns_mul_i32 s7, s76, 40\nv_mul_u32_u24 v8, 10, v7\nv_add3_u32 v8, v8, v6, s7")
    tag_field(4, 8)
    a(f"v_lshlrev_b32 v2, 4, v8\nv_lshlrev_b32 v3, 3, v8\nv_cmp_gt_u32 vcc, 10, v6\nv_add_u32 v5, {HTAB}, v2\nv_mov_b32 v11, {DUMP - 2560}\nv_cndmask_b32 v5, v11, v5, vcc")
    a(f"buffer_load_dwordx2 v[46:47], v3, {sX}, 0 offen\nbuffer_load_dwordx2 v[44:45], v3, {sX}, 0 offen offset:1280")
    a(f"s_lshl_b32 s7, s76, 3\ns_add_u32 s7, s7, {STAT + 4}\nv_and_b32 v8, 4, v1\nv_sub_u32 v50, s7, v8\nv_cmp_gt_u32 vcc, 16, v1\nv_cndmask_b32 v50, v11, v50, vcc\nv_mov_b32 v51, {STAT}")
    a(f"s_lshl_b32 s7, s76, 8\ns_add_u32 s7, s7, {RED}\nv_lshl_add_u32 v52, v6, 4, s7\nv_lshl_add_u32 v52, v7, 11, v52")
    a(f"v_and_b32 v11, 7, v1\nv_lshl_add_u32 v8, v7, 3, v11\nv_lshlrev_b32 v8, 3, v8\nv_add_u32 v53, {RED}, v8")
    a("s_lshl_b32 s7, s76, 8\ns_add_u32 s7, s7, 1280\nv_lshl_add_u32 v54, v6, 4, s7\nv_mul_u32_u24 v8, 1280, v7\nv_sub_u32 v54, v54, v8")
    half_masks(12, 11, 8)
    for r in range(4): a(f"v_and_b32 v{12+r}, 0x3f803f80, v{12+r}")
    for r in range(20): a(f"v_mov_b32 v{HF+r}, 0x3f803f80")
    a(f"v_lshrrev_b32 v8, 2, v1\nv_mul_u32_u24 v9, 2560, v8\nv_and_b32 v10, 3, v1\nv_lshl_add_u32 v55, v10, 4, v9\ns_lshl_b32 s7, s85, 6\nv_add_u32 v55, s7, v55")
    a(f"v_cmp_gt_u32 vcc, 6, v8\nv_mov_b32 v10, {hx(OOB)}\nv_cndmask_b32 v56, v10, v55, vcc")
    a("v_and_b32 v8, 16, v1\nv_or_b32 v8, v8, v11\nv_lshrrev_b32 v9, 5, v1\nv_lshl_or_b32 v8, v9, 3, v8")
    a(f"s_lshl_b32 s7, s85, 5\nv_add_u32 v8, s7, v8\nv_lshlrev_b32 v57, 1, v8\nv_lshlrev_b32 v58, 2, v8\nv_add_u32 v58, {HTAB}, v58")
    for k in range(4): a(f"s_mov_b32 s{80+k}, {YP + 5120*k}")
    mask64(50, 0x03FF03FF03FF03FF); mask64(4, 0x00FF00FF00FF00FF); mask64(88, 0xFFFFFFFF)
    for k in (32, 33, 34, 35, 95, 97): a(f"s_mov_b32 s{k}, {hx(OOB)}")
    c1 = -2.0 * 0.7978845608028654 * 1.4426950408889634
    a(f"s_mov_b32 s96, {hx(f2u(c1 * 0.044715))}\nv_mov_b32 v59, {hx(f2u(c1))}")
    a("s_waitcnt vmcnt(0)"); unpack(40, 41, 46); unpack(42, 43, 47)
    for r in (96, 98, 100, 102): zero2(r)
    wait_lds(PRG + 4, 1, 8)
    a("L_ffn_b:")
    stamp(4)
    a("s_mov_b64 exec, s[50:51]")
    L = loop("h2")
    for k in range(8): a(f"buffer_load_dwordx4 v[{64+4*k}:{67+4*k}], v2, {sWS}, s{80+(k>>1)} offen offset:{2560*(k&1)} sc1")
    for k in range(8):
        a(f"s_waitcnt vmcnt({7-k})"); untag(64 + 4 * k, 4); add4(108, 108 if k else 40, 64 + 4 * k)
        if k & 1: tag_acc(8, 60 + 4 * k, 64 + 4 * k, k == 1)
    tag_test(8)
    a("v_cvt_pk_bf16_f32 v10, v108, v109\nv_cvt_pk_bf16_f32 v11, v110, v111")
    retry(L, gentle=16)
    a("s_mov_b64 exec, -1")
    stamp(5)
    def gu_b(i, rs=range(4)):
        for r in rs: a(f"v_mov_b32_dpp v{HF+4*i+r}, v{10+(r&1)} row_newbcast:{2*i+(r>>1)} row_mask:0xf bank_mask:0x5")
    gu_b(0); gu_b(1, (0, 1))
    fill = [F(gu_b, 1, (2, 3))] + [F(gu_b, i, rs) for i in (2, 3, 4) for rs in ((0, 1), (2, 3))]
    fill += [F(a, "ds_write_b128 v5, v[108:111]")] + [F(a, f"v_mov_b64 v[{64+8*k}:{65+8*k}], 0\nv_mov_b64 v[{68+8*k}:{69+8*k}], 0") for k in range(4)]
    for i in range(5):
        for q in range(3):
            if q == 0: mfma(104, HF + 4 * i, HF + 4 * i, i == 0)
            else: smf(92 + 4 * q, HF + 4 * i, GU + (i * 2 + q - 1) * 8)
            if fill: fill.pop(0)()
    a("s_mov_b64 exec, s[88:89]\nds_write_b32 v50, v104\nds_write_b64 v52, v[96:97]\nds_write_b64 v52, v[100:101] offset:8\ns_mov_b64 exec, -1")
    stamp(6)
    L = loop("gr")
    a("ds_read_b128 v[104:107], v51\nds_read_b128 v[108:111], v51 offset:16")
    a("ds_read2_b64 v[96:99], v53 offset0:0 offset1:32\nds_read2_b64 v[100:103], v53 offset0:64 offset1:96")
    a(f"s_waitcnt lgkmcnt({0 if diag and not few else 2})"); add4(104, 104, 108); pk("add", 104, 104, 106)
    a("v_mul_f32 v104, s92, v104\nv_mul_f32 v105, s92, v105\nv_fma_f32 v105, -v104, v104, v105\nv_max_f32 v106, 0, v105\nv_add_f32 v106, s93, v106\nv_rsq_f32 v106, v106")
    a("s_waitcnt lgkmcnt(0)"); add4(96, 96, 100); pk("add", 96, 96, 98)
    a("v_add_f32 v105, v105, v96\nv_cmp_u_f32 vcc, v105, v97\ns_cmp_eq_u32 s98, 0")
    retry(L, post="s_cmp_eq_u32 s98, 0\n")
    a("s_cbranch_scc1 L_cs\nL_csd:")
    cold.append("L_cs:\nv_add_u32 v8, 2048, v53\nds_read2_b64 v[100:103], v8 offset0:0 offset1:32\nds_read2_b64 v[108:111], v8 offset0:64 offset1:96\ns_waitcnt lgkmcnt(0)\n"
                "v_pk_add_f32 v[100:101], v[100:101], v[102:103]\nv_pk_add_f32 v[108:109], v[108:109], v[110:111]\nv_pk_add_f32 v[62:63], v[100:101], v[108:109]\ns_branch L_csd")
    a("v_pk_fma_f32 v[96:97], v[62:63], v[104:105], v[96:97] op_sel_hi:[1,0,1] neg_lo:[0,1,0] neg_hi:[0,1,0]")
    a("v_pk_mul_f32 v[96:97], v[96:97], v[106:107] op_sel_hi:[1,0]")
    a("v_mul_f32 v98, v96, v96\nv_fma_f32 v98, v98, s96, v59\nv_mul_f32 v98, v98, v96\nv_exp_f32 v98, v98\nv_mul_f32 v96, v96, v97")
    a("v_add_f32 v98, 1.0, v98\nv_rcp_f32 v98, v98\nds_read_b32 v48, v58\nv_mul_f32 v96, v96, v98\ns_cmp_eq_u32 s98, 0")
    a(f"v_mov_b32_dpp v97, v96 quad_perm:[1,1,3,3] {DPPM}\nv_cvt_pk_bf16_f32 v96, v96, v97")
    def dn_a(bank): return "\n".join(f"v_mov_b32_dpp v{AF+r}, v96 row_newbcast:{2*r} row_mask:0xf bank_mask:{bank}" for r in range(4))
    a("s_cbranch_scc1 L_keep\nL_kept:\ns_cmp_lg_u32 s76, 0")
    cold.append("L_keep:\n" + dn_a("0xa") + "\ns_branch L_kept")
    a(dn_a("0x5"))
    for t in range(4): smf(64 + 4 * t, AF, DN + 8 * t)
    a("s_cbranch_scc1 L_dn3")
    for t in range(4, 8): smf(64 + 4 * t, AF, DN + 8 * t)
    a("L_dn3:\ns_mov_b32 exec_hi, 0")
    for blk in range(2):
        if blk: a("s_cbranch_scc1 L_dn4")
        for t in range(4): a(f"v_cvt_pk_bf16_f32 v{96+4*blk+t}, v{64+16*blk+4*t}, v{65+16*blk+4*t}")
        a(f"buffer_store_dwordx4 v[{96+4*blk}:{99+4*blk}], v54, {sWS}, s95 offen offset:{1024*blk} sc0 sc1")
    a("L_dn4:\ns_mov_b64 exec, -1")
    stamp(7)
    a("s_cmp_lg_u32 s87, 3\ns_cbranch_scc1 L_ffn_next")
    if pre3: a(f"s_sleep {pre3}")
    L = loop("h3")
    for k in range(4): a(f"buffer_load_dwordx4 v[{64+4*k}:{67+4*k}], {'v56' if k == 3 else 'v55'}, {sWS}, s{32+k} offen sc1")
    for k in range(4):
        a(f"s_waitcnt vmcnt({3-k})" + (" lgkmcnt(0)" if k == 0 else "")); mfma(80, 64 + 4 * k, 12, k == 0)
    a("v_permlane32_swap_b32 v80, v81\nv_permlane32_swap_b32 v82, v83\nv_add_f32 v80, v80, v81\nv_add_f32 v82, v82, v83\nv_cmp_u_f32 vcc, v80, v82")
    a("v_permlane16_swap_b32 v80, v82\nv_add_f32 v80, v80, v48\nv_add_f32 v80, v80, v82")
    retry(L)
    stamp(8)
    a(f"v_cvt_pk_bf16_f32 v80, v80, v80\ns_mov_b64 exec, s[4:5]\nbuffer_store_short v80, v57, {sOUT}, s97 offen\ns_mov_b64 exec, -1")
    stamp(9)
    a("s_cmp_lg_u32 s85, 0\ns_cbranch_scc1 L_ffn_next")
    a(f"v_mov_b32 v8, s77\ns_mov_b64 exec, 1\nbuffer_store_dword v8, v61, {sWS}, s97 offen\ns_mov_b64 exec, -1")
    a("L_ffn_next:\ns_cmp_lg_u32 s98, 0\ns_cbranch_scc1 L_ffn_end")
    for k in range(4): a(f"s_add_u32 s{80+k}, s{80+k}, 20480\ns_mov_b32 s{32+k}, {DP + 40960*k}")
    a(f"s_mul_i32 s95, s85, 2560\ns_add_u32 s95, s95, {DP}\ns_mov_b32 s97, 0\ns_mov_b32 s98, 1\ns_mov_b32 s88, 0xffff")
    a("v_add_u32 v5, 2560, v5\nv_add_u32 v50, 128, v50\nv_add_u32 v51, 128, v51\nv_add_u32 v52, 1024, v52\nv_add_u32 v53, 1024, v53")
    unpack(40, 41, 44); unpack(42, 43, 45)
    for r in (96, 98, 100, 102): zero2(r)
    if oflag: wait_lds(PRG + 8, 1, 1)
    else: wait_lds(CNT + 4, 3, 2)
    if late:
        a("s_waitcnt vmcnt(0)" + ("" if oflag else "\ns_sleep 2")); dn_block(0, range(4 - late, 4), True); stamp(3)
    if bell:
        wait_lds(HEARD, 1, 0)
        if pre2: a(f"s_sleep {pre2}")
    a("s_branch L_ffn_b\nL_ffn_end:")
    dump_stamps()
    a("L_exit:\ns_endpgm")
    flush_cold()
    a("L_code_end:")

    hdr = open("cdna_kernels/" + NAME + ".s.ref").read().split("; Override launch")[0]
    out = [hdr.rstrip(), f"; @launch grid=(256,1,1) block=(512,1,1) lds={LDSZ}", '.amdgcn_target "amdgcn-amd-amdhsa--gfx950"']
    out += a.finish()
    out.append(f""".section .rodata,"a"
.p2align 6
.amdhsa_kernel {kname}
  .amdhsa_next_free_vgpr 256
  .amdhsa_next_free_sgpr 102
  .amdhsa_accum_offset 256
  .amdhsa_group_segment_fixed_size 0
  .amdhsa_kernarg_size 96
  .amdhsa_user_sgpr_count 2
  .amdhsa_user_sgpr_kernarg_segment_ptr 1
  .amdhsa_system_sgpr_workgroup_id_x 1
  .amdhsa_float_denorm_mode_32 3
.end_amdhsa_kernel""")
    return "\n".join(out) + "\n"

if __name__ == "__main__":
    kw = eval("dict(" + (sys.argv[2] if len(sys.argv) > 2 else "") + ")")
    open(sys.argv[1], "w").write(gen(**kw))
```

```python
import sys, struct
from asmlib import Asm

NAME = "sequential_preLN__mha_block_cached__geglu_ffn__decode"
def f2u(x): return struct.unpack("<I", struct.pack("<f", x))[0]
def hx(x): return "0x%08x" % (x & 0xffffffff)

REF, BELL, QP, OP, YP, DP, ML, DIAG, QPB, WSZ = 0x1000, 0x170000, 0x10000, 0x90000, 0x140000, 0xE0000, 0x130000, 0x1a0000, 0x200000, 0x280000
RS = 4352
OOB = 0x7ff00000
HEARD, PF = 4632, 0x180000
QRED, QF, CNT, MCNT, NEAR, PRG, MRED, STAT, RED, ORED, HTAB, DUMP, LDSZ = 0, 4096, 4608, 4616, 4624, 4640, 4672, 4864, 5120, 8192, 12288, 22016, 24576
sK, sV, sWS, sX, sWQ, sWO, sWG, sWU, sWD, sOUT = [f"s[{n}:{n+3}]" for n in range(32, 72, 4)]
DPPM = "row_mask:0xf bank_mask:0xf"
LOG2E = f2u(1.4426950408889634)
MFMA = "v_mfma_f32_16x16x32_bf16"

def gen(depth=5, ctl=(8, 6, 5), E=24, dl=11, dw=12, nref=8, gb=20, gs=24, bias=0, ph0=17, ex=16, fin=(14, 16, 10, 16), mids=(11,), fmids=(6,),
        P=39, budget=56, ml0=124, ml1=194, gates=(222, 250), qpre=24, qsleep=2, qB=6, wo_w=2, gu_w=4, dn_w=2, late=4, ffb=35, ffb_from=230,
        pre2=0, pre3=13, ring=1, nc=2, cs=12288, fast=True, setup_at=20, SPIN=0x100000, diag=False, early=False, few=False):
    a = Asm()
    cold = []
    kname = NAME + "_kernel"
    def stamp(k):
        if few and k not in (0, 2, 9): return
        if diag and k == 0: a("s_mov_b32 s8, s100")
        elif diag: a(f"s_memrealtime s[{8+2*k}:{9+2*k}]")
    def dump_stamps():
        if not diag: return
        a("s_waitcnt lgkmcnt(0)\ns_mov_b64 exec, 1\ns_lshl_b32 s90, s6, 3\ns_add_u32 s90, s90, s3\ns_lshl_b32 s90, s90, 6")
        a(f"s_add_u32 s90, s90, {DIAG}\nv_mov_b32 v5, 0")
        for k in range(11): a(f"v_mov_b32 v{112+k}, s{8+2*k}")
        a("v_mov_b32 v123, s78")
        for q in range(3): a(f"buffer_store_dwordx4 v[{112+4*q}:{115+4*q}], v5, {sWS}, s90 offen offset:{16*q}")
    def srd_tail(n, size): a(f"s_mov_b32 s{n+2}, {hx(size)}\ns_mov_b32 s{n+3}, 0x20000")
    def bfr(d, s): a(f"v_cvt_pk_bf16_f32 v{d}, v{s}, v{s}\nv_and_b32 v{d}, 0xffff0000, v{d}")
    def unpack(d0, d1, s): a(f"v_lshlrev_b32 v{d0}, 16, v{s}\nv_and_b32 v{d1}, 0xffff0000, v{s}")
    def pk(op, d, x, y): a(f"v_pk_{op}_f32 v[{d}:{d+1}], v[{x}:{x+1}], v[{y}:{y+1}]")
    def add4(d, x, y): pk("add", d, x, y); pk("add", d + 2, x + 2, y + 2)
    def mask64(n, v): a(f"s_mov_b32 s{n}, {hx(v)}\ns_mov_b32 s{n+1}, {hx(v >> 32)}")
    def mfma(d, A, B, first): a(f"{MFMA} v[{d}:{d+3}], v[{A}:{A+3}], v[{B}:{B+3}], {'0' if first else f'v[{d}:{d+3}]'}")
    def smf(d, A, B): a(f"v_smfmac_f32_16x16x64_bf16 v[{d}:{d+3}], v[{A}:{A+3}], v[{B}:{B+7}], v60")
    def zero2(r): a(f"v_mov_b64 v[{r}:{r+1}], 0")
    def loop(base):
        L = a.lab(base); a(L + ":"); return L
    def retry(L, sleep=0, gentle=0, pre='', post=''):
        a(f"s_cbranch_vccnz {L}_r\n{L}_d:")
        t = f"{L}_r:\n" + pre
        if sleep: t += f"s_sleep {sleep}\n"
        if gentle: t += f"s_cmp_lg_u32 s98, 0\ns_cbranch_scc1 {L}_n\ns_sleep {gentle}\n{L}_n:\n"
        cold.append(t + f"s_sub_u32 s79, s79, 1\ns_cbranch_scc0 {L}\ns_mov_b32 s79, 0\n{post}s_branch {L}_d")
    def flush_cold():
        for t in cold: a(t)
        cold.clear()
    def empty_check(regs, t):
        regs = list(regs)
        a(f"v_max3_u32 v{t}, v{regs[0]}, v{regs[1]}, v{regs[2]}"); regs = regs[3:]
        while len(regs) >= 2: a(f"v_max3_u32 v{t}, v{t}, v{regs[0]}, v{regs[1]}"); regs = regs[2:]
        if regs: a(f"v_max_u32 v{t}, v{t}, v{regs[0]}")
        a(f"v_cmp_eq_u32 vcc, -1, v{t}")
    def nan4(x, t): pk("add", t, x, x + 2); a(f"v_cmp_u_f32 vcc, v{t}, v{t+1}")
    def rows_allreduce(op, v, t, both=True):
        a(f"v_mov_b32 v{t}, v{v}\nv_permlane16_swap_b32 v{v}, v{t}\n{op} v{v}, v{v}, v{t}")
        if both: a(f"v_mov_b32 v{t}, v{v}\nv_permlane32_swap_b32 v{v}, v{t}\n{op} v{v}, v{v}, v{t}")
    def half_masks(first, esrc, t0):
        a(f"v_and_b32 v{t0}, 1, v{esrc}\nv_lshlrev_b32 v{t0}, 4, v{t0}\nv_mov_b32 v{t0+1}, 0xffff\nv_lshlrev_b32 v{t0}, v{t0}, v{t0+1}")
        a(f"v_lshrrev_b32 v{t0+1}, 1, v{esrc}")
        for r in range(4): a(f"v_cmp_eq_u32 vcc, {r}, v{t0+1}\nv_cndmask_b32 v{first+r}, 0, v{t0}, vcc")
    def wait_lds(addr, val, sleep):
        L = loop("lds")
        a(f"ds_read_b32 v8, v61 offset:{addr}\ns_waitcnt lgkmcnt(0)\nv_cmp_ne_u32 vcc, {val}, v8")
        retry(L, sleep)
    def tag_field(d, pos):
        a(f"v_and_b32 v{d}, 3, v{pos}\nv_mul_u32_u24 v{d}, 7, v{d}\nv_lshrrev_b32 v{d}, v{d}, s77\nv_and_b32 v{d}, 0xffe, v{d}\nv_and_or_b32 v{d}, s77, 1, v{d}")
    def untag(x, f): a(f"v_xor_b32 v{x}, v{x}, v{f}")
    def tag_acc(acc, x, y, first): a(f"v_or_b32 v{acc}, v{x}, v{y}" if first else f"v_or3_b32 v{acc}, v{acc}, v{x}, v{y}")
    def tag_test(acc): a(f"v_and_b32 v{acc}, 0xfff, v{acc}\nv_cmp_ne_u32 vcc, 0, v{acc}")
    def next_tag(): a("s_mul_i32 s77, s77, 1664525\ns_add_u32 s77, s77, 1013904223")

    a(f".text\n.globl {kname}\n.p2align 8\n.type {kname},@function\n{kname}:")
    a("s_cmp_ge_u32 s2, 256\ns_cbranch_scc1 L_exit")
    if diag: a("s_memrealtime s[100:101]")
    a("s_load_dwordx8 s[8:15], s[0:1], 0")
    a("s_getpc_b64 s[4:5]\nL_pc:")
    a("s_lshr_b32 s3, s2, 4\nv_lshrrev_b32 v4, 4, v0\nv_lshlrev_b32 v4, 4, v4\nv_add_lshl_u32 v4, v4, s3, 7")
    a("v_min_u32 v4, L_code_end-L_pc-4, v4\nglobal_load_dword v4, v4, s[4:5]")
    a("v_lshrrev_b32 v5, 6, v0\nv_and_b32 v1, 63, v0\nv_readfirstlane_b32 s3, v5")
    a("s_and_b32 s72, s2, 7\ns_lshr_b32 s73, s2, 3\ns_lshl_b32 s6, s72, 5\ns_add_u32 s6, s6, s73")
    a("s_lshr_b32 s74, s6, 3\ns_and_b32 s75, s6, 7\ns_and_b32 s76, s3, 3")
    a("v_and_b32 v6, 15, v1\nv_lshrrev_b32 v7, 4, v1")
    srd_tail(40, WSZ)
    a(f"s_mov_b32 s79, {SPIN}\ns_cmp_lt_u32 s3, 4\ns_cbranch_scc1 L_aux0")
    def aux_start():
        a('; helper waves: mark LDS empty, start the q inputs')
        a("L_aux0:\nv_lshlrev_b32 v96, 4, v0\nv_mov_b32 v112, -1\nv_mov_b32 v113, -1\nv_mov_b32 v114, -1\nv_mov_b32 v115, -1")
        a("ds_write_b128 v96, v[112:115]\nds_write_b128 v96, v[112:115] offset:4096")
        a("v_and_b32 v8, 31, v1\nv_lshlrev_b32 v8, 3, v8\nv_lshrrev_b32 v9, 5, v1\nv_mul_u32_u24 v9, 1280, v9\nv_add_u32 v2, v8, v9")
        a("s_mul_i32 s7, s75, 80\ns_mul_i32 s80, s76, 20\ns_add_u32 s7, s7, s80\nv_add_u32 v8, s7, v7")
        a("v_bfe_u32 v9, v1, 3, 1\nv_mul_u32_u24 v9, 1280, v9\nv_lshl_add_u32 v3, v8, 1, v9")
        a("s_lshl_b32 s7, s74, 8\nv_lshlrev_b32 v8, 13, v8\nv_lshl_add_u32 v9, v6, 4, s7\nv_add_u32 v5, v8, v9")
        srd_tail(44, 2560); srd_tail(48, 640 * 4096 * 2)
        a("s_mov_b32 s7, 0\ns_waitcnt lgkmcnt(0)\ns_mov_b64 s[44:45], s[8:9]\ns_mov_b64 s[48:49], s[14:15]")
        for i in range(5): a(f"buffer_load_dwordx2 v[{8+2*i}:{9+2*i}], v2, {sX}, 0 offen offset:{256*i}")
        for i in range(5): a(f"buffer_load_ushort v{18+i}, v3, {sX}, 0 offen offset:{8*i}")
        for i in range(5): a(f"buffer_load_dwordx4 v[{24+4*i}:{27+4*i}], v5, {sWQ}, s7 offen nt" + ("\ns_add_u32 s7, s7, 0x8000" if i < 4 else ""))
        a("s_load_dwordx8 s[16:23], s[0:1], 32\ns_load_dwordx8 s[24:31], s[0:1], 64\ns_barrier\ns_branch L_aux")

    a("s_setprio 2")
    a("v_bfe_u32 v8, v1, 2, 2\nv_lshlrev_b32 v8, 8, v8\nv_lshl_or_b32 v8, v7, 6, v8\nv_and_b32 v9, 3, v1\nv_lshl_or_b32 v2, v9, 4, v8")
    a('; a split walks its own 256 KB in 64 steps of 4 KB; splits 0 and 4 leave out every step m with (m & 3) == ((m >> 2) & 3)')
    a('; and all eight splits share those 32 holes, four each')
    a("s_and_b32 s80, s75, 3\ns_cselect_b32 s71, 0, 0x80000000\ns_lshl_b32 s70, s75, 18")
    a("s_lshl_b32 s7, s74, 21\ns_lshl_b32 s80, s76, 10\ns_add_u32 s7, s7, s80\nv_add_u32 v2, s7, v2\nv_lshl_add_u32 v3, v1, 4, s7")
    srd_tail(32, 1 << 27); srd_tail(36, 1 << 27)
    a("s_waitcnt lgkmcnt(0)\ns_mov_b64 s[32:33], s[10:11]\ns_mov_b64 s[36:37], s[12:13]")
    RING, NB, PH, NG = 100, 39, 68, 17
    BK, DK, ACC, BV, MLB, MLS, RMAX, S, NINF = 16, 32, 40, 44, 52, 56, 60, [64, 81], 98
    vm, landed, ld_idx, items, got = ["code"], [-1], {}, [], set()
    def wait_vm(idx):
        if idx > landed[0]:
            a(f"s_waitcnt vmcnt({len(vm) - 1 - idx})"); landed[0] = idx
    def kind(n):
        k, r = divmod(n, 17)
        if r == 16: return ("hole", k)
        m = 16 * k + r
        return ("opt" if (m & 3) == ((m >> 2) & 3) else "own", m)
    def address(i):
        ph, n = divmod(i, PH); b = ph & 1
        kd, m = kind(n)
        if kd == "hole": a(f"s_add_u32 s73, s72, {hx((b << 26) + m * 65536)}"); return "s73"
        a(f"s_add_u32 s7, s70, {hx(b << 26)}" if m == 0 else "s_addk_i32 s7, 0x1000")
        if kd == "own": return "s7"
        a("s_or_b32 s73, s7, s71"); return "s73"
    def issue(i, so):
        isv = i >= 2 * PH; r = RING + (i % NB) * 4
        a(f"buffer_load_dwordx4 v[{r}:{r+3}], {'v3' if isv else 'v2'}, {sV if isv else sK}, {so} offen nt")
        ld_idx[i] = len(vm); vm.append(i)
    def add(cost, needs, fn): items.append((cost, needs, fn))
    def setup1():
        a("s_getreg_b32 s78, hwreg(HW_REG_XCC_ID, 0, 4)")
        a("s_and_b32 s72, s75, 4\ns_lshl_b32 s72, s72, 18\ns_and_b32 s80, s75, 3\ns_mul_i32 s80, s80, 20480\ns_add_u32 s72, s72, s80")
        half_masks(10, 6, 8)
        a("v_and_b32 v9, 3, v1\nv_lshlrev_b32 v9, 4, v9\nv_lshl_or_b32 v14, v7, 6, v9")
        a("v_and_b32 v15, 31, v1\nv_lshlrev_b32 v15, 4, v15")
        a("v_lshl_add_u32 v9, v7, 3, v6\nv_lshlrev_b32 v9, 4, v9\ns_lshl_b32 s80, s76, 9\nv_add_u32 v62, s80, v9")
        a("s_lshl_b32 s80, s6, 9\nv_add_u32 v63, s80, v15")
        a(f"v_mov_b32 v61, 0\nv_mov_b32 v5, 1\nv_mov_b32 v{NINF}, 0xff800000")
    def setup2():
        a("s_waitcnt lgkmcnt(0)\ns_load_dword s77, s[40:41], 0")
        a(f"s_lshr_b32 s90, s6, 5\ns_lshl_b32 s90, s90, 12\ns_add_u32 s90, s90, {ML}\ns_lshl_b32 s91, s6, 7\ns_add_u32 s91, s91, {ML}")
        a("v_bfe_u32 v9, v1, 2, 3\nv_lshlrev_b32 v9, 7, v9\nv_and_b32 v4, 3, v1\nv_lshl_or_b32 v0, v4, 4, v9\ns_and_b32 s80, s74, 3\ns_lshl_b32 s80, s80, 10\nv_add_u32 v0, s80, v0")
        a("v_and_b32 v8, 31, v1\nv_min_u32 v8, 11, v8\nv_and_b32 v9, 3, v8\nv_lshrrev_b32 v8, 2, v8\nv_lshl_add_u32 v8, v9, 3, v8\nv_lshlrev_b32 v8, 7, v8\nv_add_u32 v8, 192, v8")
        a("v_cmp_gt_u32 vcc, 32, v1\nv_cndmask_b32 v99, v8, v0, vcc\nv_lshlrev_b32 v4, 3, v4")
        a("s_lshl_b32 s99, s76, 3\ns_ashr_i32 s98, s71, 31")
        if ctl:
            a(f"s_sub_u32 s65, s2, {256 - nref}\ns_cselect_b32 s64, 0, 1\ns_cmp_eq_u32 s76, 0\ns_cselect_b32 s64, s64, 0\ns_mul_i32 s65, s65, {RS}\ns_add_u32 s65, s65, {REF}")
            a(f"s_add_u32 s66, s40, {REF}\ns_addc_u32 s67, s41, 0\ns_mov_b32 s62, 0\ns_mov_b32 s63, 0")
        for t in range(4): mask64(80 + 2 * t, 0x000F000F000F000F << (4 * t))
        mask64(88, 0x00FF00FF00FF00FF)
        a(f"s_mov_b32 s92, {hx(f2u(128 ** -0.5))}\ns_mov_b32 s93, {hx(LOG2E)}")
    def setup3():
        a("s_waitcnt lgkmcnt(0)"); next_tag(); tag_field(1, 1)
    def it_qfrag(b):
        a('; q of this batch as four matrix operands, one per load of a group of four')
        L = loop("q")
        a(f"ds_read_b128 v[{BV}:{BV+3}], v14 offset:{QF + b * 256}\ns_waitcnt lgkmcnt(0)")
        empty_check(range(BV, BV + 4), BV + 4); retry(L, 1)
        if b == 0:
            stamp(1); a(f"ds_read_b32 v8, v61 offset:{NEAR}\ns_waitcnt lgkmcnt(0)\nv_readfirstlane_b32 s31, v8")
        for t in range(4):
            for r in range(4): a(f"v_cndmask_b32 v{BK + 4*t + r}, 0, v{BV + r}, s[{80+2*t}:{81+2*t}]")
    def it_k(i):
        n = i % PH
        mfma(DK + ((n >> 2) & 1) * 4, RING + (i % NB) * 4, BK + 4 * (n & 3), n & 3 == 0)
    def it_kred(b, u):
        d = DK + (u & 1) * 4; s = S[b] + u
        a(f"v_mov_b32_dpp v{s}, v{d} quad_perm:[0,0,0,0] {DPPM}")
        for r in range(1, 4): a(f"v_add_f32_dpp v{s}, v{d+r}, v{s} quad_perm:[{r},{r},{r},{r}] {DPPM}")
        bfr(s, s); a(f"v_mul_f32 v{s}, s92, v{s}"); bfr(s, s)
        om = sum(0x000F000F << (4 * t) for t in range(4) if kind(4 * u + t)[0] == "opt")
        if om: a(f"s_and_b32 s0, s98, {hx(om)}\ns_mov_b32 s1, s0\nv_cndmask_b32 v{s}, v{s}, v{NINF}, s[0:1]")
        a(f"v_mov_b32 v{RMAX}, v{s}" if u == 0 else f"v_max_f32 v{RMAX}, v{RMAX}, v{s}")
    def it_max(b):
        a("; softmax statistics of this wave's keys: max, then sum of exp")
        a(f"v_max_f32_dpp v{RMAX}, v{RMAX}, v{RMAX} row_ror:8 {DPPM}\nv_max_f32_dpp v{RMAX}, v{RMAX}, v{RMAX} row_ror:4 {DPPM}")
        rows_allreduce("v_max_f32", RMAX, BV)
        a(f"v_mov_b32 v{MLS}, v{RMAX}\nv_mov_b32 v{MLS+1}, 0")
    def it_sum(b, u0):
        n = min(4, NG - u0)
        for u in range(n): a(f"v_sub_f32 v{BV+u}, v{S[b]+u0+u}, v{MLS}")
        for u in range(n): a(f"v_mul_f32 v{BV+u}, s93, v{BV+u}")
        for u in range(n): a(f"v_exp_f32 v{BV+u}, v{BV+u}")
        for u in range(n): a(f"v_add_f32 v{MLS+1}, v{MLS+1}, v{BV+u}")
    def it_mlpub(b):
        a('; the last wave to arrive publishes the four (max, sum) pairs of the workgroup')
        l, Ls = MLS + 1, a.lab("mlast")
        a(f"v_add_f32_dpp v{l}, v{l}, v{l} row_ror:8 {DPPM}\nv_add_f32_dpp v{l}, v{l}, v{l} row_ror:4 {DPPM}")
        rows_allreduce("v_add_f32", l, BV)
        a(f"v_mov_b32 v8, s99\ns_mov_b64 exec, 1\nds_write_b64 v8, v[{MLS}:{MLS+1}] offset:{MRED + 32*b}")
        a(f"ds_add_rtn_u32 v8, v61, v5 offset:{MCNT + 4*b}\ns_mov_b64 exec, -1")
        a(f"ds_read_b64 v[{BV}:{BV+1}], v4 offset:{MRED + 32*b}\ns_waitcnt lgkmcnt(0)\nv_readfirstlane_b32 s96, v8")
        a(f"s_cmp_lg_u32 s96, 2\ns_cbranch_scc1 {Ls}")
        a(f"v_mov_b32 v8, s78\nv_cndmask_b32 v{MLS}, v8, v{BV}, s[80:81]\nv_mov_b32 v{MLS+1}, s77\nv_mov_b32 v{MLS+2}, v{BV+1}\nv_mov_b32 v{MLS+3}, s77")
        a(f"s_add_u32 s96, s91, {b * 32768}\ns_mov_b64 exec, 0xff\ns_cmp_lg_u32 s31, 0\ns_cbranch_scc1 {Ls}_far")
        a(f"buffer_store_dwordx4 v[{MLS}:{MLS+3}], v15, {sWS}, s96 offen\n{Ls}:\ns_mov_b64 exec, -1")
        cold.append(f"{Ls}_far:\nbuffer_store_dwordx4 v[{MLS}:{MLS+3}], v15, {sWS}, s96 offen sc0 sc1\ns_branch {Ls}")
    def ml_load(b): return f"buffer_load_dwordx4 v[{MLB}:{MLB+3}], {'v0' if b else 'v99'}, {sWS}, s94 offen sc1"
    def ml_issue(b):
        a(f"s_add_u32 s94, s90, {b * 32768}\n" + ml_load(b))
        ld_idx[("ml", b)] = len(vm); vm.append("ml")
    def it_mlget(b):
        a('; max and sum over the whole head; p = bf16(exp(s - max) / sum)')
        L = loop("ml")
        a(f"v_cmp_ne_u32 vcc, s77, v{MLB+1}\nv_cmp_ne_u32 s[96:97], s77, v{MLB+3}\ns_or_b64 vcc, vcc, s[96:97]")
        if b == 0: a("s_mov_b32 s30, vcc_hi\ns_mov_b32 vcc_hi, 0")
        a(f"s_cmp_lg_u32 vcc_lo, 0\ns_cbranch_scc1 {L}_r\n{L}_d:")
        cold.append(f"{L}_r:\ns_sleep 4\n{ml_load(b)}\ns_waitcnt vmcnt(0)\ns_sub_u32 s79, s79, 1\ns_cbranch_scc0 {L}\ns_mov_b32 s79, 0\ns_branch {L}_d")
        got.add(b)
        if b == 0: a(f"v_cmp_ne_u32 vcc, s78, v{MLB}\ns_or_b32 s30, s30, {'vcc_hi' if fast else '1'}")
        M, Ls = MLB + 1, MLB + 2
        a(f"v_max_f32_dpp v{M}, v{MLB}, v{MLB} row_ror:8 {DPPM}")
        for k in (4, 2, 1): a(f"v_max_f32_dpp v{M}, v{M}, v{M} row_ror:{k} {DPPM}")
        rows_allreduce("v_max_f32", M, 8, both=False)
        a(f"v_sub_f32 v8, v{MLB}, v{M}\nv_mul_f32 v8, s93, v8\nv_exp_f32 v8, v8\nv_mul_f32 v{Ls}, v{Ls}, v8")
        for k in (8, 4, 2, 1): a(f"v_add_f32_dpp v{Ls}, v{Ls}, v{Ls} row_ror:{k} {DPPM}")
        rows_allreduce("v_add_f32", Ls, 8, both=False)
        a(f"v_rcp_f32 v{Ls}, v{Ls}\nv_readfirstlane_b32 s4, v{M}\nv_readfirstlane_b32 s5, v{Ls}")
    def it_p(b, u0):
        R = [S[b] + u for u in range(u0, min(u0 + 4, NG))]
        for s in R: a(f"v_subrev_f32 v{s}, s4, v{s}")
        for s in R: a(f"v_mul_f32 v{s}, s93, v{s}")
        for s in R: a(f"v_exp_f32 v{s}, v{s}")
        for s in R: a(f"v_mul_f32 v{s}, s5, v{s}")
        for s in R: a(f"v_cvt_pk_bf16_f32 v{s}, v{s}, v{s}")
    def it_vb(i):
        b, n = divmod(i - 2 * PH, PH)
        for r in range(4): a(f"v_and_b32_dpp v{BV + (i & 1)*4 + r}, v{S[b] + (n >> 2)}, v{10+r} row_newbcast:{4*(n & 3)} {DPPM}")
    def it_v(i): mfma(ACC, RING + (i % NB) * 4, BV + (i & 1) * 4, i % PH == 0)
    def it_opub(b):
        a('; the last wave to arrive sums the four partial o and publishes them')
        Ls = a.lab("olast")
        if b == 1: stamp(2)
        a(f"s_mov_b32 s95, {OP + b * 0x20000}\ns_movk_i32 s97, 0xfff\ns_mov_b64 exec, s[88:89]")
        a(f"ds_write_b128 v62, v[{ACC}:{ACC+3}] offset:{ORED + b * 2048}")
        a(f"s_mov_b64 exec, 1\nds_add_rtn_u32 v8, v61, v5 offset:{CNT + 4*b}\ns_mov_b32 exec_lo, -1")
        for w in range(4): a(f"ds_read_b128 v[{16+4*w}:{19+4*w}], v15 offset:{ORED + b * 2048 + w * 512}")
        a("s_waitcnt lgkmcnt(0)\nv_readfirstlane_b32 s96, v8")
        add4(16, 16, 20); add4(24, 24, 28)
        a(f"s_cmp_lg_u32 s96, 2\ns_cbranch_scc1 {Ls}\ns_cmp_lg_u32 s30, 0")
        add4(16, 16, 24); a("v_bfi_b32 v16, s97, v1, v16")
        a(f"s_cbranch_scc1 {Ls}_far\nbuffer_store_dwordx4 v[16:19], v63, {sWS}, s95 offen\n{Ls}_st:")
        cold.append(f"{Ls}_far:\nbuffer_store_dwordx4 v[16:19], v63, {sWS}, s95 offen sc0 sc1\ns_branch {Ls}_st")
        if b == 1:
            a(f"ds_write_b32 v61, v5 offset:{PRG + 8}")
            stamp(3)
        a(f"{Ls}:\ns_mov_b64 exec, -1")
    F = lambda fn, *x: (lambda: fn(*x))
    for b in range(2):
        add(30, None, F(it_qfrag, b))
        for n in range(PH):
            add(4, PH * b + n, F(it_k, PH * b + n))
            if n & 3 == 0 and n: add(12, None, F(it_kred, b, (n >> 2) - 1))
            if b == 1 and PH + n == ml0:
                add(40, ("ml", 0), F(it_mlget, 0))
                for u0 in range(0, NG, 4): add(24, None, F(it_p, 0, u0))
        add(16, None, F(it_kred, b, NG - 1)); add(20, None, F(it_max, b))
        for u0 in range(0, NG, 4): add(20, None, F(it_sum, b, u0))
        add(40, None, F(it_mlpub, b))
    for b in range(2):
        for n in range(PH):
            i = (2 + b) * PH + n
            add(4, None, F(it_vb, i)); add(4, i, F(it_v, i))
            if b == 0 and i == ml1:
                add(40, ("ml", 1), F(it_mlget, 1))
                for u0 in range(0, NG, 4): add(24, None, F(it_p, 1, u0))
        add(40, None, F(it_opub, b))
    consumed = [-1]
    def run_items(bud, force=False):
        while items:
            cost, needs, fn = items[0]
            if needs is not None:
                if needs not in ld_idx: return
                if ld_idx[needs] > landed[0]:
                    if not force: return
                    wait_vm(ld_idx[needs])
            if bud <= 0 and not force: return
            items.pop(0); fn(); bud -= cost
            if isinstance(needs, int): consumed[0] = needs
    def act(i, lastc):
        if bias: a(f"s_add_i32 s68, s68, {bias * nref}")
        if ffb and i >= ffb_from: a(f"s_and_b32 s69, s98, {ffb * nref}\ns_add_i32 s68, s68, s69")
        if fin and lastc:
            a(f"s_add_i32 s69, s68, {fin[2] * nref}\ns_max_i32 s69, s69, 0\ns_min_u32 s69, s69, 0x1000\ns_mul_i32 s69, s69, {int(fin[1]*655.36/nref)}\ns_lshr_b32 s69, s69, 16\ns_sub_u32 s62, {4*PH}, s69")
        else:
            a(f"s_max_i32 s69, s68, 0\ns_min_u32 s69, s69, 0x4000\ns_mul_i32 s69, s69, {int(gb*655.36/nref)}\ns_lshr_b32 s69, s69, 16\ns_add_u32 s62, s69, {i+1}")
        a(f"s_sub_i32 s69, 0, s68\ns_max_i32 s69, s69, 0\ns_min_u32 s69, s69, 0x4000\ns_mul_i32 s69, s69, {int(gs*655.36/nref)}\ns_lshr_b32 s69, s69, 16\ns_add_u32 s63, s69, {i+1}")
    k0 = 1 if ph0 <= setup_at else 0
    cpts = [c for c in range(ph0 + k0 * E + dl + dw, 4 * PH - 4, E)]
    for i in range(4 * PH):
        while consumed[0] < i - NB:
            n0 = len(items); run_items(1); assert len(items) < n0, "ring stall"
        so = address(i)
        if ctl and i > cpts[0]:
            last = fin and i > cpts[-1]
            wait_vm(ld_idx[i - (fin[0] if last else ctl[0])])
            n = [len(vm) - 1 - ld_idx[i - d] for d in ctl]
            go = a.lab("go")
            a(f"s_cmpk_{'le' if last else 'gt'}_u32 s62, {i}\ns_cbranch_scc1 {go}\ns_waitcnt vmcnt({n[1]})")
            a(f"s_cmpk_le_u32 s63, {i}\ns_cbranch_scc1 {go}\ns_waitcnt vmcnt({n[2]})\n{go}:")
        elif i >= depth: wait_vm(ld_idx[i - depth])
        issue(i, so)
        if i == depth - 1:
            a("s_load_dwordx2 s[40:41], s[0:1], 88\ns_barrier\ns_branch L_stream"); aux_start(); a("L_stream:"); stamp(0); setup1()
        if i == 2 * depth - 1: setup2()
        if i == setup_at: setup3()
        if ctl:
            k, m = divmod(i - ph0, E)
            if ph0 + k * E + dl + dw in cpts:
                lastc = ph0 + k * E + dl + dw == cpts[-1]
                w = 0 if k == k0 else (fin[3] if fin and lastc else ex)
                if m == dl + dw - 1 and w: a("s_memrealtime s[74:75]")
                if m == 0: a("s_memrealtime s[60:61]")
                if m == 1:
                    sk = a.lab("ref")
                    a(f"s_cmp_lg_u32 s64, 0\ns_cbranch_scc1 {sk}_r\n{sk}:")
                    cold.append(f"{sk}_r:\ns_waitcnt lgkmcnt(0)\nv_mov_b32 v6, s60\nv_mov_b32 v7, s77\nv_mov_b32 v8, s60\nv_mov_b32 v9, s77\ns_mov_b64 exec, 0xff\n"
                                f"buffer_store_dwordx4 v[6:9], v15, {sWS}, s65 offen offset:{128*k} sc0 sc1\ns_mov_b64 exec, -1\ns_branch {sk}")
                if m == dl:
                    for q in range(nref): a(f"s_load_dwordx2 s[{44+2*q}:{45+2*q}], s[66:67], {q*RS + 128*k}")
                if m == dl + dw:
                    a("; balance: own progress against the eight reference workgroups sets the number of loads kept in flight")
                    a("s_waitcnt lgkmcnt(0)\ns_mov_b32 s68, 0")
                    for q in range(nref):
                        a(f"s_sub_u32 s69, s60, s{44+2*q}\ns_cmp_eq_u32 s{45+2*q}, s77\ns_cselect_b32 s69, s69, {-14*dl}\ns_add_u32 s68, s68, s69")
                    if ex or fin:
                        a(f"s_mul_i32 s69, s60, {nref}\ns_sub_u32 s69, s69, s68\ns_sub_u32 s76, s69, s2\ns_mov_b32 s2, s69")
                    if w:
                        a(f"s_mul_i32 s96, s76, {round(256 * (dl + dw - 1) / E)}\ns_lshr_b32 s96, s96, 8\ns_sub_u32 s69, s74, s60\ns_mul_i32 s69, s69, {nref}")
                        a(f"s_sub_i32 s69, s69, s96\ns_mul_i32 s69, s69, {w}\ns_ashr_i32 s69, s69, 4\ns_add_i32 s68, s68, s69")
                    act(i, lastc)
            for c in cpts[1:]:
                for d in (fmids if c == cpts[-1] else mids):
                    if i == c + d - 1: a("s_memrealtime s[74:75]")
                    if i == c + d:
                        a(f"s_mul_i32 s96, s76, {round(256 * (dl + dw - 1 + d) / E)}\ns_lshr_b32 s96, s96, 8\ns_add_u32 s96, s96, s2")
                        a(f"s_waitcnt lgkmcnt(0)\ns_mul_i32 s68, s74, {nref}\ns_sub_u32 s68, s68, s96")
                        act(i, c == cpts[-1])
        for gi in [k for k, g in enumerate(gates) if g == i]:
            a(f"s_mov_b64 exec, 1\nds_write_b32 v61, v5 offset:{PRG + 4*gi}\ns_mov_b64 exec, -1")
        if early:
            el = list(early)
            if i in el: stamp(4 + el.index(i))
        elif i in (34, 68, 102, 136, 170, 204, 238): stamp(3 + i // 34)
        if i == ml0: ml_issue(0)
        if i == ml1: ml_issue(1)
        if i >= P - 1: run_items(budget)
    run_items(0, force=True)
    a(f"s_cmp_eq_u32 s71, 0\ns_cbranch_scc1 L_sdone\ns_cmp_ge_u32 s99, {8*nc}\ns_cbranch_scc1 L_sdone")
    a(f"s_lshr_b32 s96, s6, 5\ns_bfe_u32 s97, s6, 0x20003\ns_lshl_b32 s97, s97, 3\ns_add_u32 s97, s97, s96\ns_cmp_ge_u32 s97, 27\ns_cbranch_scc1 L_sdone")
    a(f"s_and_b32 s97, s96, 3\ns_lshl_b32 s97, s97, 10\ns_lshr_b32 s96, s96, 2\ns_mul_i32 s96, s96, {nc*cs}\ns_add_u32 s96, s96, s97")
    a(f"s_bfe_u32 s97, s99, {3 | ((nc.bit_length() - 1) << 16)}\ns_mul_i32 s97, s97, {cs}\ns_add_u32 s96, s96, s97\ns_add_u32 s96, s96, {BELL}")
    a("s_add_u32 s66, s40, s96\ns_addc_u32 s67, s41, 0")
    a("L_sb:")
    for q in range(8): a(f"s_load_dword s{44+2*q}, s[66:67], {128*q} glc")
    a("s_sub_u32 s79, s79, 1\ns_cbranch_scc1 L_sdone\ns_waitcnt lgkmcnt(0)")
    for q in range(8): a(f"s_cmp_lg_u32 s{44+2*q}, s77\ns_cbranch_scc1 L_sb")
    a(f"ds_write_b32 v61, v5 offset:{HEARD}\nL_sdone:")
    dump_stamps()
    a("s_endpgm")
    flush_cold()

    a("L_aux:")
    a("s_getreg_b32 s78, hwreg(HW_REG_XCC_ID, 0, 4)")
    srd_tail(52, 4096 * 640 * 2); srd_tail(56, 640 * 1728 * 2); srd_tail(60, 640 * 1728 * 2); srd_tail(64, 1728 * 640 * 2); srd_tail(68, 2560)
    a("v_and_b32 v68, 7, v1"); half_masks(64, 68, 69)
    mask64(88, 0xFF00FF00FF00FF00)
    a(f"s_mov_b32 s92, {hx(f2u(1/640))}\ns_mov_b32 s93, {hx(f2u(1e-5))}")
    a("s_lshl_b32 s7, s76, 8\nv_lshl_add_u32 v97, v6, 4, s7\nv_lshl_add_u32 v101, v7, 11, v97")
    a(f"s_lshl_b32 s84, s6, 10\ns_add_u32 s84, s84, {QP}\ns_lshl_b32 s85, s74, 13\ns_add_u32 s85, s85, {QP}\nv_add_u32 v102, {QPB - QP}, v101")
    a("v_bfe_u32 v103, v1, 3, 1\nv_lshlrev_b32 v103, 7, v103\nv_and_b32 v70, 22, v1\nv_or_b32 v103, v103, v70\nv_lshrrev_b32 v70, 5, v1\nv_lshl_or_b32 v103, v70, 3, v103")
    a("s_lshl_b32 s7, s76, 5\nv_add_lshl_u32 v103, v103, s7, 1\nv_and_b32 v98, 3, v1\nv_lshlrev_b32 v98, 3, v98")
    a("s_waitcnt lgkmcnt(0)")
    for n, p in ((52, 16), (56, 20), (60, 22), (64, 24), (68, 26), (40, 30)): a(f"s_mov_b64 s[{n}:{n+1}], s[{p}:{p+1}]")
    a("s_load_dword s77, s[40:41], 0")
    stamp(0)
    a("s_lshr_b32 s7, s73, 3\ns_and_b32 s39, s75, 3\ns_cbranch_scc0 L_role2")
    a("s_sub_u32 s39, s75, 1\ns_lshl_b32 s39, s39, 2\ns_add_u32 s39, s39, s7\ns_cmp_lt_u32 s39, 10\ns_cselect_b32 s38, 1, 0\ns_branch L_role")
    a("L_role2:\ns_lshl_b32 s39, s7, 3\ns_add_u32 s39, s39, s72\ns_cmp_lt_u32 s39, 27\ns_cselect_b32 s38, 2, 0\ns_lshl_b32 s39, s39, 1\ns_lshr_b32 s7, s75, 2\ns_add_u32 s39, s39, s7")
    a("L_role:")
    a("s_waitcnt vmcnt(10)")
    for i in range(10): unpack(44 + 2 * i, 45 + 2 * i, 8 + i)
    def red32(v):
        for k in (8, 4, 2, 1): a(f"v_add_f32_dpp v{v}, v{v}, v{v} row_ror:{k} {DPPM}")
        rows_allreduce("v_add_f32", v, 71, both=False)
    pk("add", 8, 44, 46)
    for i in range(2, 10): pk("add", 8, 8, 44 + 2 * i)
    a("v_add_f32 v8, v8, v9"); red32(8)
    a("v_mul_f32 v8, s92, v8")
    for i in range(10): a(f"v_pk_add_f32 v[{44+2*i}:{45+2*i}], v[{44+2*i}:{45+2*i}], v[8:9] op_sel_hi:[1,0] neg_lo:[0,1] neg_hi:[0,1]")
    pk("mul", 10, 44, 44)
    for i in range(1, 10): a(f"v_pk_fma_f32 v[10:11], v[{44+2*i}:{45+2*i}], v[{44+2*i}:{45+2*i}], v[10:11]")
    a("v_add_f32 v10, v10, v11"); red32(10)
    a("v_mul_f32 v10, s92, v10")
    bfr(10, 10); bfr(8, 8); a("v_add_f32 v10, s93, v10"); bfr(10, 10); a("v_sqrt_f32 v10, v10"); bfr(10, 10); a("v_rcp_f32 v10, v10")
    a("v_readlane_b32 s80, v8, 0\nv_readlane_b32 s81, v8, 32\nv_readlane_b32 s82, v10, 0\nv_readlane_b32 s83, v10, 32")
    a("v_mov_b32 v8, s80\nv_mov_b32 v9, s81\nv_mov_b32 v10, s82\nv_mov_b32 v11, s83")
    a("v_cndmask_b32 v8, v8, v9, s[88:89]\nv_cndmask_b32 v10, v10, v11, s[88:89]")
    a("s_waitcnt vmcnt(5)")
    for i in range(5): a(f"v_lshlrev_b32 v{18+i}, 16, v{18+i}\nv_sub_f32 v{18+i}, v{18+i}, v8")
    for i in range(5): bfr(18 + i, 18 + i)
    for i in range(5): a(f"v_mul_f32 v{18+i}, v{18+i}, v10\nv_cvt_pk_bf16_f32 v{18+i}, v{18+i}, v{18+i}")
    for i in range(6):
        if i < 5:
            for r in range(4): a(f"v_and_b32 v{44+4*i+r}, v{18+i}, v{64+r}")
        if i: a(f"s_waitcnt vmcnt({5-i})"); mfma(72, 20 + 4 * i, 40 + 4 * i, i == 1)
    a("v_mov_b32 v61, 0\ns_waitcnt lgkmcnt(0)"); next_tag()
    a("s_add_u32 s83, s77, s78\ns_add_u32 s83, s83, 1")
    a(f"ds_write_b128 v96, v[72:75] offset:{QRED}")
    def qfields(t): return f"v_lshrrev_b32 v99, v98, {t}\n" + "\n".join(f"v_bfe_u32 v{104+k}, v99, {2*k}, 2" for k in range(4))
    qtag = "\n".join(f"v_bfi_b32 v{76+k}, 3, v{104+k}, v{76+k}" for k in range(4))
    a(qfields("s83"))
    L = loop("qred")
    for w in range(4): a(f"ds_read_b128 v[{76+4*w}:{79+4*w}], v97 offset:{QRED + 1024*w}")
    a("s_waitcnt lgkmcnt(0)"); add4(76, 76, 80); add4(84, 84, 88); add4(76, 76, 84); nan4(76, 80); retry(L)
    a(qtag)
    a(f"s_mov_b64 exec, 0xffff\nbuffer_store_dwordx4 v[76:79], v97, {sWS}, s84 offen\ns_mov_b64 exec, -1\ns_add_u32 s84, s84, {QPB - QP}\ns_mov_b32 s87, 0")
    stamp(1)
    if qpre: a(f"s_sleep {qpre}")
    a("v_mov_b32 v15, v101\ns_mov_b32 s7, s83")
    L = loop("qg")
    for k in range(2): a(f"buffer_load_dwordx4 v[{80+4*k}:{83+4*k}], v15, {sWS}, s85 offen offset:{1024*k} sc1")
    a("s_waitcnt vmcnt(0)")
    for k in range(8): untag(80 + k, 104 + (k & 3))
    a("v_or3_b32 v88, v80, v81, v82\nv_or3_b32 v88, v88, v83, v84\nv_or3_b32 v88, v88, v85, v86\nv_or_b32 v88, v88, v87\nv_and_b32 v88, 3, v88\nv_cmp_ne_u32 vcc, 0, v88")
    a(f"s_cbranch_vccnz {L}_r\n{L}_d:")
    cold.append(f"{L}_r:\ns_sleep {qsleep}\ns_add_u32 s87, s87, 1\ns_cmp_lg_u32 s87, {qB}\ns_cbranch_scc1 {L}_s\n{qfields('s77')}\n{qtag}\n"
                f"s_mov_b64 exec, 0xffff\nbuffer_store_dwordx4 v[76:79], v97, {sWS}, s84 offen sc0 sc1\ns_mov_b64 exec, -1\n"
                f"{L}_s:\ns_cmp_gt_u32 s87, {qB}\ns_cselect_b32 s7, s87, 0\ns_bitcmp1_b32 s7, 0\ns_cselect_b64 vcc, -1, 0\ns_cselect_b32 s7, s77, s83\n"
                f"v_cndmask_b32 v15, v101, v102, vcc\n{qfields('s7')}\ns_sub_u32 s79, s79, 1\ns_cbranch_scc0 {L}\ns_mov_b32 s79, 0\ns_branch {L}_d")
    a(f"s_cmp_lg_u32 s7, s83\ns_cselect_b32 s7, 1, 0\nv_mov_b32 v8, s7\nds_write_b32 v61, v8 offset:{NEAR}")
    add4(80, 80, 84)
    a("v_permlane32_swap_b32 v80, v81\nv_permlane32_swap_b32 v82, v83\nv_add_f32 v80, v80, v81\nv_add_f32 v82, v82, v83\nv_permlane16_swap_b32 v80, v82\nv_add_f32 v80, v80, v82")
    a(f"v_mov_b32_dpp v81, v80 quad_perm:[1,1,3,3] {DPPM}\nv_mov_b32_dpp v82, v80 quad_perm:[0,0,2,2] {DPPM}")
    a(f"v_cvt_pk_bf16_f32 v80, v82, v81\nv_min_u32 v80, -2, v80\nds_write_b32 v103, v80 offset:{QF}")
    stamp(2)
    a("s_mov_b32 s84, s38\ns_mov_b32 s85, s39")
    a("s_cmp_lg_u32 s76, 0\ns_cbranch_scc1 L_noclr\nv_lshlrev_b32 v8, 4, v1")
    a(f"s_lshl_b32 s7, s6, 9\ns_add_u32 s7, s7, {OP + 0x20000}\ns_mov_b32 exec_hi, 0\nbuffer_load_dwordx4 v[116:119], v8, {sWS}, s7 offen\ns_mov_b64 exec, -1")
    a(f"s_cmp_lg_u32 s84, 2\ns_cbranch_scc1 L_clr3\ns_mul_i32 s7, s85, 2560\ns_add_u32 s7, s7, {DP}")
    for k in range(3): a(("s_mov_b32 exec_hi, 0\n" if k == 2 else "") + f"buffer_store_dwordx4 v[112:115], v8, {sWS}, s7 offen offset:{1024*k} sc0 sc1")
    for r in range(4): a(f"v_mov_b32 v{120+r}, s77")
    a(f"s_lshl_b32 s7, s85, 7\ns_add_u32 s7, s7, {PF}\ns_mov_b64 exec, 0xff\ns_waitcnt vmcnt(0)\nbuffer_store_dwordx4 v[120:123], v8, {sWS}, s7 offen sc0 sc1\ns_mov_b64 exec, -1")
    a("L_clr3:\ns_waitcnt vmcnt(0)")
    a("L_noclr:")
    a("s_mov_b32 s90, 0x05040100\ns_mov_b32 s91, 0x07060302\ns_mov_b32 s98, 0")
    a("v_and_b32 v8, 1, v1\nv_mul_u32_u24 v8, 0xaaaa, v8\nv_or_b32 v60, 0x4444, v8")
    a("s_cmp_eq_u32 s84, 2\ns_cbranch_scc1 L_ffn\ns_cmp_eq_u32 s84, 1\ns_cbranch_scc1 L_wo")
    a("s_cmp_lg_u32 s73, 27\ns_cbranch_scc1 L_done\ns_cmp_lg_u32 s76, 1\ns_cbranch_scc1 L_done")
    a(f"v_and_b32 v2, 31, v1\nv_lshlrev_b32 v2, 9, v2\ns_lshl_b32 s94, s72, 14\ns_add_u32 s94, s94, {OP + 0x20000}")
    a(f"v_bfe_u32 v3, v1, 3, 2\nv_lshlrev_b32 v3, 10, v3\nv_lshrrev_b32 v9, 5, v1\nv_mul_u32_u24 v9, {nc*cs}, v9\nv_add_u32 v3, v3, v9\nv_and_b32 v9, 7, v1\nv_lshl_add_u32 v3, v9, 4, v3")
    for m in range(nc): a(f"s_lshl_b32 s{80+m}, s72, 7\ns_add_u32 s{80+m}, s{80+m}, {BELL + m*cs}")
    for r in range(4): a(f"v_mov_b32 v{12+r}, s77")
    wait_lds(CNT + 4, 3, 4)
    a("s_mov_b32 exec_hi, 0")
    L = loop("bw")
    a(f"buffer_load_dword v9, v2, {sWS}, s94 offen sc1\ns_waitcnt vmcnt(0)\nv_xor_b32 v9, s77, v9"); tag_test(9); retry(L)
    if ring: a(f"s_sleep {ring}")
    a("s_mov_b64 exec, -1")
    for m in range(nc): a(f"buffer_store_dwordx4 v[12:15], v3, {sWS}, s{80+m} offen sc0 sc1")
    stamp(3)
    a("L_done:")
    dump_stamps()
    a("s_endpgm")
    flush_cold()

    def staged(nbatch, nld, win, load_fn, finish_fn):
        n = nbatch * nld
        for i in range(n + win):
            if i >= win:
                a(f"s_waitcnt vmcnt({min(n, i) - (i - win) - 1})")
                if (i - win + 1) % nld == 0: finish_fn((i - win) // nld, ((i - win) // nld) & 1)
            if i < n: load_fn(i // nld, i % nld, (i // nld) & 1)
    a('; register 2 (G & 1) + (u & 1).')

    a("L_wo:")
    a("s_lshl_b32 s80, s72, 2\ns_add_u32 s80, s80, s76\ns_lshl_b32 s7, s80, 7\nv_lshrrev_b32 v8, 5, v1\nv_lshl_add_u32 v8, v8, 4, s7")
    a("v_bfe_u32 v9, v1, 4, 1\nv_lshl_add_u32 v8, v9, 1, v8\nv_mul_u32_u24 v8, 1280, v8\ns_lshl_b32 s7, s85, 7\nv_lshl_add_u32 v9, v6, 3, s7\nv_add_u32 v2, v8, v9")
    def wo_load(k, n, slot):
        i, u, e = k >> 1, 2 * (k & 1) + (n >> 1), n & 1
        reg = 64 + slot * 8 + n * 2
        a(f"s_mov_b32 s7, {(64*(u >> 1) + (u & 1) + 32*(i >> 1) + 4*(i & 1) + 8*e) * 1280}\nbuffer_load_dwordx2 v[{reg}:{reg+1}], v2, {sWO}, s7 offen nt")
    def wo_finish(k, slot):
        for p in range(2):
            i, u, t = k >> 1, 2 * (k & 1) + p, 64 + slot * 8 + p * 4
            for q in range(4): a(f"v_perm_b32 v{128 + (i*2 + (q >> 1))*8 + 2*u + (q & 1)}, v{t + 2 + (q>>1)}, v{t + (q>>1)}, s{90 + (q&1)}")
    staged(8, 4, wo_w, wo_load, wo_finish)
    stamp(3)
    tag_field(58, 1); a("s_movk_i32 s97, 0xfff")
    a(f"s_lshl_b32 s94, s80, 12\ns_add_u32 s94, s94, {OP}\nv_lshlrev_b32 v59, 4, v6\nv_lshl_or_b32 v2, v7, 10, v59")
    a(f"v_add_u32 v5, {RED}, v59\ns_lshl_b32 s7, s76, 8\nv_add_u32 v3, s7, v5")
    a(f"s_mul_i32 s95, s72, 2560\ns_lshl_b32 s7, s85, 8\ns_add_u32 s95, s95, s7\ns_add_u32 s95, s95, {YP}")
    wait_lds(PRG, 1, 8)
    a("L_wo_b:")
    stamp(4)
    for r in (96, 98, 100, 102): zero2(r)
    L = loop("h1")
    for k, off in enumerate((0, 512, 256, 768)): a(f"buffer_load_dwordx4 v[{64+4*k}:{67+4*k}], v2, {sWS}, s94 offen offset:{off} sc1")
    a("s_waitcnt vmcnt(2)"); untag(64, 58); untag(68, 58); tag_acc(80, 64, 68, True); add4(64, 64, 68)
    a("s_waitcnt vmcnt(1)"); untag(72, 58)
    a("s_waitcnt vmcnt(0)"); untag(76, 58); tag_acc(80, 72, 76, False); tag_test(80); add4(68, 72, 76)
    a("s_mov_b64 exec, -1")
    retry(L, gentle=16, pre="s_wqm_b64 exec, vcc\n", post="s_mov_b64 exec, -1\n")
    stamp(5)
    for r in range(4): a(f"v_permlane32_swap_b32 v{64+r}, v{68+r}")
    add4(64, 64, 68)
    a("v_permlane16_swap_b32 v64, v66\nv_permlane16_swap_b32 v65, v67"); pk("add", 64, 64, 66)
    a("v_cvt_pk_bf16_f32 v72, v64, v65")
    def wo_b(i, rs=range(4)):
        for r in rs: a(f"v_mov_b32_dpp v{80+4*i+r}, v72 row_newbcast:{4*i+r} {DPPM}")
    wo_b(0); wo_b(1, (0, 1))
    fill = [(1, (2, 3)), (2, (0, 1)), (2, (2, 3)), (3, (0, 1)), (3, (2, 3))]
    for i in range(4):
        for qq in range(2):
            smf(96 + 4 * qq, 80 + 4 * i, 128 + (i * 2 + qq) * 8)
            if fill: wo_b(*fill.pop(0))
    a("s_cmp_lg_u32 s76, 0\ns_mov_b64 exec, 0xffff\nds_write_b64 v3, v[96:97]\nds_write_b64 v3, v[100:101] offset:8\ns_cbranch_scc1 L_wo_next")
    L = loop("yr")
    for w in range(4): a(f"ds_read_b128 v[{64+4*w}:{67+4*w}], v5 offset:{256*w}")
    for w in range(1, 4):
        a(f"s_waitcnt lgkmcnt({0 if diag and not few else 3-w})"); add4(64, 64, 64 + 4 * w)
    nan4(64, 68); a("v_bfi_b32 v64, s97, v58, v64"); retry(L)
    a(f"buffer_store_dwordx4 v[64:67], v59, {sWS}, s95 offen sc0 sc1")
    stamp(6)
    a("L_wo_next:\ns_mov_b64 exec, -1\ns_cmp_lg_u32 s98, 0\ns_cbranch_scc1 L_wo_end")
    a("s_add_u32 s94, s94, 0x20000\ns_add_u32 s95, s95, 20480\nv_add_u32 v3, 1024, v3\nv_add_u32 v5, 1024, v5\ns_mov_b32 s98, 1\ns_waitcnt vmcnt(0)")
    wait_lds(CNT + 4, 3, 2)
    a("s_branch L_wo_b\nL_wo_end:")
    dump_stamps()
    a("s_endpgm")
    flush_cold()

    GU, DN, HF, AF = 112, 192, 16, 36
    a("L_ffn:")
    a("s_lshl_b32 s7, s85, 5\nv_lshl_add_u32 v8, v7, 2, s7\nv_mul_u32_u24 v8, 1280, v8\ns_lshl_b32 s7, s76, 8\nv_lshl_add_u32 v9, v6, 4, s7\nv_add_u32 v49, v8, v9")
    def dn_block(blk, us=range(4), burst=False):
        def ld(u, e, slot):
            r = 64 + slot * 8 + 4 * e
            a(f"s_mov_b32 s7, {(16*(u >> 1) + 2*(u & 1) + e) * 1280 + 1024*blk}\nbuffer_load_dwordx4 v[{r}:{r+3}], v49, {sWD}, s7 offen nt")
        def fin(u, slot):
            for t in range(4):
                for par in range(2): a(f"v_perm_b32 v{DN + 32*blk + 8*t + 2*u + par}, v{68 + slot*8 + t}, v{64 + slot*8 + t}, s{90+par}")
        if burst:
            for u in us: ld(u, 0, u); ld(u, 1, u)
            for u in us: a(f"s_waitcnt vmcnt({2*(us[-1] - u)})"); fin(u, u)
        elif us: staged(len(us), 2, dn_w, ld, fin)
    dn_block(0, range(4 - late))
    a("s_cmp_lg_u32 s76, 0\ns_cbranch_scc1 L_dn2")
    dn_block(1)
    a(f"L_dn2:\ns_mul_i32 s7, s76, 160\nv_lshrrev_b32 v10, 5, v1\nv_mul_u32_u24 v8, 40, v10\nv_bfe_u32 v9, v1, 4, 1\nv_lshl_add_u32 v8, v9, 2, v8\nv_add_u32 v8, s7, v8")
    a("v_mul_u32_u24 v8, 3456, v8\ns_lshl_b32 s7, s85, 6\nv_lshl_add_u32 v9, v6, 2, s7\nv_add_u32 v2, v8, v9")
    def gu_load(k, n, slot):
        (m, i), u, e = divmod(k, 5), n >> 1, n & 1
        row = 80*(u >> 1) + 8*i
        if e == 0: a(f"s_mov_b32 s7, {(row + 2*(u & 1)) * 3456}")
        a(f"buffer_load_dword v{64 + slot*8 + n}, v2, {sWU if m else sWG}, s7 offen offset:{3456*e} nt")
    def gu_finish(k, slot):
        m, i = divmod(k, 5)
        for u in range(4):
            for par in range(2): a(f"v_perm_b32 v{GU + (i*2 + par)*8 + 2*u + m}, v{65 + slot*8 + 2*u}, v{64 + slot*8 + 2*u}, s{90+par}")
    staged(10, 8, gu_w, gu_load, gu_finish)
    stamp(3)
    a("s_cmp_lt_u32 s85, 40\ns_cselect_b32 s87, s76, 0\ns_cmp_lg_u32 s87, 3\ns_cbranch_scc1 L_pf2")
    a(f"v_min_u32 v9, 53, v1\nv_lshlrev_b32 v9, 7, v9\ns_mov_b32 s7, {PF}")
    L = loop("pf")
    a(f"buffer_load_dword v8, v9, {sWS}, s7 offen sc1\ns_waitcnt vmcnt(0)\nv_cmp_ne_u32 vcc, s77, v8"); retry(L, 16)
    a("L_pf2:\ns_mul_i32 s7, s76, 40\nv_mul_u32_u24 v8, 10, v7\nv_add3_u32 v8, v8, v6, s7")
    tag_field(4, 8)
    a(f"v_lshlrev_b32 v2, 4, v8\nv_lshlrev_b32 v3, 3, v8\nv_cmp_gt_u32 vcc, 10, v6\nv_add_u32 v5, {HTAB}, v2\nv_mov_b32 v11, {DUMP - 2560}\nv_cndmask_b32 v5, v11, v5, vcc")
    a(f"buffer_load_dwordx2 v[46:47], v3, {sX}, 0 offen\nbuffer_load_dwordx2 v[44:45], v3, {sX}, 0 offen offset:1280")
    a(f"s_lshl_b32 s7, s76, 3\ns_add_u32 s7, s7, {STAT + 4}\nv_and_b32 v8, 4, v1\nv_sub_u32 v50, s7, v8\nv_cmp_gt_u32 vcc, 16, v1\nv_cndmask_b32 v50, v11, v50, vcc\nv_mov_b32 v51, {STAT}")
    a(f"s_lshl_b32 s7, s76, 8\ns_add_u32 s7, s7, {RED}\nv_lshl_add_u32 v52, v6, 4, s7\nv_lshl_add_u32 v52, v7, 11, v52")
    a(f"v_and_b32 v11, 7, v1\nv_lshl_add_u32 v8, v7, 3, v11\nv_lshlrev_b32 v8, 3, v8\nv_add_u32 v53, {RED}, v8")
    a("s_lshl_b32 s7, s76, 8\ns_add_u32 s7, s7, 1280\nv_lshl_add_u32 v54, v6, 4, s7\nv_mul_u32_u24 v8, 1280, v7\nv_sub_u32 v54, v54, v8")
    half_masks(12, 11, 8)
    for r in range(4): a(f"v_and_b32 v{12+r}, 0x3f803f80, v{12+r}")
    for r in range(20): a(f"v_mov_b32 v{HF+r}, 0x3f803f80")
    a(f"v_lshrrev_b32 v8, 2, v1\nv_mul_u32_u24 v9, 2560, v8\nv_and_b32 v10, 3, v1\nv_lshl_add_u32 v55, v10, 4, v9\ns_lshl_b32 s7, s85, 6\nv_add_u32 v55, s7, v55")
    a(f"v_cmp_gt_u32 vcc, 6, v8\nv_mov_b32 v10, {hx(OOB)}\nv_cndmask_b32 v56, v10, v55, vcc")
    a("v_and_b32 v8, 16, v1\nv_or_b32 v8, v8, v11\nv_lshrrev_b32 v9, 5, v1\nv_lshl_or_b32 v8, v9, 3, v8")
    a(f"s_lshl_b32 s7, s85, 5\nv_add_u32 v8, s7, v8\nv_lshlrev_b32 v57, 1, v8\nv_lshlrev_b32 v58, 2, v8\nv_add_u32 v58, {HTAB}, v58")
    for k in range(4): a(f"s_mov_b32 s{80+k}, {YP + 5120*k}")
    mask64(50, 0x03FF03FF03FF03FF); mask64(4, 0x00FF00FF00FF00FF); mask64(88, 0xFFFFFFFF)
    a('; the first pass runs the down projection and the final sum with every address out of range')
    for k in (32, 33, 34, 35, 95, 97): a(f"s_mov_b32 s{k}, {hx(OOB)}")
    c1 = -2.0 * 0.7978845608028654 * 1.4426950408889634
    a(f"s_mov_b32 s96, {hx(f2u(c1 * 0.044715))}\nv_mov_b32 v59, {hx(f2u(c1))}")
    a("s_waitcnt vmcnt(0)"); unpack(40, 41, 46); unpack(42, 43, 47)
    for r in (96, 98, 100, 102): zero2(r)
    wait_lds(PRG + 4, 1, 8)
    a("L_ffn_b:")
    stamp(4)
    a("s_mov_b64 exec, s[50:51]")
    L = loop("h2")
    for k in range(8): a(f"buffer_load_dwordx4 v[{64+4*k}:{67+4*k}], v2, {sWS}, s{80+(k>>1)} offen offset:{2560*(k&1)} sc1")
    for k in range(8):
        a(f"s_waitcnt vmcnt({7-k})"); untag(64 + 4 * k, 4); add4(108, 108 if k else 40, 64 + 4 * k)
        if k & 1: tag_acc(8, 60 + 4 * k, 64 + 4 * k, k == 1)
    tag_test(8)
    a("v_cvt_pk_bf16_f32 v10, v108, v109\nv_cvt_pk_bf16_f32 v11, v110, v111")
    retry(L, gentle=16)
    a("s_mov_b64 exec, -1")
    stamp(5)
    def gu_b(i, rs=range(4)):
        for r in rs: a(f"v_mov_b32_dpp v{HF+4*i+r}, v{10+(r&1)} row_newbcast:{2*i+(r>>1)} row_mask:0xf bank_mask:0x5")
    gu_b(0); gu_b(1, (0, 1))
    fill = [F(gu_b, 1, (2, 3))] + [F(gu_b, i, rs) for i in (2, 3, 4) for rs in ((0, 1), (2, 3))]
    fill += [F(a, "ds_write_b128 v5, v[108:111]")] + [F(a, f"v_mov_b64 v[{64+8*k}:{65+8*k}], 0\nv_mov_b64 v[{68+8*k}:{69+8*k}], 0") for k in range(4)]
    for i in range(5):
        for q in range(3):
            if q == 0: mfma(104, HF + 4 * i, HF + 4 * i, i == 0)
            else: smf(92 + 4 * q, HF + 4 * i, GU + (i * 2 + q - 1) * 8)
            if fill: fill.pop(0)()
    a("s_mov_b64 exec, s[88:89]\nds_write_b32 v50, v104\nds_write_b64 v52, v[96:97]\nds_write_b64 v52, v[100:101] offset:8\ns_mov_b64 exec, -1")
    stamp(6)
    L = loop("gr")
    a("ds_read_b128 v[104:107], v51\nds_read_b128 v[108:111], v51 offset:16")
    a("ds_read2_b64 v[96:99], v53 offset0:0 offset1:32\nds_read2_b64 v[100:103], v53 offset0:64 offset1:96")
    a(f"s_waitcnt lgkmcnt({0 if diag and not few else 2})"); add4(104, 104, 108); pk("add", 104, 104, 106)
    a("v_mul_f32 v104, s92, v104\nv_mul_f32 v105, s92, v105\nv_fma_f32 v105, -v104, v104, v105\nv_max_f32 v106, 0, v105\nv_add_f32 v106, s93, v106\nv_rsq_f32 v106, v106")
    a("s_waitcnt lgkmcnt(0)"); add4(96, 96, 100); pk("add", 96, 96, 98)
    a("v_add_f32 v105, v105, v96\nv_cmp_u_f32 vcc, v105, v97\ns_cmp_eq_u32 s98, 0")
    retry(L, post="s_cmp_eq_u32 s98, 0\n")
    a("s_cbranch_scc1 L_cs\nL_csd:")
    cold.append("L_cs:\nv_add_u32 v8, 2048, v53\nds_read2_b64 v[100:103], v8 offset0:0 offset1:32\nds_read2_b64 v[108:111], v8 offset0:64 offset1:96\ns_waitcnt lgkmcnt(0)\n"
                "v_pk_add_f32 v[100:101], v[100:101], v[102:103]\nv_pk_add_f32 v[108:109], v[108:109], v[110:111]\nv_pk_add_f32 v[62:63], v[100:101], v[108:109]\ns_branch L_csd")
    a("v_pk_fma_f32 v[96:97], v[62:63], v[104:105], v[96:97] op_sel_hi:[1,0,1] neg_lo:[0,1,0] neg_hi:[0,1,0]")
    a("v_pk_mul_f32 v[96:97], v[96:97], v[106:107] op_sel_hi:[1,0]")
    a("v_mul_f32 v98, v96, v96\nv_fma_f32 v98, v98, s96, v59\nv_mul_f32 v98, v98, v96\nv_exp_f32 v98, v98\nv_mul_f32 v96, v96, v97")
    a("v_add_f32 v98, 1.0, v98\nv_rcp_f32 v98, v98\nds_read_b32 v48, v58\nv_mul_f32 v96, v96, v98\ns_cmp_eq_u32 s98, 0")
    a(f"v_mov_b32_dpp v97, v96 quad_perm:[1,1,3,3] {DPPM}\nv_cvt_pk_bf16_f32 v96, v96, v97")
    def dn_a(bank): return "\n".join(f"v_mov_b32_dpp v{AF+r}, v96 row_newbcast:{2*r} row_mask:0xf bank_mask:{bank}" for r in range(4))
    a("s_cbranch_scc1 L_keep\nL_kept:\ns_cmp_lg_u32 s76, 0")
    cold.append("L_keep:\n" + dn_a("0xa") + "\ns_branch L_kept")
    a(dn_a("0x5"))
    for t in range(4): smf(64 + 4 * t, AF, DN + 8 * t)
    a("s_cbranch_scc1 L_dn3")
    for t in range(4, 8): smf(64 + 4 * t, AF, DN + 8 * t)
    a("L_dn3:\ns_mov_b32 exec_hi, 0")
    for blk in range(2):
        if blk: a("s_cbranch_scc1 L_dn4")
        for t in range(4): a(f"v_cvt_pk_bf16_f32 v{96+4*blk+t}, v{64+16*blk+4*t}, v{65+16*blk+4*t}")
        a(f"buffer_store_dwordx4 v[{96+4*blk}:{99+4*blk}], v54, {sWS}, s95 offen offset:{1024*blk} sc0 sc1")
    a("L_dn4:\ns_mov_b64 exec, -1")
    stamp(7)
    a("s_cmp_lg_u32 s87, 3\ns_cbranch_scc1 L_ffn_next")
    a("; back off before the first poll: a line read before its writer arrives slows that write down")
    if pre3: a(f"s_sleep {pre3}")
    L = loop("h3")
    for k in range(4): a(f"buffer_load_dwordx4 v[{64+4*k}:{67+4*k}], {'v56' if k == 3 else 'v55'}, {sWS}, s{32+k} offen sc1")
    for k in range(4):
        a(f"s_waitcnt vmcnt({3-k})" + (" lgkmcnt(0)" if k == 0 else "")); mfma(80, 64 + 4 * k, 12, k == 0)
    a("v_permlane32_swap_b32 v80, v81\nv_permlane32_swap_b32 v82, v83\nv_add_f32 v80, v80, v81\nv_add_f32 v82, v82, v83\nv_cmp_u_f32 vcc, v80, v82")
    a("v_permlane16_swap_b32 v80, v82\nv_add_f32 v80, v80, v48\nv_add_f32 v80, v80, v82")
    retry(L)
    stamp(8)
    a(f"v_cvt_pk_bf16_f32 v80, v80, v80\ns_mov_b64 exec, s[4:5]\nbuffer_store_short v80, v57, {sOUT}, s97 offen\ns_mov_b64 exec, -1")
    stamp(9)
    a("s_cmp_lg_u32 s85, 0\ns_cbranch_scc1 L_ffn_next")
    a(f"v_mov_b32 v8, s77\ns_mov_b64 exec, 1\nbuffer_store_dword v8, v61, {sWS}, s97 offen\ns_mov_b64 exec, -1")
    a("L_ffn_next:\ns_cmp_lg_u32 s98, 0\ns_cbranch_scc1 L_ffn_end")
    for k in range(4): a(f"s_add_u32 s{80+k}, s{80+k}, 20480\ns_mov_b32 s{32+k}, {DP + 40960*k}")
    a(f"s_mul_i32 s95, s85, 2560\ns_add_u32 s95, s95, {DP}\ns_mov_b32 s97, 0\ns_mov_b32 s98, 1\ns_mov_b32 s88, 0xffff")
    a("v_add_u32 v5, 2560, v5\nv_add_u32 v50, 128, v50\nv_add_u32 v51, 128, v51\nv_add_u32 v52, 1024, v52\nv_add_u32 v53, 1024, v53")
    unpack(40, 41, 44); unpack(42, 43, 45)
    for r in (96, 98, 100, 102): zero2(r)
    wait_lds(PRG + 8, 1, 1)
    a("; w_down comes in while the attention output is still being projected")
    if late:
        a("s_waitcnt vmcnt(0)"); dn_block(0, range(4 - late, 4), True); stamp(3)
    wait_lds(HEARD, 1, 0)
    if pre2: a(f"s_sleep {pre2}")
    a("s_branch L_ffn_b\nL_ffn_end:")
    dump_stamps()
    a("L_exit:\ns_endpgm")
    flush_cold()
    a("L_code_end:")

    hdr = open("cdna_kernels/" + NAME + ".s.ref").read().split("; Override launch")[0]
    out = [hdr.rstrip(), f"; @launch grid=(256,1,1) block=(512,1,1) lds={LDSZ}", '.amdgcn_target "amdgcn-amd-amdhsa--gfx950"']
    out.append("; One persistent launch, 256 workgroups (one per CU) of 8 waves. Workgroup id w: group w & 7, member w >> 3;\n;   tail: partial o -> projection -> partial y -> h, LayerNorm, gate / up, GELU, down -> partial out -> sum + h.\n; The clock is read only to compare progress between workgroups (in-flight depth); no value depends on it.")
    out += a.finish()
    out.append(f""".section .rodata,"a"
.p2align 6
.amdhsa_kernel {kname}
  .amdhsa_next_free_vgpr 256
  .amdhsa_next_free_sgpr 102
  .amdhsa_accum_offset 256
  .amdhsa_group_segment_fixed_size 0
  .amdhsa_kernarg_size 96
  .amdhsa_user_sgpr_count 2
  .amdhsa_user_sgpr_kernarg_segment_ptr 1
  .amdhsa_system_sgpr_workgroup_id_x 1
  .amdhsa_float_denorm_mode_32 3
.end_amdhsa_kernel""")
    return "\n".join(out) + "\n"

if __name__ == "__main__":
    kw = eval("dict(" + (sys.argv[2] if len(sys.argv) > 2 else "") + ")")
    open(sys.argv[1], "w").write(gen(**kw))
```

```python
import sys, struct
from asmlib import Asm

NAME = "sequential_preLN__mha_block_cached__geglu_ffn__decode"
def f2u(x): return struct.unpack("<I", struct.pack("<f", x))[0]
def hx(x): return "0x%08x" % (x & 0xffffffff)

REF, BELL, QP, OP, YP, DP, ML, DIAG, QPB, WSZ = 0x1000, 0x170000, 0x10000, 0x90000, 0x140000, 0xE0000, 0x130000, 0x1a0000, 0x200000, 0x280000
RS = 4352
OOB = 0x7ff00000
HEARD, PF = 4632, 0x180000
QRED, QF, CNT, MCNT, NEAR, PRG, MRED, STAT, RED, ORED, HTAB, DUMP, LDSZ = 0, 4096, 4608, 4616, 4624, 4640, 4672, 4864, 5120, 8192, 12288, 22016, 24576
sK, sV, sWS, sX, sWQ, sWO, sWG, sWU, sWD, sOUT = [f"s[{n}:{n+3}]" for n in range(32, 72, 4)]
DPPM = "row_mask:0xf bank_mask:0xf"
LOG2E = f2u(1.4426950408889634)
MFMA = "v_mfma_f32_16x16x32_bf16"

def gen(depth=5, ctl=(8, 6, 5), E=24, dl=11, dw=12, nref=8, gb=20, gs=24, bias=0, ph0=17, ex=16, fin=(14, 16, 10, 16), mids=(11,), fmids=(6,),
        P=39, budget=56, ml0=124, ml1=194, gates=(222, 250), qpre=24, qsleep=2, qB=6, wo_w=2, gu_w=4, dn_w=2,
        pre2=0, pre3=13, ring=1, nc=2, cs=12288, late=4, ffb=35, ffb_from=230, bell=True, fast=True, setup_at=20, SPIN=0x100000, diag=False, early=False, few=False, oflag=True, probe=None, poff=0, bw=None, bg=None, noclr=False, skip='', warm=1, dsched=None, cpf=2, wqfirst=False, bar=3, mlnear=True):
    a = Asm()
    cold = []
    kname = NAME + "_kernel"
    if probe: diag = few = True
    def stamp(k):
        if few and k not in (0, 2, 9): return
        if diag and k == 0: a("s_mov_b32 s8, s100\ns_mov_b32 s26, s100")
        elif diag: a(f"s_memrealtime s[{8+2*k}:{9+2*k}]")
    def dump_stamps():
        if not diag: return
        if probe and probe[0][1] == 4 and any(l.startswith("L_aux:") for l in a.lines): return
        if probe: a("s_sleep 127\ns_sleep 127")
        a("s_waitcnt lgkmcnt(0)\ns_mov_b64 exec, 1\ns_lshl_b32 s90, s6, 3\ns_add_u32 s90, s90, s3\ns_lshl_b32 s90, s90, 6")
        a(f"s_add_u32 s90, s90, {DIAG}\nv_mov_b32 v5, 0")
        for k in range(11): a(f"v_mov_b32 v{112+k}, s{8+2*k}")
        a("v_mov_b32 v123, s78")
        for q in range(3): a(f"buffer_store_dwordx4 v[{112+4*q}:{115+4*q}], v5, {sWS}, s90 offen offset:{16*q} {'sc0 sc1' if probe else ''}")
    def srd_tail(n, size): a(f"s_mov_b32 s{n+2}, {hx(size)}\ns_mov_b32 s{n+3}, 0x20000")
    def bfr(d, s): a(f"v_cvt_pk_bf16_f32 v{d}, v{s}, v{s}\nv_and_b32 v{d}, 0xffff0000, v{d}")
    def unpack(d0, d1, s): a(f"v_lshlrev_b32 v{d0}, 16, v{s}\nv_and_b32 v{d1}, 0xffff0000, v{s}")
    def pk(op, d, x, y): a(f"v_pk_{op}_f32 v[{d}:{d+1}], v[{x}:{x+1}], v[{y}:{y+1}]")
    def add4(d, x, y): pk("add", d, x, y); pk("add", d + 2, x + 2, y + 2)
    def mask64(n, v): a(f"s_mov_b32 s{n}, {hx(v)}\ns_mov_b32 s{n+1}, {hx(v >> 32)}")
    def mfma(d, A, B, first): a(f"{MFMA} v[{d}:{d+3}], v[{A}:{A+3}], v[{B}:{B+3}], {'0' if first else f'v[{d}:{d+3}]'}")
    def smf(d, A, B): a(f"v_smfmac_f32_16x16x64_bf16 v[{d}:{d+3}], v[{A}:{A+3}], v[{B}:{B+7}], v60")
    def zero2(r): a(f"v_mov_b64 v[{r}:{r+1}], 0")
    def loop(base):
        L = a.lab(base); a(L + ":"); return L
    def retry(L, sleep=0, gentle=0, pre='', post=''):
        a(f"s_cbranch_vccnz {L}_r\n{L}_d:")
        t = f"{L}_r:\n" + pre
        if sleep: t += f"s_sleep {sleep}\n"
        if gentle: t += f"s_cmp_lg_u32 s98, 0\ns_cbranch_scc1 {L}_n\ns_sleep {gentle}\n{L}_n:\n"
        cold.append(t + f"s_sub_u32 s79, s79, 1\ns_cbranch_scc0 {L}\ns_mov_b32 s79, 0\n{post}s_branch {L}_d")
    def flush_cold():
        for t in cold: a(t)
        cold.clear()
    def empty_check(regs, t):
        regs = list(regs)
        a(f"v_max3_u32 v{t}, v{regs[0]}, v{regs[1]}, v{regs[2]}"); regs = regs[3:]
        while len(regs) >= 2: a(f"v_max3_u32 v{t}, v{t}, v{regs[0]}, v{regs[1]}"); regs = regs[2:]
        if regs: a(f"v_max_u32 v{t}, v{t}, v{regs[0]}")
        a(f"v_cmp_eq_u32 vcc, -1, v{t}")
    def nan4(x, t): pk("add", t, x, x + 2); a(f"v_cmp_u_f32 vcc, v{t}, v{t+1}")
    def rows_allreduce(op, v, t, both=True):
        a(f"v_mov_b32 v{t}, v{v}\nv_permlane16_swap_b32 v{v}, v{t}\n{op} v{v}, v{v}, v{t}")
        if both: a(f"v_mov_b32 v{t}, v{v}\nv_permlane32_swap_b32 v{v}, v{t}\n{op} v{v}, v{v}, v{t}")
    def half_masks(first, esrc, t0):
        a(f"v_and_b32 v{t0}, 1, v{esrc}\nv_lshlrev_b32 v{t0}, 4, v{t0}\nv_mov_b32 v{t0+1}, 0xffff\nv_lshlrev_b32 v{t0}, v{t0}, v{t0+1}")
        a(f"v_lshrrev_b32 v{t0+1}, 1, v{esrc}")
        for r in range(4): a(f"v_cmp_eq_u32 vcc, {r}, v{t0+1}\nv_cndmask_b32 v{first+r}, 0, v{t0}, vcc")
    def wait_lds(addr, val, sleep):
        L = loop("lds")
        a(f"ds_read_b32 v8, v61 offset:{addr}\ns_waitcnt lgkmcnt(0)\nv_cmp_ne_u32 vcc, {val}, v8")
        retry(L, sleep)
    def tag_field(d, pos):
        a(f"v_and_b32 v{d}, 3, v{pos}\nv_mul_u32_u24 v{d}, 7, v{d}\nv_lshrrev_b32 v{d}, v{d}, s77\nv_and_b32 v{d}, 0xffe, v{d}\nv_and_or_b32 v{d}, s77, 1, v{d}")
    def untag(x, f): a(f"v_xor_b32 v{x}, v{x}, v{f}")
    def tag_acc(acc, x, y, first): a(f"v_or_b32 v{acc}, v{x}, v{y}" if first else f"v_or3_b32 v{acc}, v{acc}, v{x}, v{y}")
    def tag_test(acc): a(f"v_and_b32 v{acc}, 0xfff, v{acc}\nv_cmp_ne_u32 vcc, 0, v{acc}")
    def next_tag(): a("s_mul_i32 s77, s77, 1664525\ns_add_u32 s77, s77, 1013904223")

    a(f".text\n.globl {kname}\n.p2align 8\n.type {kname},@function\n{kname}:")
    a("s_cmp_ge_u32 s2, 256\ns_cbranch_scc1 L_exit")
    if diag: a("s_memrealtime s[100:101]")
    a("s_load_dwordx8 s[8:15], s[0:1], 0")
    a("s_getpc_b64 s[4:5]\nL_pc:")
    if cpf == 0: a("v_lshlrev_b32 v4, 7, v0")
    else:
        a(f"s_lshr_b32 s3, s2, {3 + cpf - 1}\nv_lshrrev_b32 v4, {5 - (cpf - 1)}, v0\nv_lshlrev_b32 v4, {5 - (cpf - 1)}, v4\nv_add_lshl_u32 v4, v4, s3, 7")
    a("v_min_u32 v4, L_code_end-L_pc-4, v4\nglobal_load_dword v4, v4, s[4:5]")
    a("v_lshrrev_b32 v5, 6, v0\nv_and_b32 v1, 63, v0\nv_readfirstlane_b32 s3, v5")
    a("s_and_b32 s72, s2, 7\ns_lshr_b32 s73, s2, 3\ns_lshl_b32 s6, s72, 5\ns_add_u32 s6, s6, s73")
    a("s_lshr_b32 s74, s6, 3\ns_and_b32 s75, s6, 7\ns_and_b32 s76, s3, 3")
    a("v_and_b32 v6, 15, v1\nv_lshrrev_b32 v7, 4, v1")
    srd_tail(40, WSZ)
    a(f"s_mov_b32 s79, {SPIN}\ns_cmp_lt_u32 s3, 4\ns_cbranch_scc1 L_aux0")
    def aux_start():
        a("L_aux0:\nv_lshlrev_b32 v96, 4, v0\nv_mov_b32 v112, -1\nv_mov_b32 v113, -1\nv_mov_b32 v114, -1\nv_mov_b32 v115, -1")
        a("ds_write_b128 v96, v[112:115]\nds_write_b128 v96, v[112:115] offset:4096")
        a("v_and_b32 v8, 31, v1\nv_lshlrev_b32 v8, 3, v8\nv_lshrrev_b32 v9, 5, v1\nv_mul_u32_u24 v9, 1280, v9\nv_add_u32 v2, v8, v9")
        a("s_mul_i32 s7, s75, 80\ns_mul_i32 s80, s76, 20\ns_add_u32 s7, s7, s80\nv_add_u32 v8, s7, v7")
        a("v_bfe_u32 v9, v1, 3, 1\nv_mul_u32_u24 v9, 1280, v9\nv_lshl_add_u32 v3, v8, 1, v9")
        a("s_lshl_b32 s7, s74, 8\nv_lshlrev_b32 v8, 13, v8\nv_lshl_add_u32 v9, v6, 4, s7\nv_add_u32 v5, v8, v9")
        srd_tail(44, 2560); srd_tail(48, 640 * 4096 * 2)
        a("s_mov_b32 s7, 0\ns_waitcnt lgkmcnt(0)\ns_mov_b64 s[44:45], s[8:9]\ns_mov_b64 s[48:49], s[14:15]")
        def l1():
            for i in range(5): a(f"buffer_load_dwordx2 v[{8+2*i}:{9+2*i}], v2, {sX}, 0 offen offset:{256*i}")
        def l2():
            for i in range(5): a(f"buffer_load_ushort v{18+i}, v3, {sX}, 0 offen offset:{8*i}")
        def l3():
            for i in range(5): a(f"buffer_load_dwordx4 v[{24+4*i}:{27+4*i}], v5, {sWQ}, s7 offen nt" + ("\ns_add_u32 s7, s7, 0x8000" if i < 4 else ""))
        for n, f in enumerate({0: (l1, l2, l3), 1: (l3, l1, l2), 2: (l1, l3, l2)}[int(wqfirst)]):
            if n == bar: a("s_barrier")
            f()
        a("s_load_dwordx8 s[16:23], s[0:1], 32\ns_load_dwordx8 s[24:31], s[0:1], 64")
        if bar == 3: a("s_barrier")
        a("s_branch L_aux")

    a("s_setprio 2")
    a("v_bfe_u32 v8, v1, 2, 2\nv_lshlrev_b32 v8, 8, v8\nv_lshl_or_b32 v8, v7, 6, v8\nv_and_b32 v9, 3, v1\nv_lshl_or_b32 v2, v9, 4, v8")
    a("s_and_b32 s80, s75, 3\ns_cselect_b32 s71, 0, 0x80000000\ns_lshl_b32 s70, s75, 18")
    a("s_lshl_b32 s7, s74, 21\ns_lshl_b32 s80, s76, 10\ns_add_u32 s7, s7, s80\nv_add_u32 v2, s7, v2\nv_lshl_add_u32 v3, v1, 4, s7")
    srd_tail(32, 1 << 27); srd_tail(36, 1 << 27)
    a("s_waitcnt lgkmcnt(0)\ns_mov_b64 s[32:33], s[10:11]\ns_mov_b64 s[36:37], s[12:13]")
    RING, NB, PH, NG = 100, 39, 68, 17
    BK, DK, ACC, BV, MLB, MLS, RMAX, S, NINF = 16, 32, 40, 44, 52, 56, 60, [64, 81], 98
    vm, landed, ld_idx, items, got = ["code"], [-1], {}, [], set()
    def wait_vm(idx):
        if idx > landed[0]:
            a(f"s_waitcnt vmcnt({len(vm) - 1 - idx})"); landed[0] = idx
    def kind(n):
        k, r = divmod(n, 17)
        if r == 16: return ("hole", k)
        m = 16 * k + r
        return ("opt" if (m & 3) == ((m >> 2) & 3) else "own", m)
    def address(i):
        ph, n = divmod(i, PH); b = ph & 1
        kd, m = kind(n)
        if kd == "hole": a(f"s_add_u32 s73, s72, {hx((b << 26) + m * 65536)}"); return "s73"
        a(f"s_add_u32 s7, s70, {hx(b << 26)}" if m == 0 else "s_addk_i32 s7, 0x1000")
        if kd == "own": return "s7"
        a("s_or_b32 s73, s7, s71"); return "s73"
    def issue(i, so):
        isv = i >= 2 * PH; r = RING + (i % NB) * 4
        a(f"buffer_load_dwordx4 v[{r}:{r+3}], {'v3' if isv else 'v2'}, {sV if isv else sK}, {so} offen nt")
        ld_idx[i] = len(vm); vm.append(i)
    def add(cost, needs, fn): items.append((cost, needs, fn))
    def setup1():
        a("s_getreg_b32 s78, hwreg(HW_REG_XCC_ID, 0, 4)")
        a("s_and_b32 s72, s75, 4\ns_lshl_b32 s72, s72, 18\ns_and_b32 s80, s75, 3\ns_mul_i32 s80, s80, 20480\ns_add_u32 s72, s72, s80")
        half_masks(10, 6, 8)
        a("v_and_b32 v9, 3, v1\nv_lshlrev_b32 v9, 4, v9\nv_lshl_or_b32 v14, v7, 6, v9")
        a("v_and_b32 v15, 31, v1\nv_lshlrev_b32 v15, 4, v15")
        a("v_lshl_add_u32 v9, v7, 3, v6\nv_lshlrev_b32 v9, 4, v9\ns_lshl_b32 s80, s76, 9\nv_add_u32 v62, s80, v9")
        a("s_lshl_b32 s80, s6, 9\nv_add_u32 v63, s80, v15")
        a(f"v_mov_b32 v61, 0\nv_mov_b32 v5, 1\nv_mov_b32 v{NINF}, 0xff800000")
    def setup2():
        a("s_waitcnt lgkmcnt(0)\ns_load_dword s77, s[40:41], 0")
        a(f"s_lshr_b32 s90, s6, 5\ns_lshl_b32 s90, s90, 12\ns_add_u32 s90, s90, {ML}\ns_lshl_b32 s91, s6, 7\ns_add_u32 s91, s91, {ML}")
        a("v_bfe_u32 v9, v1, 2, 3\nv_lshlrev_b32 v9, 7, v9\nv_and_b32 v4, 3, v1\nv_lshl_or_b32 v0, v4, 4, v9\ns_and_b32 s80, s74, 3\ns_lshl_b32 s80, s80, 10\nv_add_u32 v0, s80, v0")
        a("v_and_b32 v8, 31, v1\nv_min_u32 v8, 11, v8\nv_and_b32 v9, 3, v8\nv_lshrrev_b32 v8, 2, v8\nv_lshl_add_u32 v8, v9, 3, v8\nv_lshlrev_b32 v8, 7, v8\nv_add_u32 v8, 192, v8")
        a("v_cmp_gt_u32 vcc, 32, v1\nv_cndmask_b32 v99, v8, v0, vcc\nv_lshlrev_b32 v4, 3, v4")
        a("s_lshl_b32 s99, s76, 3\ns_ashr_i32 s98, s71, 31")
        if ctl:
            a(f"s_sub_u32 s65, s2, {256 - nref}\ns_cselect_b32 s64, 0, 1\ns_cmp_eq_u32 s76, 0\ns_cselect_b32 s64, s64, 0\ns_mul_i32 s65, s65, {RS}\ns_add_u32 s65, s65, {REF}")
            a(f"s_add_u32 s66, s40, {REF}\ns_addc_u32 s67, s41, 0\ns_mov_b32 s62, 0\ns_mov_b32 s63, 0")
        for t in range(4): mask64(80 + 2 * t, 0x000F000F000F000F << (4 * t))
        mask64(88, 0x00FF00FF00FF00FF)
        a(f"s_mov_b32 s92, {hx(f2u(128 ** -0.5))}\ns_mov_b32 s93, {hx(LOG2E)}")
    def setup3():
        a("s_waitcnt lgkmcnt(0)"); next_tag(); tag_field(1, 1)
    def it_qfrag(b):
        L = loop("q")
        a(f"ds_read_b128 v[{BV}:{BV+3}], v14 offset:{QF + b * 256}\ns_waitcnt lgkmcnt(0)")
        empty_check(range(BV, BV + 4), BV + 4); retry(L, 1)
        if b == 0:
            stamp(1); a(f"ds_read_b32 v8, v61 offset:{NEAR}\ns_waitcnt lgkmcnt(0)\nv_readfirstlane_b32 s31, v8")
        for t in range(4):
            for r in range(4): a(f"v_cndmask_b32 v{BK + 4*t + r}, 0, v{BV + r}, s[{80+2*t}:{81+2*t}]")
    def it_k(i):
        n = i % PH
        mfma(DK + ((n >> 2) & 1) * 4, RING + (i % NB) * 4, BK + 4 * (n & 3), n & 3 == 0)
    def it_kred(b, u):
        d = DK + (u & 1) * 4; s = S[b] + u
        a(f"v_mov_b32_dpp v{s}, v{d} quad_perm:[0,0,0,0] {DPPM}")
        for r in range(1, 4): a(f"v_add_f32_dpp v{s}, v{d+r}, v{s} quad_perm:[{r},{r},{r},{r}] {DPPM}")
        bfr(s, s); a(f"v_mul_f32 v{s}, s92, v{s}"); bfr(s, s)
        om = sum(0x000F000F << (4 * t) for t in range(4) if kind(4 * u + t)[0] == "opt")
        if om: a(f"s_and_b32 s0, s98, {hx(om)}\ns_mov_b32 s1, s0\nv_cndmask_b32 v{s}, v{s}, v{NINF}, s[0:1]")
        a(f"v_mov_b32 v{RMAX}, v{s}" if u == 0 else f"v_max_f32 v{RMAX}, v{RMAX}, v{s}")
    def it_max(b):
        a(f"v_max_f32_dpp v{RMAX}, v{RMAX}, v{RMAX} row_ror:8 {DPPM}\nv_max_f32_dpp v{RMAX}, v{RMAX}, v{RMAX} row_ror:4 {DPPM}")
        rows_allreduce("v_max_f32", RMAX, BV)
        a(f"v_mov_b32 v{MLS}, v{RMAX}\nv_mov_b32 v{MLS+1}, 0")
    def it_sum(b, u0):
        n = min(4, NG - u0)
        for u in range(n): a(f"v_sub_f32 v{BV+u}, v{S[b]+u0+u}, v{MLS}")
        for u in range(n): a(f"v_mul_f32 v{BV+u}, s93, v{BV+u}")
        for u in range(n): a(f"v_exp_f32 v{BV+u}, v{BV+u}")
        for u in range(n): a(f"v_add_f32 v{MLS+1}, v{MLS+1}, v{BV+u}")
    def it_mlpub(b):
        l, Ls = MLS + 1, a.lab("mlast")
        a(f"v_add_f32_dpp v{l}, v{l}, v{l} row_ror:8 {DPPM}\nv_add_f32_dpp v{l}, v{l}, v{l} row_ror:4 {DPPM}")
        rows_allreduce("v_add_f32", l, BV)
        a(f"v_mov_b32 v8, s99\ns_mov_b64 exec, 1\nds_write_b64 v8, v[{MLS}:{MLS+1}] offset:{MRED + 32*b}")
        a(f"ds_add_rtn_u32 v8, v61, v5 offset:{MCNT + 4*b}\ns_mov_b64 exec, -1")
        a(f"ds_read_b64 v[{BV}:{BV+1}], v4 offset:{MRED + 32*b}\ns_waitcnt lgkmcnt(0)\nv_readfirstlane_b32 s96, v8")
        a(f"s_cmp_lg_u32 s96, 2\ns_cbranch_scc1 {Ls}")
        a(f"v_mov_b32 v8, s78\nv_cndmask_b32 v{MLS}, v8, v{BV}, s[80:81]\nv_mov_b32 v{MLS+1}, s77\nv_mov_b32 v{MLS+2}, v{BV+1}\nv_mov_b32 v{MLS+3}, s77")
        a(f"s_add_u32 s96, s91, {b * 32768}\ns_mov_b64 exec, 0xff\ns_cmp_lg_u32 s31, {0 if mlnear else 7}\ns_cbranch_scc1 {Ls}_far")
        a(f"buffer_store_dwordx4 v[{MLS}:{MLS+3}], v15, {sWS}, s96 offen\n{Ls}:\ns_mov_b64 exec, -1")
        cold.append(f"{Ls}_far:\nbuffer_store_dwordx4 v[{MLS}:{MLS+3}], v15, {sWS}, s96 offen sc0 sc1\ns_branch {Ls}")
    def ml_load(b): return f"buffer_load_dwordx4 v[{MLB}:{MLB+3}], {'v0' if b else 'v99'}, {sWS}, s94 offen sc1"
    def ml_issue(b):
        a(f"s_add_u32 s94, s90, {b * 32768}\n" + ml_load(b))
        ld_idx[("ml", b)] = len(vm); vm.append("ml")
    def it_mlget(b):
        L = loop("ml")
        a(f"v_cmp_ne_u32 vcc, s77, v{MLB+1}\nv_cmp_ne_u32 s[96:97], s77, v{MLB+3}\ns_or_b64 vcc, vcc, s[96:97]")
        if b == 0: a("s_mov_b32 s30, vcc_hi\ns_mov_b32 vcc_hi, 0")
        a(f"s_cmp_lg_u32 vcc_lo, 0\ns_cbranch_scc1 {L}_r\n{L}_d:")
        cold.append(f"{L}_r:\ns_sleep 4\n{ml_load(b)}\ns_waitcnt vmcnt(0)\ns_sub_u32 s79, s79, 1\ns_cbranch_scc0 {L}\ns_mov_b32 s79, 0\ns_branch {L}_d")
        got.add(b)
        if b == 0: a(f"v_cmp_ne_u32 vcc, s78, v{MLB}\ns_or_b32 s30, s30, {'vcc_hi' if fast else '1'}")
        M, Ls = MLB + 1, MLB + 2
        a(f"v_max_f32_dpp v{M}, v{MLB}, v{MLB} row_ror:8 {DPPM}")
        for k in (4, 2, 1): a(f"v_max_f32_dpp v{M}, v{M}, v{M} row_ror:{k} {DPPM}")
        rows_allreduce("v_max_f32", M, 8, both=False)
        a(f"v_sub_f32 v8, v{MLB}, v{M}\nv_mul_f32 v8, s93, v8\nv_exp_f32 v8, v8\nv_mul_f32 v{Ls}, v{Ls}, v8")
        for k in (8, 4, 2, 1): a(f"v_add_f32_dpp v{Ls}, v{Ls}, v{Ls} row_ror:{k} {DPPM}")
        rows_allreduce("v_add_f32", Ls, 8, both=False)
        a(f"v_rcp_f32 v{Ls}, v{Ls}\nv_readfirstlane_b32 s4, v{M}\nv_readfirstlane_b32 s5, v{Ls}")
    def it_p(b, u0):
        R = [S[b] + u for u in range(u0, min(u0 + 4, NG))]
        for s in R: a(f"v_subrev_f32 v{s}, s4, v{s}")
        for s in R: a(f"v_mul_f32 v{s}, s93, v{s}")
        for s in R: a(f"v_exp_f32 v{s}, v{s}")
        for s in R: a(f"v_mul_f32 v{s}, s5, v{s}")
        for s in R: a(f"v_cvt_pk_bf16_f32 v{s}, v{s}, v{s}")
    def it_vb(i):
        b, n = divmod(i - 2 * PH, PH)
        for r in range(4): a(f"v_and_b32_dpp v{BV + (i & 1)*4 + r}, v{S[b] + (n >> 2)}, v{10+r} row_newbcast:{4*(n & 3)} {DPPM}")
    def it_v(i): mfma(ACC, RING + (i % NB) * 4, BV + (i & 1) * 4, i % PH == 0)
    def it_opub(b):
        Ls = a.lab("olast")
        if b == 1: stamp(2)
        a(f"s_mov_b32 s95, {OP + b * 0x20000}\ns_movk_i32 s97, 0xfff\ns_mov_b64 exec, s[88:89]")
        a(f"ds_write_b128 v62, v[{ACC}:{ACC+3}] offset:{ORED + b * 2048}")
        a(f"s_mov_b64 exec, 1\nds_add_rtn_u32 v8, v61, v5 offset:{CNT + 4*b}\ns_mov_b32 exec_lo, -1")
        for w in range(4): a(f"ds_read_b128 v[{16+4*w}:{19+4*w}], v15 offset:{ORED + b * 2048 + w * 512}")
        a("s_waitcnt lgkmcnt(0)\nv_readfirstlane_b32 s96, v8")
        add4(16, 16, 20); add4(24, 24, 28)
        a(f"s_cmp_lg_u32 s96, 2\ns_cbranch_scc1 {Ls}\ns_cmp_lg_u32 s30, 0")
        add4(16, 16, 24); a("v_bfi_b32 v16, s97, v1, v16")
        a(f"s_cbranch_scc1 {Ls}_far\nbuffer_store_dwordx4 v[16:19], v63, {sWS}, s95 offen\n{Ls}_st:")
        cold.append(f"{Ls}_far:\nbuffer_store_dwordx4 v[16:19], v63, {sWS}, s95 offen sc0 sc1\ns_branch {Ls}_st")
        if b == 1:
            if oflag: a(f"ds_write_b32 v61, v5 offset:{PRG + 8}")
            stamp(3)
        a(f"{Ls}:\ns_mov_b64 exec, -1")
    F = lambda fn, *x: (lambda: fn(*x))
    for b in range(2):
        add(30, None, F(it_qfrag, b))
        for n in range(PH):
            add(4, PH * b + n, F(it_k, PH * b + n))
            if n & 3 == 0 and n: add(12, None, F(it_kred, b, (n >> 2) - 1))
            if b == 1 and PH + n == ml0:
                add(40, ("ml", 0), F(it_mlget, 0))
                for u0 in range(0, NG, 4): add(24, None, F(it_p, 0, u0))
        add(16, None, F(it_kred, b, NG - 1)); add(20, None, F(it_max, b))
        for u0 in range(0, NG, 4): add(20, None, F(it_sum, b, u0))
        add(40, None, F(it_mlpub, b))
    for b in range(2):
        for n in range(PH):
            i = (2 + b) * PH + n
            add(4, None, F(it_vb, i)); add(4, i, F(it_v, i))
            if b == 0 and i == ml1:
                add(40, ("ml", 1), F(it_mlget, 1))
                for u0 in range(0, NG, 4): add(24, None, F(it_p, 1, u0))
        add(40, None, F(it_opub, b))
    consumed = [-1]
    def run_items(bud, force=False):
        while items:
            cost, needs, fn = items[0]
            if needs is not None:
                if needs not in ld_idx: return
                if ld_idx[needs] > landed[0]:
                    if not force: return
                    wait_vm(ld_idx[needs])
            if bud <= 0 and not force: return
            items.pop(0); fn(); bud -= cost
            if isinstance(needs, int): consumed[0] = needs
    def act(i, lastc):
        if bias: a(f"s_add_i32 s68, s68, {bias * nref}")
        if ffb and i >= ffb_from: a(f"s_and_b32 s69, s98, {ffb * nref}\ns_add_i32 s68, s68, s69")
        if fin and lastc:
            a(f"s_add_i32 s69, s68, {fin[2] * nref}\ns_max_i32 s69, s69, 0\ns_min_u32 s69, s69, 0x1000\ns_mul_i32 s69, s69, {int(fin[1]*655.36/nref)}\ns_lshr_b32 s69, s69, 16\ns_sub_u32 s62, {4*PH}, s69")
        else:
            a(f"s_max_i32 s69, s68, 0\ns_min_u32 s69, s69, 0x4000\ns_mul_i32 s69, s69, {int(gb*655.36/nref)}\ns_lshr_b32 s69, s69, 16\ns_add_u32 s62, s69, {i+1}")
        a(f"s_sub_i32 s69, 0, s68\ns_max_i32 s69, s69, 0\ns_min_u32 s69, s69, 0x4000\ns_mul_i32 s69, s69, {int(gs*655.36/nref)}\ns_lshr_b32 s69, s69, 16\ns_add_u32 s63, s69, {i+1}")
    k0 = 1 if ph0 <= setup_at else 0
    cpts = [c for c in range(ph0 + k0 * E + dl + dw, 4 * PH - 4, E)]
    for i in range(4 * PH):
        while consumed[0] < i - NB:
            n0 = len(items); run_items(1); assert len(items) < n0, "ring stall"
        so = address(i)
        if ctl and i > cpts[0]:
            last = fin and i > cpts[-1]
            wait_vm(ld_idx[i - (fin[0] if last else ctl[0])])
            n = [len(vm) - 1 - ld_idx[i - d] for d in ctl]
            go = a.lab("go")
            a(f"s_cmpk_{'le' if last else 'gt'}_u32 s62, {i}\ns_cbranch_scc1 {go}\ns_waitcnt vmcnt({n[1]})")
            a(f"s_cmpk_le_u32 s63, {i}\ns_cbranch_scc1 {go}\ns_waitcnt vmcnt({n[2]})\n{go}:")
        else:
            d = depth
            for (frm, dd) in (dsched or ()):
                if i >= frm: d = dd
            if i >= d: wait_vm(ld_idx[i - d])
        issue(i, so)
        if i == depth - 1:
            a("s_load_dwordx2 s[40:41], s[0:1], 88\ns_barrier\ns_branch L_stream"); aux_start(); a("L_stream:"); stamp(0); setup1()
        if i == 2 * depth - 1: setup2()
        if i == setup_at: setup3()
        if ctl:
            k, m = divmod(i - ph0, E)
            if ph0 + k * E + dl + dw in cpts:
                lastc = ph0 + k * E + dl + dw == cpts[-1]
                w = 0 if k == k0 else (fin[3] if fin and lastc else ex)
                if m == dl + dw - 1 and w: a("s_memrealtime s[74:75]")
                if m == 0: a("s_memrealtime s[60:61]")
                if m == 1:
                    sk = a.lab("ref")
                    a(f"s_cmp_lg_u32 s64, 0\ns_cbranch_scc1 {sk}_r\n{sk}:")
                    cold.append(f"{sk}_r:\ns_waitcnt lgkmcnt(0)\nv_mov_b32 v6, s60\nv_mov_b32 v7, s77\nv_mov_b32 v8, s60\nv_mov_b32 v9, s77\ns_mov_b64 exec, 0xff\n"
                                f"buffer_store_dwordx4 v[6:9], v15, {sWS}, s65 offen offset:{128*k} sc0 sc1\ns_mov_b64 exec, -1\ns_branch {sk}")
                if m == dl:
                    for q in range(nref): a(f"s_load_dwordx2 s[{44+2*q}:{45+2*q}], s[66:67], {q*RS + 128*k}")
                if m == dl + dw:
                    a("s_waitcnt lgkmcnt(0)\ns_mov_b32 s68, 0")
                    for q in range(nref):
                        a(f"s_sub_u32 s69, s60, s{44+2*q}\ns_cmp_eq_u32 s{45+2*q}, s77\ns_cselect_b32 s69, s69, {-14*dl}\ns_add_u32 s68, s68, s69")
                    if ex or fin:
                        a(f"s_mul_i32 s69, s60, {nref}\ns_sub_u32 s69, s69, s68\ns_sub_u32 s76, s69, s2\ns_mov_b32 s2, s69")
                    if w:
                        a(f"s_mul_i32 s96, s76, {round(256 * (dl + dw - 1) / E)}\ns_lshr_b32 s96, s96, 8\ns_sub_u32 s69, s74, s60\ns_mul_i32 s69, s69, {nref}")
                        a(f"s_sub_i32 s69, s69, s96\ns_mul_i32 s69, s69, {w}\ns_ashr_i32 s69, s69, 4\ns_add_i32 s68, s68, s69")
                    act(i, lastc)
            for c in cpts[1:]:
                for d in (fmids if c == cpts[-1] else mids):
                    if i == c + d - 1: a("s_memrealtime s[74:75]")
                    if i == c + d:
                        a(f"s_mul_i32 s96, s76, {round(256 * (dl + dw - 1 + d) / E)}\ns_lshr_b32 s96, s96, 8\ns_add_u32 s96, s96, s2")
                        a(f"s_waitcnt lgkmcnt(0)\ns_mul_i32 s68, s74, {nref}\ns_sub_u32 s68, s68, s96")
                        act(i, c == cpts[-1])
        if i in set(bw or ()) | set(bg or ()): a(f"v_mov_b32 v9, {i}\nds_write_b32 v61, v9 offset:{PRG + 12}")
        for gi in [k for k, g in enumerate(gates) if g == i]:
            a(f"s_mov_b64 exec, 1\nds_write_b32 v61, v5 offset:{PRG + 4*gi}\ns_mov_b64 exec, -1")
        if early:
            el = list(early)
            if i in el: stamp(4 + el.index(i))
        elif i in (34, 68, 102, 136, 170, 204, 238): stamp(3 + i // 34)
        if i == ml0: ml_issue(0)
        if i == ml1: ml_issue(1)
        if i >= P - 1: run_items(budget)
    run_items(0, force=True)
    if bell:
        a(f"s_cmp_eq_u32 s71, 0\ns_cbranch_scc1 L_sdone\ns_cmp_ge_u32 s99, {8*nc}\ns_cbranch_scc1 L_sdone")
        a(f"s_lshr_b32 s96, s6, 5\ns_bfe_u32 s97, s6, 0x20003\ns_lshl_b32 s97, s97, 3\ns_add_u32 s97, s97, s96\ns_cmp_ge_u32 s97, 27\ns_cbranch_scc1 L_sdone")
        a(f"s_and_b32 s97, s96, 3\ns_lshl_b32 s97, s97, 10\ns_lshr_b32 s96, s96, 2\ns_mul_i32 s96, s96, {nc*cs}\ns_add_u32 s96, s96, s97")
        a(f"s_bfe_u32 s97, s99, {3 | ((nc.bit_length() - 1) << 16)}\ns_mul_i32 s97, s97, {cs}\ns_add_u32 s96, s96, s97\ns_add_u32 s96, s96, {BELL}")
        a("s_add_u32 s66, s40, s96\ns_addc_u32 s67, s41, 0")
        a("L_sb:")
        for q in range(8): a(f"s_load_dword s{44+2*q}, s[66:67], {128*q} glc")
        a("s_sub_u32 s79, s79, 1\ns_cbranch_scc1 L_sdone\ns_waitcnt lgkmcnt(0)")
        for q in range(8): a(f"s_cmp_lg_u32 s{44+2*q}, s77\ns_cbranch_scc1 L_sb")
        a(f"ds_write_b32 v61, v5 offset:{HEARD}\nL_sdone:")
    dump_stamps()
    a("s_endpgm")
    flush_cold()

    a("L_aux:")
    a("s_getreg_b32 s78, hwreg(HW_REG_XCC_ID, 0, 4)")
    srd_tail(52, 4096 * 640 * 2); srd_tail(56, 640 * 1728 * 2); srd_tail(60, 640 * 1728 * 2); srd_tail(64, 1728 * 640 * 2); srd_tail(68, 2560)
    a("v_and_b32 v68, 7, v1"); half_masks(64, 68, 69)
    mask64(88, 0xFF00FF00FF00FF00)
    a(f"s_mov_b32 s92, {hx(f2u(1/640))}\ns_mov_b32 s93, {hx(f2u(1e-5))}")
    a("s_lshl_b32 s7, s76, 8\nv_lshl_add_u32 v97, v6, 4, s7\nv_lshl_add_u32 v101, v7, 11, v97")
    a(f"s_lshl_b32 s84, s6, 10\ns_add_u32 s84, s84, {QP}\ns_lshl_b32 s85, s74, 13\ns_add_u32 s85, s85, {QP}\nv_add_u32 v102, {QPB - QP}, v101")
    a("v_bfe_u32 v103, v1, 3, 1\nv_lshlrev_b32 v103, 7, v103\nv_and_b32 v70, 22, v1\nv_or_b32 v103, v103, v70\nv_lshrrev_b32 v70, 5, v1\nv_lshl_or_b32 v103, v70, 3, v103")
    a("s_lshl_b32 s7, s76, 5\nv_add_lshl_u32 v103, v103, s7, 1\nv_and_b32 v98, 3, v1\nv_lshlrev_b32 v98, 3, v98")
    a("s_waitcnt lgkmcnt(0)")
    for n, p in ((52, 16), (56, 20), (60, 22), (64, 24), (68, 26), (40, 30)): a(f"s_mov_b64 s[{n}:{n+1}], s[{p}:{p+1}]")
    a("s_load_dword s77, s[40:41], 0")
    stamp(0)
    a("s_lshr_b32 s7, s73, 3\ns_and_b32 s39, s75, 3\ns_cbranch_scc0 L_role2")
    a("s_sub_u32 s39, s75, 1\ns_lshl_b32 s39, s39, 2\ns_add_u32 s39, s39, s7\ns_cmp_lt_u32 s39, 10\ns_cselect_b32 s38, 1, 0\ns_branch L_role")
    a("L_role2:\ns_lshl_b32 s39, s7, 3\ns_add_u32 s39, s39, s72\ns_cmp_lt_u32 s39, 27\ns_cselect_b32 s38, 2, 0\ns_lshl_b32 s39, s39, 1\ns_lshr_b32 s7, s75, 2\ns_add_u32 s39, s39, s7")
    a("L_role:")
    a(f"s_waitcnt vmcnt({5 if wqfirst == 1 else 10})")
    for i in range(10): unpack(44 + 2 * i, 45 + 2 * i, 8 + i)
    def red32(v):
        for k in (8, 4, 2, 1): a(f"v_add_f32_dpp v{v}, v{v}, v{v} row_ror:{k} {DPPM}")
        rows_allreduce("v_add_f32", v, 71, both=False)
    pk("add", 8, 44, 46)
    for i in range(2, 10): pk("add", 8, 8, 44 + 2 * i)
    a("v_add_f32 v8, v8, v9"); red32(8)
    a("v_mul_f32 v8, s92, v8")
    for i in range(10): a(f"v_pk_add_f32 v[{44+2*i}:{45+2*i}], v[{44+2*i}:{45+2*i}], v[8:9] op_sel_hi:[1,0] neg_lo:[0,1] neg_hi:[0,1]")
    pk("mul", 10, 44, 44)
    for i in range(1, 10): a(f"v_pk_fma_f32 v[10:11], v[{44+2*i}:{45+2*i}], v[{44+2*i}:{45+2*i}], v[10:11]")
    a("v_add_f32 v10, v10, v11"); red32(10)
    a("v_mul_f32 v10, s92, v10")
    bfr(10, 10); bfr(8, 8); a("v_add_f32 v10, s93, v10"); bfr(10, 10); a("v_sqrt_f32 v10, v10"); bfr(10, 10); a("v_rcp_f32 v10, v10")
    a("v_readlane_b32 s80, v8, 0\nv_readlane_b32 s81, v8, 32\nv_readlane_b32 s82, v10, 0\nv_readlane_b32 s83, v10, 32")
    a("v_mov_b32 v8, s80\nv_mov_b32 v9, s81\nv_mov_b32 v10, s82\nv_mov_b32 v11, s83")
    a("v_cndmask_b32 v8, v8, v9, s[88:89]\nv_cndmask_b32 v10, v10, v11, s[88:89]")
    a(f"s_waitcnt vmcnt({0 if wqfirst else 5})")
    for i in range(5): a(f"v_lshlrev_b32 v{18+i}, 16, v{18+i}\nv_sub_f32 v{18+i}, v{18+i}, v8")
    for i in range(5): bfr(18 + i, 18 + i)
    for i in range(5): a(f"v_mul_f32 v{18+i}, v{18+i}, v10\nv_cvt_pk_bf16_f32 v{18+i}, v{18+i}, v{18+i}")
    for i in range(6):
        if i < 5:
            for r in range(4): a(f"v_and_b32 v{44+4*i+r}, v{18+i}, v{64+r}")
        if i: a(f"s_waitcnt vmcnt({5-i})"); mfma(72, 20 + 4 * i, 40 + 4 * i, i == 1)
    a("v_mov_b32 v61, 0\ns_waitcnt lgkmcnt(0)"); next_tag()
    a("s_add_u32 s83, s77, s78\ns_add_u32 s83, s83, 1")
    a(f"ds_write_b128 v96, v[72:75] offset:{QRED}")
    def qfields(t): return f"v_lshrrev_b32 v99, v98, {t}\n" + "\n".join(f"v_bfe_u32 v{104+k}, v99, {2*k}, 2" for k in range(4))
    qtag = "\n".join(f"v_bfi_b32 v{76+k}, 3, v{104+k}, v{76+k}" for k in range(4))
    a(qfields("s83"))
    L = loop("qred")
    for w in range(4): a(f"ds_read_b128 v[{76+4*w}:{79+4*w}], v97 offset:{QRED + 1024*w}")
    a("s_waitcnt lgkmcnt(0)"); add4(76, 76, 80); add4(84, 84, 88); add4(76, 76, 84); nan4(76, 80); retry(L)
    a(qtag)
    a(f"s_mov_b64 exec, 0xffff\nbuffer_store_dwordx4 v[76:79], v97, {sWS}, s84 offen\ns_mov_b64 exec, -1\ns_add_u32 s84, s84, {QPB - QP}\ns_mov_b32 s87, 0")
    stamp(1)
    if qpre: a(f"s_sleep {qpre}")
    a("v_mov_b32 v15, v101\ns_mov_b32 s7, s83")
    L = loop("qg")
    for k in range(2): a(f"buffer_load_dwordx4 v[{80+4*k}:{83+4*k}], v15, {sWS}, s85 offen offset:{1024*k} sc1")
    a("s_waitcnt vmcnt(0)")
    for k in range(8): untag(80 + k, 104 + (k & 3))
    a("v_or3_b32 v88, v80, v81, v82\nv_or3_b32 v88, v88, v83, v84\nv_or3_b32 v88, v88, v85, v86\nv_or_b32 v88, v88, v87\nv_and_b32 v88, 3, v88\nv_cmp_ne_u32 vcc, 0, v88")
    a(f"s_cbranch_vccnz {L}_r\n{L}_d:")
    cold.append(f"{L}_r:\ns_sleep {qsleep}\ns_add_u32 s87, s87, 1\ns_cmp_lg_u32 s87, {qB}\ns_cbranch_scc1 {L}_s\n{qfields('s77')}\n{qtag}\n"
                f"s_mov_b64 exec, 0xffff\nbuffer_store_dwordx4 v[76:79], v97, {sWS}, s84 offen sc0 sc1\ns_mov_b64 exec, -1\n"
                f"{L}_s:\ns_cmp_gt_u32 s87, {qB}\ns_cselect_b32 s7, s87, 0\ns_bitcmp1_b32 s7, 0\ns_cselect_b64 vcc, -1, 0\ns_cselect_b32 s7, s77, s83\n"
                f"v_cndmask_b32 v15, v101, v102, vcc\n{qfields('s7')}\ns_sub_u32 s79, s79, 1\ns_cbranch_scc0 {L}\ns_mov_b32 s79, 0\ns_branch {L}_d")
    a(f"s_cmp_lg_u32 s7, s83\ns_cselect_b32 s7, 1, 0\nv_mov_b32 v8, s7\nds_write_b32 v61, v8 offset:{NEAR}")
    add4(80, 80, 84)
    a("v_permlane32_swap_b32 v80, v81\nv_permlane32_swap_b32 v82, v83\nv_add_f32 v80, v80, v81\nv_add_f32 v82, v82, v83\nv_permlane16_swap_b32 v80, v82\nv_add_f32 v80, v80, v82")
    a(f"v_mov_b32_dpp v81, v80 quad_perm:[1,1,3,3] {DPPM}\nv_mov_b32_dpp v82, v80 quad_perm:[0,0,2,2] {DPPM}")
    a(f"v_cvt_pk_bf16_f32 v80, v82, v81\nv_min_u32 v80, -2, v80\nds_write_b32 v103, v80 offset:{QF}")
    stamp(2)
    a("s_mov_b32 s84, s38\ns_mov_b32 s85, s39")
    a("s_cmp_lg_u32 s76, 0\ns_cbranch_scc1 L_noclr\nv_lshlrev_b32 v8, 4, v1")
    if warm: a(f"s_lshl_b32 s7, s6, 9\ns_add_u32 s7, s7, {OP + 0x20000}\ns_mov_b32 exec_hi, 0\nbuffer_load_dwordx4 v[116:119], v8, {sWS}, s7 offen\ns_mov_b64 exec, -1")
    a(f"s_cmp_lg_u32 s84, 2\ns_cbranch_scc1 L_clr3\ns_mul_i32 s7, s85, 2560\ns_add_u32 s7, s7, {DP}")
    for k in range(0 if noclr else 3): a(("s_mov_b32 exec_hi, 0\n" if k == 2 else "") + f"buffer_store_dwordx4 v[112:115], v8, {sWS}, s7 offen offset:{1024*k} sc0 sc1")
    for r in range(4): a(f"v_mov_b32 v{120+r}, s77")
    a(f"s_lshl_b32 s7, s85, 7\ns_add_u32 s7, s7, {PF}\ns_mov_b64 exec, 0xff\ns_waitcnt vmcnt(0)\nbuffer_store_dwordx4 v[120:123], v8, {sWS}, s7 offen sc0 sc1\ns_mov_b64 exec, -1")
    a("L_clr3:\ns_waitcnt vmcnt(0)")
    a("L_noclr:")
    a("s_mov_b32 s90, 0x05040100\ns_mov_b32 s91, 0x07060302\ns_mov_b32 s98, 0")
    a("v_and_b32 v8, 1, v1\nv_mul_u32_u24 v8, 0xaaaa, v8\nv_or_b32 v60, 0x4444, v8")
    a("s_cmp_eq_u32 s84, 2\ns_cbranch_scc1 L_ffn\ns_cmp_eq_u32 s84, 1\ns_cbranch_scc1 L_wo")
    if bell:
        a("s_cmp_lg_u32 s73, 27\ns_cbranch_scc1 L_done\ns_cmp_lg_u32 s76, 1\ns_cbranch_scc1 L_done")
        a(f"v_and_b32 v2, 31, v1\nv_lshlrev_b32 v2, 9, v2\ns_lshl_b32 s94, s72, 14\ns_add_u32 s94, s94, {OP + 0x20000}")
        a(f"v_bfe_u32 v3, v1, 3, 2\nv_lshlrev_b32 v3, 10, v3\nv_lshrrev_b32 v9, 5, v1\nv_mul_u32_u24 v9, {nc*cs}, v9\nv_add_u32 v3, v3, v9\nv_and_b32 v9, 7, v1\nv_lshl_add_u32 v3, v9, 4, v3")
        for m in range(nc): a(f"s_lshl_b32 s{80+m}, s72, 7\ns_add_u32 s{80+m}, s{80+m}, {BELL + m*cs}")
        for r in range(4): a(f"v_mov_b32 v{12+r}, s77")
        wait_lds(CNT + 4, 3, 4)
        a("s_mov_b32 exec_hi, 0")
        L = loop("bw")
        a(f"buffer_load_dword v9, v2, {sWS}, s94 offen sc1\ns_waitcnt vmcnt(0)\nv_xor_b32 v9, s77, v9"); tag_test(9); retry(L)
        if ring: a(f"s_sleep {ring}")
        a("s_mov_b64 exec, -1")
        for m in range(nc): a(f"buffer_store_dwordx4 v[12:15], v3, {sWS}, s{80+m} offen sc0 sc1")
        stamp(3)
        a("L_done:")
    if probe:
        (opa, wa, ia), (opb, wb, ib), k = probe
        a("s_cmp_lg_u32 s6, 255\ns_cbranch_scc1 L_noprobe\ns_cmp_lg_u32 s76, 1\ns_cbranch_scc1 L_noprobe")
        a("L_pw:\ns_sleep 32\ns_memrealtime s[96:97]\ns_waitcnt lgkmcnt(0)\ns_sub_u32 s96, s96, s8\ns_cmp_lt_u32 s96, 6000\ns_cbranch_scc1 L_pw\nv_lshlrev_b32 v8, 9, v1")
        def red(dst, op, w0, idx):
            for q in range(4):
                a(f"s_mov_b32 s7, {DIAG + q * 32768}")
                for w in range(4): a(f"buffer_load_dword v{64 + 4*q + w}, v8, {sWS}, s7 offen offset:{64*(w0 + (w if w0 == 4 else 0)) + 4*idx} sc1")
            a("s_waitcnt vmcnt(0)")
            for r in range(16): a(f"v_subrev_u32 v{64+r}, s8, v{64+r}")
            ins = {"min": "v_min_i32", "max": "v_max_i32", "mean": "v_add_u32"}[op]
            for r in range(1, 16): a(f"{ins} v64, v64, v{64+r}")
            for kk in (8, 4, 2, 1): a(f"{ins}_dpp v64, v64, v64 row_ror:{kk} {DPPM}")
            rows_allreduce(ins, 64, 65)
            a(f"v_readfirstlane_b32 s{dst}, v64")
            if op == "mean": a(f"s_ashr_i32 s{dst}, s{dst}, 10")
        red(94, opa, wa, ia); red(95, opb, wb, ib)
        a(f"s_sub_i32 s95, s94, s95\ns_sub_i32 s95, s95, {poff}\ns_mul_i32 s95, s95, {k}\ns_add_i32 s95, s95, 7000\ns_min_u32 s95, s95, 60000")
        a("L_pw2:\ns_sleep 2\ns_memrealtime s[96:97]\ns_waitcnt lgkmcnt(0)\ns_sub_u32 s96, s96, s8\ns_cmp_lt_u32 s96, s95\ns_cbranch_scc1 L_pw2\nL_noprobe:")
    dump_stamps()
    a("s_endpgm")
    flush_cold()

    def staged(nbatch, nld, win, load_fn, finish_fn):
        n = nbatch * nld
        for i in range(n + win):
            if i >= win:
                a(f"s_waitcnt vmcnt({min(n, i) - (i - win) - 1})")
                if (i - win + 1) % nld == 0: finish_fn((i - win) // nld, ((i - win) // nld) & 1)
            if i < n: load_fn(i // nld, i % nld, (i // nld) & 1)
    def bursts(steps, nbatch, nld, load_fn, finish_fn):
        per = nbatch // len(steps)
        for n, st in enumerate(steps):
            L = loop("burst")
            a(f"ds_read_b32 v8, v61 offset:{PRG + 12}\ns_waitcnt lgkmcnt(0)\nv_cmp_gt_i32 vcc, {st}, v8"); retry(L, 2)
            for k in range(per):
                for e in range(nld): load_fn(n * per + k, e, k)
            for k in range(per):
                a(f"s_waitcnt vmcnt({(per - 1 - k) * nld})"); finish_fn(n * per + k, k)

    a("L_wo:")
    a("s_lshl_b32 s80, s72, 2\ns_add_u32 s80, s80, s76\ns_lshl_b32 s7, s80, 7\nv_lshrrev_b32 v8, 5, v1\nv_lshl_add_u32 v8, v8, 4, s7")
    a("v_bfe_u32 v9, v1, 4, 1\nv_lshl_add_u32 v8, v9, 1, v8\nv_mul_u32_u24 v8, 1280, v8\ns_lshl_b32 s7, s85, 7\nv_lshl_add_u32 v9, v6, 3, s7\nv_add_u32 v2, v8, v9")
    def wo_load(k, n, slot):
        i, u, e = k >> 1, 2 * (k & 1) + (n >> 1), n & 1
        reg = 64 + slot * 8 + n * 2
        a(f"s_mov_b32 s7, {(64*(u >> 1) + (u & 1) + 32*(i >> 1) + 4*(i & 1) + 8*e) * 1280}\nbuffer_load_dwordx2 v[{reg}:{reg+1}], v2, {sWO}, s7 offen nt")
    def wo_finish(k, slot):
        for p in range(2):
            i, u, t = k >> 1, 2 * (k & 1) + p, 64 + slot * 8 + p * 4
            for q in range(4): a(f"v_perm_b32 v{128 + (i*2 + (q >> 1))*8 + 2*u + (q & 1)}, v{t + 2 + (q>>1)}, v{t + (q>>1)}, s{90 + (q&1)}")
    if bw: bursts(bw, 8, 4, wo_load, wo_finish)
    else: staged(8, 4, wo_w, wo_load, wo_finish)
    stamp(3)
    tag_field(58, 1); a("s_movk_i32 s97, 0xfff")
    a(f"s_lshl_b32 s94, s80, 12\ns_add_u32 s94, s94, {OP}\nv_lshlrev_b32 v59, 4, v6\nv_lshl_or_b32 v2, v7, 10, v59")
    a(f"v_add_u32 v5, {RED}, v59\ns_lshl_b32 s7, s76, 8\nv_add_u32 v3, s7, v5")
    a(f"s_mul_i32 s95, s72, 2560\ns_lshl_b32 s7, s85, 8\ns_add_u32 s95, s95, s7\ns_add_u32 s95, s95, {YP}")
    wait_lds(PRG, 1, 8)
    a("L_wo_b:")
    stamp(4)
    for r in (96, 98, 100, 102): zero2(r)
    L = loop("h1")
    for k, off in enumerate((0, 512, 256, 768)): a(f"buffer_load_dwordx4 v[{64+4*k}:{67+4*k}], v2, {sWS}, s94 offen offset:{off} sc1")
    a("s_waitcnt vmcnt(2)"); untag(64, 58); untag(68, 58); tag_acc(80, 64, 68, True); add4(64, 64, 68)
    a("s_waitcnt vmcnt(1)"); untag(72, 58)
    a("s_waitcnt vmcnt(0)"); untag(76, 58); tag_acc(80, 72, 76, False); tag_test(80); add4(68, 72, 76)
    a("s_mov_b64 exec, -1")
    retry(L, gentle=16, pre="s_wqm_b64 exec, vcc\n", post="s_mov_b64 exec, -1\n")
    stamp(5)
    for r in range(4): a(f"v_permlane32_swap_b32 v{64+r}, v{68+r}")
    add4(64, 64, 68)
    a("v_permlane16_swap_b32 v64, v66\nv_permlane16_swap_b32 v65, v67"); pk("add", 64, 64, 66)
    a("v_cvt_pk_bf16_f32 v72, v64, v65")
    def wo_b(i, rs=range(4)):
        for r in rs: a(f"v_mov_b32_dpp v{80+4*i+r}, v72 row_newbcast:{4*i+r} {DPPM}")
    wo_b(0); wo_b(1, (0, 1))
    fill = [(1, (2, 3)), (2, (0, 1)), (2, (2, 3)), (3, (0, 1)), (3, (2, 3))]
    for i in range(4):
        for qq in range(2):
            smf(96 + 4 * qq, 80 + 4 * i, 128 + (i * 2 + qq) * 8)
            if fill: wo_b(*fill.pop(0))
    a("s_cmp_lg_u32 s76, 0\ns_mov_b64 exec, 0xffff\nds_write_b64 v3, v[96:97]\nds_write_b64 v3, v[100:101] offset:8\ns_cbranch_scc1 L_wo_next")
    L = loop("yr")
    for w in range(4): a(f"ds_read_b128 v[{64+4*w}:{67+4*w}], v5 offset:{256*w}")
    for w in range(1, 4):
        a(f"s_waitcnt lgkmcnt({0 if diag and not few else 3-w})"); add4(64, 64, 64 + 4 * w)
    nan4(64, 68); a("v_bfi_b32 v64, s97, v58, v64"); retry(L)
    a(f"buffer_store_dwordx4 v[64:67], v59, {sWS}, s95 offen sc0 sc1")
    stamp(6)
    a("L_wo_next:\ns_mov_b64 exec, -1\ns_cmp_lg_u32 s98, 0\ns_cbranch_scc1 L_wo_end")
    a("s_add_u32 s94, s94, 0x20000\ns_add_u32 s95, s95, 20480\nv_add_u32 v3, 1024, v3\nv_add_u32 v5, 1024, v5\ns_mov_b32 s98, 1\ns_waitcnt vmcnt(0)")
    wait_lds(CNT + 4, 3, 2)
    a("s_branch L_wo_b\nL_wo_end:")
    dump_stamps()
    a("s_endpgm")
    flush_cold()

    GU, DN, HF, AF = 112, 192, 16, 36
    a("L_ffn:")
    a("s_lshl_b32 s7, s85, 5\nv_lshl_add_u32 v8, v7, 2, s7\nv_mul_u32_u24 v8, 1280, v8\ns_lshl_b32 s7, s76, 8\nv_lshl_add_u32 v9, v6, 4, s7\nv_add_u32 v49, v8, v9")
    def dn_block(blk, us=range(4), burst=False):
        def ld(u, e, slot):
            r = 64 + slot * 8 + 4 * e
            a(f"s_mov_b32 s7, {(16*(u >> 1) + 2*(u & 1) + e) * 1280 + 1024*blk}\nbuffer_load_dwordx4 v[{r}:{r+3}], v49, {sWD}, s7 offen nt")
        def fin(u, slot):
            for t in range(4):
                for par in range(2): a(f"v_perm_b32 v{DN + 32*blk + 8*t + 2*u + par}, v{68 + slot*8 + t}, v{64 + slot*8 + t}, s{90+par}")
        if burst:
            for u in us: ld(u, 0, u); ld(u, 1, u)
            for u in us: a(f"s_waitcnt vmcnt({2*(us[-1] - u)})"); fin(u, u)
        elif us: staged(len(us), 2, dn_w, ld, fin)
    dn_block(0, range(4 - late))
    a("s_cmp_lg_u32 s76, 0\ns_cbranch_scc1 L_dn2")
    dn_block(1)
    a(f"L_dn2:\ns_mul_i32 s7, s76, 160\nv_lshrrev_b32 v10, 5, v1\nv_mul_u32_u24 v8, 40, v10\nv_bfe_u32 v9, v1, 4, 1\nv_lshl_add_u32 v8, v9, 2, v8\nv_add_u32 v8, s7, v8")
    a("v_mul_u32_u24 v8, 3456, v8\ns_lshl_b32 s7, s85, 6\nv_lshl_add_u32 v9, v6, 2, s7\nv_add_u32 v2, v8, v9")
    def gu_load(k, n, slot):
        (m, i), u, e = divmod(k, 5), n >> 1, n & 1
        row = 80*(u >> 1) + 8*i
        if e == 0: a(f"s_mov_b32 s7, {(row + 2*(u & 1)) * 3456}")
        a(f"buffer_load_dword v{64 + slot*8 + n}, v2, {sWU if m else sWG}, s7 offen offset:{3456*e} nt")
    def gu_finish(k, slot):
        m, i = divmod(k, 5)
        for u in range(4):
            for par in range(2): a(f"v_perm_b32 v{GU + (i*2 + par)*8 + 2*u + m}, v{65 + slot*8 + 2*u}, v{64 + slot*8 + 2*u}, s{90+par}")
    if bg: bursts(bg, 10, 8, gu_load, gu_finish)
    else: staged(10, 8, gu_w, gu_load, gu_finish)
    stamp(3)
    a("s_cmp_lt_u32 s85, 40\ns_cselect_b32 s87, s76, 0\ns_cmp_lg_u32 s87, 3\ns_cbranch_scc1 L_pf2")
    a(f"v_min_u32 v9, 53, v1\nv_lshlrev_b32 v9, 7, v9\ns_mov_b32 s7, {PF}")
    L = loop("pf")
    a(f"buffer_load_dword v8, v9, {sWS}, s7 offen sc1\ns_waitcnt vmcnt(0)\nv_cmp_ne_u32 vcc, s77, v8"); retry(L, 16)
    a("L_pf2:\ns_mul_i32 s7, s76, 40\nv_mul_u32_u24 v8, 10, v7\nv_add3_u32 v8, v8, v6, s7")
    tag_field(4, 8)
    a(f"v_lshlrev_b32 v2, 4, v8\nv_lshlrev_b32 v3, 3, v8\nv_cmp_gt_u32 vcc, 10, v6\nv_add_u32 v5, {HTAB}, v2\nv_mov_b32 v11, {DUMP - 2560}\nv_cndmask_b32 v5, v11, v5, vcc")
    a(f"buffer_load_dwordx2 v[46:47], v3, {sX}, 0 offen\nbuffer_load_dwordx2 v[44:45], v3, {sX}, 0 offen offset:1280")
    a(f"s_lshl_b32 s7, s76, 3\ns_add_u32 s7, s7, {STAT + 4}\nv_and_b32 v8, 4, v1\nv_sub_u32 v50, s7, v8\nv_cmp_gt_u32 vcc, 16, v1\nv_cndmask_b32 v50, v11, v50, vcc\nv_mov_b32 v51, {STAT}")
    a(f"s_lshl_b32 s7, s76, 8\ns_add_u32 s7, s7, {RED}\nv_lshl_add_u32 v52, v6, 4, s7\nv_lshl_add_u32 v52, v7, 11, v52")
    a(f"v_and_b32 v11, 7, v1\nv_lshl_add_u32 v8, v7, 3, v11\nv_lshlrev_b32 v8, 3, v8\nv_add_u32 v53, {RED}, v8")
    a("s_lshl_b32 s7, s76, 8\ns_add_u32 s7, s7, 1280\nv_lshl_add_u32 v54, v6, 4, s7\nv_mul_u32_u24 v8, 1280, v7\nv_sub_u32 v54, v54, v8")
    half_masks(12, 11, 8)
    for r in range(4): a(f"v_and_b32 v{12+r}, 0x3f803f80, v{12+r}")
    for r in range(20): a(f"v_mov_b32 v{HF+r}, 0x3f803f80")
    a(f"v_lshrrev_b32 v8, 2, v1\nv_mul_u32_u24 v9, 2560, v8\nv_and_b32 v10, 3, v1\nv_lshl_add_u32 v55, v10, 4, v9\ns_lshl_b32 s7, s85, 6\nv_add_u32 v55, s7, v55")
    a(f"v_cmp_gt_u32 vcc, 6, v8\nv_mov_b32 v10, {hx(OOB)}\nv_cndmask_b32 v56, v10, v55, vcc")
    a("v_and_b32 v8, 16, v1\nv_or_b32 v8, v8, v11\nv_lshrrev_b32 v9, 5, v1\nv_lshl_or_b32 v8, v9, 3, v8")
    a(f"s_lshl_b32 s7, s85, 5\nv_add_u32 v8, s7, v8\nv_lshlrev_b32 v57, 1, v8\nv_lshlrev_b32 v58, 2, v8\nv_add_u32 v58, {HTAB}, v58")
    for k in range(4): a(f"s_mov_b32 s{80+k}, {YP + 5120*k}")
    mask64(50, 0x03FF03FF03FF03FF); mask64(4, 0x00FF00FF00FF00FF); mask64(88, 0xFFFFFFFF)
    for k in (32, 33, 34, 35, 95, 97): a(f"s_mov_b32 s{k}, {hx(OOB)}")
    c1 = -2.0 * 0.7978845608028654 * 1.4426950408889634
    a(f"s_mov_b32 s96, {hx(f2u(c1 * 0.044715))}\nv_mov_b32 v59, {hx(f2u(c1))}")
    a("s_waitcnt vmcnt(0)"); unpack(40, 41, 46); unpack(42, 43, 47)
    for r in (96, 98, 100, 102): zero2(r)
    wait_lds(PRG + 4, 1, 8)
    a("L_ffn_b:")
    stamp(4)
    a("s_mov_b64 exec, s[50:51]")
    L = loop("h2")
    for k in range(8): a(f"buffer_load_dwordx4 v[{64+4*k}:{67+4*k}], v2, {sWS}, s{80+(k>>1)} offen offset:{2560*(k&1)} sc1")
    for k in range(8):
        a(f"s_waitcnt vmcnt({7-k})"); untag(64 + 4 * k, 4); add4(108, 108 if k else 40, 64 + 4 * k)
        if k & 1: tag_acc(8, 60 + 4 * k, 64 + 4 * k, k == 1)
    tag_test(8)
    a("v_cvt_pk_bf16_f32 v10, v108, v109\nv_cvt_pk_bf16_f32 v11, v110, v111")
    retry(L, gentle=16)
    a("s_mov_b64 exec, -1")
    stamp(5)
    def gu_b(i, rs=range(4)):
        for r in rs: a(f"v_mov_b32_dpp v{HF+4*i+r}, v{10+(r&1)} row_newbcast:{2*i+(r>>1)} row_mask:0xf bank_mask:0x5")
    gu_b(0); gu_b(1, (0, 1))
    fill = [F(gu_b, 1, (2, 3))] + [F(gu_b, i, rs) for i in (2, 3, 4) for rs in ((0, 1), (2, 3))]
    fill += [F(a, "ds_write_b128 v5, v[108:111]")] + [F(a, f"v_mov_b64 v[{64+8*k}:{65+8*k}], 0\nv_mov_b64 v[{68+8*k}:{69+8*k}], 0") for k in range(4)]
    for i in range(5):
        for q in range(3):
            if q == 0: mfma(104, HF + 4 * i, HF + 4 * i, i == 0)
            else: smf(92 + 4 * q, HF + 4 * i, GU + (i * 2 + q - 1) * 8)
            if fill: fill.pop(0)()
    a("s_mov_b64 exec, s[88:89]\nds_write_b32 v50, v104\nds_write_b64 v52, v[96:97]\nds_write_b64 v52, v[100:101] offset:8\ns_mov_b64 exec, -1")
    stamp(6)
    L = loop("gr")
    a("ds_read_b128 v[104:107], v51\nds_read_b128 v[108:111], v51 offset:16")
    a("ds_read2_b64 v[96:99], v53 offset0:0 offset1:32\nds_read2_b64 v[100:103], v53 offset0:64 offset1:96")
    a(f"s_waitcnt lgkmcnt({0 if diag and not few else 2})"); add4(104, 104, 108); pk("add", 104, 104, 106)
    a("v_mul_f32 v104, s92, v104\nv_mul_f32 v105, s92, v105\nv_fma_f32 v105, -v104, v104, v105\nv_max_f32 v106, 0, v105\nv_add_f32 v106, s93, v106\nv_rsq_f32 v106, v106")
    a("s_waitcnt lgkmcnt(0)"); add4(96, 96, 100); pk("add", 96, 96, 98)
    a("v_add_f32 v105, v105, v96\nv_cmp_u_f32 vcc, v105, v97\ns_cmp_eq_u32 s98, 0")
    retry(L, post="s_cmp_eq_u32 s98, 0\n")
    a("s_cbranch_scc1 L_cs\nL_csd:")
    cold.append("L_cs:\nv_add_u32 v8, 2048, v53\nds_read2_b64 v[100:103], v8 offset0:0 offset1:32\nds_read2_b64 v[108:111], v8 offset0:64 offset1:96\ns_waitcnt lgkmcnt(0)\n"
                "v_pk_add_f32 v[100:101], v[100:101], v[102:103]\nv_pk_add_f32 v[108:109], v[108:109], v[110:111]\nv_pk_add_f32 v[62:63], v[100:101], v[108:109]\ns_branch L_csd")
    a("v_pk_fma_f32 v[96:97], v[62:63], v[104:105], v[96:97] op_sel_hi:[1,0,1] neg_lo:[0,1,0] neg_hi:[0,1,0]")
    a("v_pk_mul_f32 v[96:97], v[96:97], v[106:107] op_sel_hi:[1,0]")
    a("v_mul_f32 v98, v96, v96\nv_fma_f32 v98, v98, s96, v59\nv_mul_f32 v98, v98, v96\nv_exp_f32 v98, v98\nv_mul_f32 v96, v96, v97")
    a("v_add_f32 v98, 1.0, v98\nv_rcp_f32 v98, v98\nds_read_b32 v48, v58\nv_mul_f32 v96, v96, v98\ns_cmp_eq_u32 s98, 0")
    a(f"v_mov_b32_dpp v97, v96 quad_perm:[1,1,3,3] {DPPM}\nv_cvt_pk_bf16_f32 v96, v96, v97")
    def dn_a(bank): return "\n".join(f"v_mov_b32_dpp v{AF+r}, v96 row_newbcast:{2*r} row_mask:0xf bank_mask:{bank}" for r in range(4))
    a("s_cbranch_scc1 L_keep\nL_kept:\ns_cmp_lg_u32 s76, 0")
    cold.append("L_keep:\n" + dn_a("0xa") + "\ns_branch L_kept")
    a(dn_a("0x5"))
    for t in range(4): smf(64 + 4 * t, AF, DN + 8 * t)
    a("s_cbranch_scc1 L_dn3")
    for t in range(4, 8): smf(64 + 4 * t, AF, DN + 8 * t)
    a("L_dn3:\ns_mov_b32 exec_hi, 0")
    for blk in range(2):
        if blk: a("s_cbranch_scc1 L_dn4")
        for t in range(4): a(f"v_cvt_pk_bf16_f32 v{96+4*blk+t}, v{64+16*blk+4*t}, v{65+16*blk+4*t}")
        a(f"buffer_store_dwordx4 v[{96+4*blk}:{99+4*blk}], v54, {sWS}, s95 offen offset:{1024*blk} sc0 sc1")
    a("L_dn4:\ns_mov_b64 exec, -1")
    stamp(7)
    a("s_cmp_lg_u32 s87, 3\ns_cbranch_scc1 L_ffn_next")
    if pre3: a(f"s_sleep {pre3}")
    L = loop("h3")
    for k in range(4): a(f"buffer_load_dwordx4 v[{64+4*k}:{67+4*k}], {'v56' if k == 3 else 'v55'}, {sWS}, s{32+k} offen sc1")
    for k in range(4):
        a(f"s_waitcnt vmcnt({3-k})" + (" lgkmcnt(0)" if k == 0 else "")); mfma(80, 64 + 4 * k, 12, k == 0)
    a("v_permlane32_swap_b32 v80, v81\nv_permlane32_swap_b32 v82, v83\nv_add_f32 v80, v80, v81\nv_add_f32 v82, v82, v83\nv_cmp_u_f32 vcc, v80, v82")
    a("v_permlane16_swap_b32 v80, v82\nv_add_f32 v80, v80, v48\nv_add_f32 v80, v80, v82")
    retry(L)
    stamp(8)
    a(f"v_cvt_pk_bf16_f32 v80, v80, v80\ns_mov_b64 exec, s[4:5]\nbuffer_store_short v80, v57, {sOUT}, s97 offen\ns_mov_b64 exec, -1")
    stamp(9)
    a("s_cmp_lg_u32 s85, 0\ns_cbranch_scc1 L_ffn_next")
    a(f"v_mov_b32 v8, s77\ns_mov_b64 exec, 1\nbuffer_store_dword v8, v61, {sWS}, s97 offen\ns_mov_b64 exec, -1")
    a("L_ffn_next:\ns_cmp_lg_u32 s98, 0\ns_cbranch_scc1 L_ffn_end")
    for k in range(4): a(f"s_add_u32 s{80+k}, s{80+k}, 20480\ns_mov_b32 s{32+k}, {DP + 40960*k}")
    a(f"s_mul_i32 s95, s85, 2560\ns_add_u32 s95, s95, {DP}\ns_mov_b32 s97, 0\ns_mov_b32 s98, 1\ns_mov_b32 s88, 0xffff")
    a("v_add_u32 v5, 2560, v5\nv_add_u32 v50, 128, v50\nv_add_u32 v51, 128, v51\nv_add_u32 v52, 1024, v52\nv_add_u32 v53, 1024, v53")
    unpack(40, 41, 44); unpack(42, 43, 45)
    for r in (96, 98, 100, 102): zero2(r)
    if oflag: wait_lds(PRG + 8, 1, 1)
    else: wait_lds(CNT + 4, 3, 2)
    if late:
        a("s_waitcnt vmcnt(0)" + ("" if oflag else "\ns_sleep 2")); dn_block(0, range(4 - late, 4), True); stamp(3)
    if bell:
        wait_lds(HEARD, 1, 0)
        if pre2: a(f"s_sleep {pre2}")
    a("s_branch L_ffn_b\nL_ffn_end:")
    dump_stamps()
    a("L_exit:\ns_endpgm")
    flush_cold()
    a("L_code_end:")

    hdr = open("cdna_kernels/" + NAME + ".s.ref").read().split("; Override launch")[0]
    out = [hdr.rstrip(), f"; @launch grid=(256,1,1) block=(512,1,1) lds={LDSZ}", '.amdgcn_target "amdgcn-amd-amdhsa--gfx950"']
    out += a.finish()
    out.append(f""".section .rodata,"a"
.p2align 6
.amdhsa_kernel {kname}
  .amdhsa_next_free_vgpr 256
  .amdhsa_next_free_sgpr 102
  .amdhsa_accum_offset 256
  .amdhsa_group_segment_fixed_size 0
  .amdhsa_kernarg_size 96
  .amdhsa_user_sgpr_count 2
  .amdhsa_user_sgpr_kernarg_segment_ptr 1
  .amdhsa_system_sgpr_workgroup_id_x 1
  .amdhsa_float_denorm_mode_32 3
.end_amdhsa_kernel""")
    return "\n".join(out) + "\n"

if __name__ == "__main__":
    kw = eval("dict(" + (sys.argv[2] if len(sys.argv) > 2 else "") + ")")
    open(sys.argv[1], "w").write(gen(**kw))
```

```python
import sys, struct
from asmlib import Asm

NAME = "sequential_preLN__mha_block_cached__geglu_ffn__decode"
def f2u(x): return struct.unpack("<I", struct.pack("<f", x))[0]
def hx(x): return "0x%08x" % (x & 0xffffffff)

REF, BELL, QP, OP, YP, DP, ML, DIAG, QPB, WSZ = 0x1000, 0x170000, 0x10000, 0x90000, 0x140000, 0xE0000, 0x130000, 0x1a0000, 0x200000, 0x280000
RS = 4352
OOB = 0x7ff00000
HEARD, PF = 4632, 0x180000
QRED, QF, CNT, MCNT, NEAR, PRG, MRED, STAT, RED, ORED, HTAB, DUMP, LDSZ = 0, 4096, 4608, 4616, 4624, 4640, 4672, 4864, 5120, 8192, 12288, 22016, 24576
sK, sV, sWS, sX, sWQ, sWO, sWG, sWU, sWD, sOUT = [f"s[{n}:{n+3}]" for n in range(32, 72, 4)]
DPPM = "row_mask:0xf bank_mask:0xf"
LOG2E = f2u(1.4426950408889634)
MFMA = "v_mfma_f32_16x16x32_bf16"

def gen(depth=5, ctl=(8, 6, 5), E=24, dl=11, dw=12, nref=8, gb=20, gs=24, bias=0, ph0=17, ex=16, fin=(14, 16, 10, 16), mids=(11,), fmids=(6,),
        P=39, budget=56, ml0=124, ml1=194, gates=(222, 250), qpre=24, qsleep=2, qB=6, wo_w=2, gu_w=4, dn_w=2, late=4, ffb=30, ffb_from=230,
        pre2=0, pre3=12, ring=1, nc=2, cs=12288, fast=True, setup_at=20, SPIN=0x100000, diag=False, early=False, few=False, epe=False, kvpol='nt', wob=16):
    a = Asm()
    cold = []
    kname = NAME + "_kernel"
    def stamp(k):
        if few and k not in (0, 2, 9): return
        if diag and k == 0: a("s_mov_b32 s8, s100")
        elif diag: a(f"s_memrealtime s[{8+2*k}:{9+2*k}]")
    def dump_stamps():
        if not diag: return
        a("s_waitcnt lgkmcnt(0)\ns_mov_b64 exec, 1\ns_lshl_b32 s90, s6, 3\ns_add_u32 s90, s90, s3\ns_lshl_b32 s90, s90, 6")
        a(f"s_add_u32 s90, s90, {DIAG}\nv_mov_b32 v5, 0")
        for k in range(11): a(f"v_mov_b32 v{112+k}, s{8+2*k}")
        a("v_mov_b32 v123, s78")
        for q in range(3): a(f"buffer_store_dwordx4 v[{112+4*q}:{115+4*q}], v5, {sWS}, s90 offen offset:{16*q}")
    def srd_tail(n, size): a(f"s_mov_b32 s{n+2}, {hx(size)}\ns_mov_b32 s{n+3}, 0x20000")
    def bfr(d, s): a(f"v_cvt_pk_bf16_f32 v{d}, v{s}, v{s}\nv_and_b32 v{d}, 0xffff0000, v{d}")
    def unpack(d0, d1, s): a(f"v_lshlrev_b32 v{d0}, 16, v{s}\nv_and_b32 v{d1}, 0xffff0000, v{s}")
    def pk(op, d, x, y): a(f"v_pk_{op}_f32 v[{d}:{d+1}], v[{x}:{x+1}], v[{y}:{y+1}]")
    def add4(d, x, y): pk("add", d, x, y); pk("add", d + 2, x + 2, y + 2)
    def mask64(n, v): a(f"s_mov_b32 s{n}, {hx(v)}\ns_mov_b32 s{n+1}, {hx(v >> 32)}")
    def mfma(d, A, B, first): a(f"{MFMA} v[{d}:{d+3}], v[{A}:{A+3}], v[{B}:{B+3}], {'0' if first else f'v[{d}:{d+3}]'}")
    def smf(d, A, B): a(f"v_smfmac_f32_16x16x64_bf16 v[{d}:{d+3}], v[{A}:{A+3}], v[{B}:{B+7}], v60")
    def zero2(r): a(f"v_mov_b64 v[{r}:{r+1}], 0")
    def loop(base):
        L = a.lab(base); a(L + ":"); return L
    def retry(L, sleep=0, gentle=0, pre='', post=''):
        a(f"s_cbranch_vccnz {L}_r\n{L}_d:")
        t = f"{L}_r:\n" + pre
        if sleep: t += f"s_sleep {sleep}\n"
        if gentle: t += f"s_cmp_lg_u32 s98, 0\ns_cbranch_scc1 {L}_n\ns_sleep {gentle}\n{L}_n:\n"
        cold.append(t + f"s_sub_u32 s79, s79, 1\ns_cbranch_scc0 {L}\ns_mov_b32 s79, 0\n{post}s_branch {L}_d")
    def budget_(L, gentle=0):
        a(f"s_sub_u32 s79, s79, 1\ns_cbranch_scc1 {L}_x\n{L}_y:")
        cold.append(f"{L}_x:\ns_mov_b32 s79, 0\ns_mov_b64 s[30:31], 0\ns_branch {L}_y")
    def again(L): a(f"s_and_b64 vcc, vcc, s[30:31]\ns_cbranch_vccnz {L}")
    def flush_cold():
        for t in cold: a(t)
        cold.clear()
    def empty_check(regs, t):
        regs = list(regs)
        a(f"v_max3_u32 v{t}, v{regs[0]}, v{regs[1]}, v{regs[2]}"); regs = regs[3:]
        while len(regs) >= 2: a(f"v_max3_u32 v{t}, v{t}, v{regs[0]}, v{regs[1]}"); regs = regs[2:]
        if regs: a(f"v_max_u32 v{t}, v{t}, v{regs[0]}")
        a(f"v_cmp_eq_u32 vcc, -1, v{t}")
    def nan4(x, t): pk("add", t, x, x + 2); a(f"v_cmp_u_f32 vcc, v{t}, v{t+1}")
    def rows_allreduce(op, v, t, both=True):
        a(f"v_mov_b32 v{t}, v{v}\nv_permlane16_swap_b32 v{v}, v{t}\n{op} v{v}, v{v}, v{t}")
        if both: a(f"v_mov_b32 v{t}, v{v}\nv_permlane32_swap_b32 v{v}, v{t}\n{op} v{v}, v{v}, v{t}")
    def half_masks(first, esrc, t0):
        a(f"v_and_b32 v{t0}, 1, v{esrc}\nv_lshlrev_b32 v{t0}, 4, v{t0}\nv_mov_b32 v{t0+1}, 0xffff\nv_lshlrev_b32 v{t0}, v{t0}, v{t0+1}")
        a(f"v_lshrrev_b32 v{t0+1}, 1, v{esrc}")
        for r in range(4): a(f"v_cmp_eq_u32 vcc, {r}, v{t0+1}\nv_cndmask_b32 v{first+r}, 0, v{t0}, vcc")
    def wait_lds(addr, val, sleep):
        L = loop("lds")
        a(f"ds_read_b32 v8, v61 offset:{addr}\ns_waitcnt lgkmcnt(0)\nv_cmp_ne_u32 vcc, {val}, v8")
        retry(L, sleep)
    def tag_field(d, pos):
        a(f"v_and_b32 v{d}, 3, v{pos}\nv_mul_u32_u24 v{d}, 7, v{d}\nv_lshrrev_b32 v{d}, v{d}, s77\nv_and_b32 v{d}, 0xffe, v{d}\nv_and_or_b32 v{d}, s77, 1, v{d}")
    def untag(x, f): a(f"v_xor_b32 v{x}, v{x}, v{f}")
    def tag_acc(acc, x, y, first): a(f"v_or_b32 v{acc}, v{x}, v{y}" if first else f"v_or3_b32 v{acc}, v{acc}, v{x}, v{y}")
    def tag_test(acc): a(f"v_and_b32 v{acc}, 0xfff, v{acc}\nv_cmp_ne_u32 vcc, 0, v{acc}")
    def next_tag(): a("s_mul_i32 s77, s77, 1664525\ns_add_u32 s77, s77, 1013904223")

    a(f".text\n.globl {kname}\n.p2align 8\n.type {kname},@function\n{kname}:")
    a("s_cmp_ge_u32 s2, 256\ns_cbranch_scc1 L_exit")
    if diag: a("s_memrealtime s[100:101]")
    a("s_load_dwordx8 s[8:15], s[0:1], 0")
    a("s_getpc_b64 s[4:5]\nL_pc:")
    a("s_lshr_b32 s3, s2, 4\nv_lshrrev_b32 v4, 4, v0\nv_lshlrev_b32 v4, 4, v4\nv_add_lshl_u32 v4, v4, s3, 7")
    a("v_min_u32 v4, L_code_end-L_pc-4, v4\nglobal_load_dword v4, v4, s[4:5]")
    a("v_lshrrev_b32 v5, 6, v0\nv_and_b32 v1, 63, v0\nv_readfirstlane_b32 s3, v5")
    a("s_and_b32 s72, s2, 7\ns_lshr_b32 s73, s2, 3\ns_lshl_b32 s6, s72, 5\ns_add_u32 s6, s6, s73")
    a("s_lshr_b32 s74, s6, 3\ns_and_b32 s75, s6, 7\ns_and_b32 s76, s3, 3")
    a("v_and_b32 v6, 15, v1\nv_lshrrev_b32 v7, 4, v1")
    srd_tail(40, WSZ)
    a(f"s_mov_b32 s79, {SPIN}\ns_cmp_lt_u32 s3, 4\ns_cbranch_scc1 L_aux0")
    def aux_start():
        a('; helper waves: mark LDS empty, start the q inputs')
        a("L_aux0:\nv_lshlrev_b32 v96, 4, v0\nv_mov_b32 v112, -1\nv_mov_b32 v113, -1\nv_mov_b32 v114, -1\nv_mov_b32 v115, -1")
        a("ds_write_b128 v96, v[112:115]\nds_write_b128 v96, v[112:115] offset:4096")
        a("v_and_b32 v8, 31, v1\nv_lshlrev_b32 v8, 3, v8\nv_lshrrev_b32 v9, 5, v1\nv_mul_u32_u24 v9, 1280, v9\nv_add_u32 v2, v8, v9")
        a("s_mul_i32 s7, s75, 80\ns_mul_i32 s80, s76, 20\ns_add_u32 s7, s7, s80\nv_add_u32 v8, s7, v7")
        a("v_bfe_u32 v9, v1, 3, 1\nv_mul_u32_u24 v9, 1280, v9\nv_lshl_add_u32 v3, v8, 1, v9")
        a("s_lshl_b32 s7, s74, 8\nv_lshlrev_b32 v8, 13, v8\nv_lshl_add_u32 v9, v6, 4, s7\nv_add_u32 v5, v8, v9")
        srd_tail(44, 2560); srd_tail(48, 640 * 4096 * 2)
        a("s_mov_b32 s7, 0\ns_waitcnt lgkmcnt(0)\ns_mov_b64 s[44:45], s[8:9]\ns_mov_b64 s[48:49], s[14:15]")
        for i in range(5): a(f"buffer_load_dwordx2 v[{8+2*i}:{9+2*i}], v2, {sX}, 0 offen offset:{256*i}")
        for i in range(5): a(f"buffer_load_ushort v{18+i}, v3, {sX}, 0 offen offset:{8*i}")
        for i in range(5): a(f"buffer_load_dwordx4 v[{24+4*i}:{27+4*i}], v5, {sWQ}, s7 offen nt" + ("\ns_add_u32 s7, s7, 0x8000" if i < 4 else ""))
        a("s_load_dwordx8 s[16:23], s[0:1], 32\ns_load_dwordx8 s[24:31], s[0:1], 64\ns_barrier\ns_branch L_aux")

    a("s_setprio 2")
    a("v_bfe_u32 v8, v1, 2, 2\nv_lshlrev_b32 v8, 8, v8\nv_lshl_or_b32 v8, v7, 6, v8\nv_and_b32 v9, 3, v1\nv_lshl_or_b32 v2, v9, 4, v8")
    a('; a split walks its own 256 KB in 64 steps of 4 KB; splits 0 and 4 leave out every step m with (m & 3) == ((m >> 2) & 3)')
    a('; and all eight splits share those 32 holes, four each')
    a("s_and_b32 s80, s75, 3\ns_cselect_b32 s71, 0, 0x80000000\ns_lshl_b32 s70, s75, 18")
    a("s_lshl_b32 s7, s74, 21\ns_lshl_b32 s80, s76, 10\ns_add_u32 s7, s7, s80\nv_add_u32 v2, s7, v2\nv_lshl_add_u32 v3, v1, 4, s7")
    srd_tail(32, 1 << 27); srd_tail(36, 1 << 27)
    a("s_waitcnt lgkmcnt(0)\ns_mov_b64 s[32:33], s[10:11]\ns_mov_b64 s[36:37], s[12:13]")
    RING, NB, PH, NG = 100, 39, 68, 17
    BK, DK, ACC, BV, MLB, MLS, RMAX, S, NINF = 16, 32, 40, 44, 52, 56, 60, [64, 81], 98
    vm, landed, ld_idx, items, got = ["code"], [-1], {}, [], set()
    def wait_vm(idx):
        if idx > landed[0]:
            a(f"s_waitcnt vmcnt({len(vm) - 1 - idx})"); landed[0] = idx
    def kind(n):
        k, r = divmod(n, 17)
        if r == 16: return ("hole", k)
        m = 16 * k + r
        return ("opt" if (m & 3) == ((m >> 2) & 3) else "own", m)
    def address(i):
        ph, n = divmod(i, PH); b = ph & 1
        kd, m = kind(n)
        if kd == "hole": a(f"s_add_u32 s73, s72, {hx((b << 26) + m * 65536)}"); return "s73"
        a(f"s_add_u32 s7, s70, {hx(b << 26)}" if m == 0 else "s_addk_i32 s7, 0x1000")
        if kd == "own": return "s7"
        a("s_or_b32 s73, s7, s71"); return "s73"
    def issue(i, so):
        isv = i >= 2 * PH; r = RING + (i % NB) * 4
        a(f"buffer_load_dwordx4 v[{r}:{r+3}], {'v3' if isv else 'v2'}, {sV if isv else sK}, {so} offen {kvpol}")
        ld_idx[i] = len(vm); vm.append(i)
    def add(cost, needs, fn): items.append((cost, needs, fn))
    def setup1():
        a("s_getreg_b32 s78, hwreg(HW_REG_XCC_ID, 0, 4)")
        a("s_and_b32 s72, s75, 4\ns_lshl_b32 s72, s72, 18\ns_and_b32 s80, s75, 3\ns_mul_i32 s80, s80, 20480\ns_add_u32 s72, s72, s80")
        half_masks(10, 6, 8)
        a("v_and_b32 v9, 3, v1\nv_lshlrev_b32 v9, 4, v9\nv_lshl_or_b32 v14, v7, 6, v9")
        a("v_and_b32 v15, 31, v1\nv_lshlrev_b32 v15, 4, v15")
        a("v_lshl_add_u32 v9, v7, 3, v6\nv_lshlrev_b32 v9, 4, v9\ns_lshl_b32 s80, s76, 9\nv_add_u32 v62, s80, v9")
        a("s_lshl_b32 s80, s6, 9\nv_add_u32 v63, s80, v15")
        a(f"v_mov_b32 v61, 0\nv_mov_b32 v5, 1\nv_mov_b32 v{NINF}, 0xff800000")
    def setup2():
        a("s_waitcnt lgkmcnt(0)\ns_load_dword s77, s[40:41], 0")
        a(f"s_lshr_b32 s90, s6, 5\ns_lshl_b32 s90, s90, 12\ns_add_u32 s90, s90, {ML}\ns_lshl_b32 s91, s6, 7\ns_add_u32 s91, s91, {ML}")
        a("v_bfe_u32 v9, v1, 2, 3\nv_lshlrev_b32 v9, 7, v9\nv_and_b32 v4, 3, v1\nv_lshl_or_b32 v0, v4, 4, v9\ns_and_b32 s80, s74, 3\ns_lshl_b32 s80, s80, 10\nv_add_u32 v0, s80, v0")
        a("v_and_b32 v8, 31, v1\nv_min_u32 v8, 11, v8\nv_and_b32 v9, 3, v8\nv_lshrrev_b32 v8, 2, v8\nv_lshl_add_u32 v8, v9, 3, v8\nv_lshlrev_b32 v8, 7, v8\nv_add_u32 v8, 192, v8")
        a("v_cmp_gt_u32 vcc, 32, v1\nv_cndmask_b32 v99, v8, v0, vcc\nv_lshlrev_b32 v4, 3, v4")
        a("s_lshl_b32 s99, s76, 3\ns_ashr_i32 s98, s71, 31")
        if ctl:
            a(f"s_sub_u32 s65, s2, {256 - nref}\ns_cselect_b32 s64, 0, 1\ns_cmp_eq_u32 s76, 0\ns_cselect_b32 s64, s64, 0\ns_mul_i32 s65, s65, {RS}\ns_add_u32 s65, s65, {REF}")
            a(f"s_add_u32 s66, s40, {REF}\ns_addc_u32 s67, s41, 0\ns_mov_b32 s62, 0\ns_mov_b32 s63, 0")
        for t in range(4): mask64(80 + 2 * t, 0x000F000F000F000F << (4 * t))
        mask64(88, 0x00FF00FF00FF00FF)
        a(f"s_mov_b32 s92, {hx(f2u(128 ** -0.5))}\ns_mov_b32 s93, {hx(LOG2E)}")
    def setup3():
        a("s_waitcnt lgkmcnt(0)"); next_tag(); tag_field(1, 1)
    def it_qfrag(b):
        a('; q of this batch as four matrix operands, one per load of a group of four')
        L = loop("q")
        a(f"ds_read_b128 v[{BV}:{BV+3}], v14 offset:{QF + b * 256}\ns_waitcnt lgkmcnt(0)")
        empty_check(range(BV, BV + 4), BV + 4); retry(L, 1)
        if b == 0:
            stamp(1); a(f"ds_read_b32 v8, v61 offset:{NEAR}\ns_waitcnt lgkmcnt(0)\nv_readfirstlane_b32 s31, v8")
        for t in range(4):
            for r in range(4): a(f"v_cndmask_b32 v{BK + 4*t + r}, 0, v{BV + r}, s[{80+2*t}:{81+2*t}]")
    def it_k(i):
        n = i % PH
        mfma(DK + ((n >> 2) & 1) * 4, RING + (i % NB) * 4, BK + 4 * (n & 3), n & 3 == 0)
    def it_kred(b, u):
        d = DK + (u & 1) * 4; s = S[b] + u
        a(f"v_mov_b32_dpp v{s}, v{d} quad_perm:[0,0,0,0] {DPPM}")
        for r in range(1, 4): a(f"v_add_f32_dpp v{s}, v{d+r}, v{s} quad_perm:[{r},{r},{r},{r}] {DPPM}")
        bfr(s, s); a(f"v_mul_f32 v{s}, s92, v{s}"); bfr(s, s)
        om = sum(0x000F000F << (4 * t) for t in range(4) if kind(4 * u + t)[0] == "opt")
        if om: a(f"s_and_b32 s0, s98, {hx(om)}\ns_mov_b32 s1, s0\nv_cndmask_b32 v{s}, v{s}, v{NINF}, s[0:1]")
        a(f"v_mov_b32 v{RMAX}, v{s}" if u == 0 else f"v_max_f32 v{RMAX}, v{RMAX}, v{s}")
    def it_max(b):
        a("; softmax statistics of this wave's keys: max, then sum of exp")
        a(f"v_max_f32_dpp v{RMAX}, v{RMAX}, v{RMAX} row_ror:8 {DPPM}\nv_max_f32_dpp v{RMAX}, v{RMAX}, v{RMAX} row_ror:4 {DPPM}")
        rows_allreduce("v_max_f32", RMAX, BV)
        a(f"v_mov_b32 v{MLS}, v{RMAX}\nv_mov_b32 v{MLS+1}, 0")
    def it_sum(b, u0):
        n = min(4, NG - u0)
        for u in range(n): a(f"v_sub_f32 v{BV+u}, v{S[b]+u0+u}, v{MLS}")
        for u in range(n): a(f"v_mul_f32 v{BV+u}, s93, v{BV+u}")
        for u in range(n): a(f"v_exp_f32 v{BV+u}, v{BV+u}")
        for u in range(n): a(f"v_add_f32 v{MLS+1}, v{MLS+1}, v{BV+u}")
    def it_mlpub(b):
        a('; the last wave to arrive publishes the four (max, sum) pairs of the workgroup')
        l, Ls = MLS + 1, a.lab("mlast")
        a(f"v_add_f32_dpp v{l}, v{l}, v{l} row_ror:8 {DPPM}\nv_add_f32_dpp v{l}, v{l}, v{l} row_ror:4 {DPPM}")
        rows_allreduce("v_add_f32", l, BV)
        a(f"v_mov_b32 v8, s99\ns_mov_b64 exec, 1\nds_write_b64 v8, v[{MLS}:{MLS+1}] offset:{MRED + 32*b}")
        a(f"ds_add_rtn_u32 v8, v61, v5 offset:{MCNT + 4*b}\ns_mov_b64 exec, -1")
        a(f"ds_read_b64 v[{BV}:{BV+1}], v4 offset:{MRED + 32*b}\ns_waitcnt lgkmcnt(0)\nv_readfirstlane_b32 s96, v8")
        a(f"s_cmp_lg_u32 s96, 2\ns_cbranch_scc1 {Ls}")
        a(f"v_mov_b32 v8, s78\nv_cndmask_b32 v{MLS}, v8, v{BV}, s[80:81]\nv_mov_b32 v{MLS+1}, s77\nv_mov_b32 v{MLS+2}, v{BV+1}\nv_mov_b32 v{MLS+3}, s77")
        a(f"s_add_u32 s96, s91, {b * 32768}\ns_mov_b64 exec, 0xff\ns_cmp_lg_u32 s31, 0\ns_cbranch_scc1 {Ls}_far")
        a(f"buffer_store_dwordx4 v[{MLS}:{MLS+3}], v15, {sWS}, s96 offen\n{Ls}:\ns_mov_b64 exec, -1")
        cold.append(f"{Ls}_far:\nbuffer_store_dwordx4 v[{MLS}:{MLS+3}], v15, {sWS}, s96 offen sc0 sc1\ns_branch {Ls}")
    def ml_load(b): return f"buffer_load_dwordx4 v[{MLB}:{MLB+3}], {'v0' if b else 'v99'}, {sWS}, s94 offen sc1"
    def ml_issue(b):
        a(f"s_add_u32 s94, s90, {b * 32768}\n" + ml_load(b))
        ld_idx[("ml", b)] = len(vm); vm.append("ml")
    def it_mlget(b):
        a('; max and sum over the whole head; p = bf16(exp(s - max) / sum)')
        L = loop("ml")
        a(f"v_cmp_ne_u32 vcc, s77, v{MLB+1}\nv_cmp_ne_u32 s[96:97], s77, v{MLB+3}\ns_or_b64 vcc, vcc, s[96:97]")
        if b == 0: a("s_mov_b32 s30, vcc_hi\ns_mov_b32 vcc_hi, 0")
        a(f"s_cmp_lg_u32 vcc_lo, 0\ns_cbranch_scc1 {L}_r\n{L}_d:")
        cold.append(f"{L}_r:\ns_sleep 4\n{ml_load(b)}\ns_waitcnt vmcnt(0)\ns_sub_u32 s79, s79, 1\ns_cbranch_scc0 {L}\ns_mov_b32 s79, 0\ns_branch {L}_d")
        got.add(b)
        if b == 0: a(f"v_cmp_ne_u32 vcc, s78, v{MLB}\ns_or_b32 s30, s30, {'vcc_hi' if fast else '1'}")
        M, Ls = MLB + 1, MLB + 2
        a(f"v_max_f32_dpp v{M}, v{MLB}, v{MLB} row_ror:8 {DPPM}")
        for k in (4, 2, 1): a(f"v_max_f32_dpp v{M}, v{M}, v{M} row_ror:{k} {DPPM}")
        rows_allreduce("v_max_f32", M, 8, both=False)
        a(f"v_sub_f32 v8, v{MLB}, v{M}\nv_mul_f32 v8, s93, v8\nv_exp_f32 v8, v8\nv_mul_f32 v{Ls}, v{Ls}, v8")
        for k in (8, 4, 2, 1): a(f"v_add_f32_dpp v{Ls}, v{Ls}, v{Ls} row_ror:{k} {DPPM}")
        rows_allreduce("v_add_f32", Ls, 8, both=False)
        a(f"v_rcp_f32 v{Ls}, v{Ls}\nv_readfirstlane_b32 s4, v{M}\nv_readfirstlane_b32 s5, v{Ls}")
    def it_p(b, u0):
        R = [S[b] + u for u in range(u0, min(u0 + 4, NG))]
        for s in R: a(f"v_subrev_f32 v{s}, s4, v{s}")
        for s in R: a(f"v_mul_f32 v{s}, s93, v{s}")
        for s in R: a(f"v_exp_f32 v{s}, v{s}")
        for s in R: a(f"v_mul_f32 v{s}, s5, v{s}")
        for s in R: a(f"v_cvt_pk_bf16_f32 v{s}, v{s}, v{s}")
    def it_vb(i):
        b, n = divmod(i - 2 * PH, PH)
        for r in range(4): a(f"v_and_b32_dpp v{BV + (i & 1)*4 + r}, v{S[b] + (n >> 2)}, v{10+r} row_newbcast:{4*(n & 3)} {DPPM}")
    def it_v(i): mfma(ACC, RING + (i % NB) * 4, BV + (i & 1) * 4, i % PH == 0)
    def it_opub(b):
        a('; the last wave to arrive sums the four partial o and publishes them')
        Ls = a.lab("olast")
        if b == 1: stamp(2)
        a(f"s_mov_b32 s95, {OP + b * 0x20000}\ns_movk_i32 s97, 0xfff\ns_mov_b64 exec, s[88:89]")
        a(f"ds_write_b128 v62, v[{ACC}:{ACC+3}] offset:{ORED + b * 2048}")
        a(f"s_mov_b64 exec, 1\nds_add_rtn_u32 v8, v61, v5 offset:{CNT + 4*b}\ns_mov_b32 exec_lo, -1")
        for w in range(4): a(f"ds_read_b128 v[{16+4*w}:{19+4*w}], v15 offset:{ORED + b * 2048 + w * 512}")
        a("s_waitcnt lgkmcnt(0)\nv_readfirstlane_b32 s96, v8")
        add4(16, 16, 20); add4(24, 24, 28)
        a(f"s_cmp_lg_u32 s96, 2\ns_cbranch_scc1 {Ls}\ns_cmp_lg_u32 s30, 0")
        add4(16, 16, 24); a("v_bfi_b32 v16, s97, v1, v16")
        a(f"s_cbranch_scc1 {Ls}_far\nbuffer_store_dwordx4 v[16:19], v63, {sWS}, s95 offen\n{Ls}_st:")
        cold.append(f"{Ls}_far:\nbuffer_store_dwordx4 v[16:19], v63, {sWS}, s95 offen sc0 sc1\ns_branch {Ls}_st")
        if b == 1:
            a(f"ds_write_b32 v61, v5 offset:{PRG + 8}")
            stamp(3)
        a(f"{Ls}:\ns_mov_b64 exec, -1")
    F = lambda fn, *x: (lambda: fn(*x))
    for b in range(2):
        add(30, None, F(it_qfrag, b))
        for n in range(PH):
            add(4, PH * b + n, F(it_k, PH * b + n))
            if n & 3 == 0 and n: add(12, None, F(it_kred, b, (n >> 2) - 1))
            if b == 1 and PH + n == ml0:
                add(40, ("ml", 0), F(it_mlget, 0))
                for u0 in range(0, NG, 4): add(24, None, F(it_p, 0, u0))
        add(16, None, F(it_kred, b, NG - 1)); add(20, None, F(it_max, b))
        for u0 in range(0, NG, 4): add(20, None, F(it_sum, b, u0))
        add(40, None, F(it_mlpub, b))
    for b in range(2):
        for n in range(PH):
            i = (2 + b) * PH + n
            add(4, None, F(it_vb, i)); add(4, i, F(it_v, i))
            if b == 0 and i == ml1:
                add(40, ("ml", 1), F(it_mlget, 1))
                for u0 in range(0, NG, 4): add(24, None, F(it_p, 1, u0))
        add(40, None, F(it_opub, b))
    consumed = [-1]
    def run_items(bud, force=False):
        while items:
            cost, needs, fn = items[0]
            if needs is not None:
                if needs not in ld_idx: return
                if ld_idx[needs] > landed[0]:
                    if not force: return
                    wait_vm(ld_idx[needs])
            if bud <= 0 and not force: return
            items.pop(0); fn(); bud -= cost
            if isinstance(needs, int): consumed[0] = needs
    def act(i, lastc):
        if bias: a(f"s_add_i32 s68, s68, {bias * nref}")
        if i >= ffb_from: a("s_add_i32 s68, s68, s0")
        if fin and lastc:
            a(f"s_add_i32 s69, s68, {fin[2] * nref}\ns_max_i32 s69, s69, 0\ns_min_u32 s69, s69, 0x1000\ns_mul_i32 s69, s69, {int(fin[1]*655.36/nref)}\ns_lshr_b32 s69, s69, 16\ns_sub_u32 s62, {4*PH}, s69")
        else:
            a(f"s_max_i32 s69, s68, 0\ns_min_u32 s69, s69, 0x4000\ns_mul_i32 s69, s69, {int(gb*655.36/nref)}\ns_lshr_b32 s69, s69, 16\ns_add_u32 s62, s69, {i+1}")
        a(f"s_sub_i32 s69, 0, s68\ns_max_i32 s69, s69, 0\ns_min_u32 s69, s69, 0x4000\ns_mul_i32 s69, s69, {int(gs*655.36/nref)}\ns_lshr_b32 s69, s69, 16\ns_add_u32 s63, s69, {i+1}")
    k0 = 1 if ph0 <= setup_at else 0
    cpts = [c for c in range(ph0 + k0 * E + dl + dw, 4 * PH - 4, E)]
    for i in range(4 * PH):
        while consumed[0] < i - NB:
            n0 = len(items); run_items(1); assert len(items) < n0, "ring stall"
        so = address(i)
        if ctl and i > cpts[0]:
            last = fin and i > cpts[-1]
            wait_vm(ld_idx[i - (fin[0] if last else ctl[0])])
            n = [len(vm) - 1 - ld_idx[i - d] for d in ctl]
            go = a.lab("go")
            a(f"s_cmpk_{'le' if last else 'gt'}_u32 s62, {i}\ns_cbranch_scc1 {go}\ns_waitcnt vmcnt({n[1]})")
            a(f"s_cmpk_le_u32 s63, {i}\ns_cbranch_scc1 {go}\ns_waitcnt vmcnt({n[2]})\n{go}:")
        elif i >= depth: wait_vm(ld_idx[i - depth])
        issue(i, so)
        if i == depth - 1:
            a("s_load_dwordx2 s[40:41], s[0:1], 88\ns_barrier\ns_branch L_stream"); aux_start(); a("L_stream:"); stamp(0); setup1()
        if i == 2 * depth - 1: setup2()
        if i == setup_at: setup3()
        if ctl and i == ffb_from - 1:
            a("; workgroups with a role aim to finish a little ahead")
            a(f"s_and_b32 s0, s6, 7\ns_sub_u32 s0, s0, 1\ns_lshl_b32 s0, s0, 2\ns_bfe_u32 s1, s6, 0x20003\ns_add_u32 s0, s0, s1\ns_and_b32 s1, s98, {ffb * nref}")
            a(f"s_cmp_lt_u32 s0, 10\ns_cselect_b32 s0, {wob * nref}, s1")
        if ctl:
            k, m = divmod(i - ph0, E)
            if ph0 + k * E + dl + dw in cpts:
                lastc = ph0 + k * E + dl + dw == cpts[-1]
                w = 0 if k == k0 else (fin[3] if fin and lastc else ex)
                if m == dl + dw - 1 and w: a("s_memrealtime s[74:75]")
                if m == 0: a("s_memrealtime s[60:61]")
                if m == 1:
                    sk = a.lab("ref")
                    a(f"s_cmp_lg_u32 s64, 0\ns_cbranch_scc1 {sk}_r\n{sk}:")
                    cold.append(f"{sk}_r:\ns_waitcnt lgkmcnt(0)\nv_mov_b32 v6, s60\nv_mov_b32 v7, s77\nv_mov_b32 v8, s60\nv_mov_b32 v9, s77\ns_mov_b64 exec, 0xff\n"
                                f"buffer_store_dwordx4 v[6:9], v15, {sWS}, s65 offen offset:{128*k} sc0 sc1\ns_mov_b64 exec, -1\ns_branch {sk}")
                if m == dl:
                    for q in range(nref): a(f"s_load_dwordx2 s[{44+2*q}:{45+2*q}], s[66:67], {q*RS + 128*k}")
                if m == dl + dw:
                    a("; balance: own progress against the eight reference workgroups sets the number of loads kept in flight")
                    a("s_waitcnt lgkmcnt(0)\ns_mov_b32 s68, 0")
                    for q in range(nref):
                        a(f"s_sub_u32 s69, s60, s{44+2*q}\ns_cmp_eq_u32 s{45+2*q}, s77\ns_cselect_b32 s69, s69, {-14*dl}\ns_add_u32 s68, s68, s69")
                    if ex or fin:
                        a(f"s_mul_i32 s69, s60, {nref}\ns_sub_u32 s69, s69, s68\ns_sub_u32 s76, s69, s2\ns_mov_b32 s2, s69")
                    if w:
                        a(f"s_mul_i32 s96, s76, {round(256 * (dl + dw - 1) / E)}\ns_lshr_b32 s96, s96, 8\ns_sub_u32 s69, s74, s60\ns_mul_i32 s69, s69, {nref}")
                        a(f"s_sub_i32 s69, s69, s96\ns_mul_i32 s69, s69, {w}\ns_ashr_i32 s69, s69, 4\ns_add_i32 s68, s68, s69")
                    act(i, lastc)
            for c in cpts[1:]:
                for d in (fmids if c == cpts[-1] else mids):
                    if i == c + d - 1: a("s_memrealtime s[74:75]")
                    if i == c + d:
                        a(f"s_mul_i32 s96, s76, {round(256 * (dl + dw - 1 + d) / E)}\ns_lshr_b32 s96, s96, 8\ns_add_u32 s96, s96, s2")
                        a(f"s_waitcnt lgkmcnt(0)\ns_mul_i32 s68, s74, {nref}\ns_sub_u32 s68, s68, s96")
                        act(i, c == cpts[-1])
        for gi in [k for k, g in enumerate(gates) if g == i]:
            a(f"s_mov_b64 exec, 1\nds_write_b32 v61, v5 offset:{PRG + 4*gi}\ns_mov_b64 exec, -1")
        if early:
            el = list(early)
            if i in el: stamp(4 + el.index(i))
        elif i in (34, 68, 102, 136, 170, 204, 238): stamp(3 + i // 34)
        if i == ml0: ml_issue(0)
        if i == ml1: ml_issue(1)
        if i >= P - 1: run_items(budget)
    run_items(0, force=True)
    a(f"s_cmp_eq_u32 s71, 0\ns_cbranch_scc1 L_sdone\ns_cmp_ge_u32 s99, {8*nc}\ns_cbranch_scc1 L_sdone")
    a(f"s_lshr_b32 s96, s6, 5\ns_bfe_u32 s97, s6, 0x20003\ns_lshl_b32 s97, s97, 3\ns_add_u32 s97, s97, s96\ns_cmp_ge_u32 s97, 27\ns_cbranch_scc1 L_sdone")
    a(f"s_and_b32 s97, s96, 3\ns_lshl_b32 s97, s97, 10\ns_lshr_b32 s96, s96, 2\ns_mul_i32 s96, s96, {nc*cs}\ns_add_u32 s96, s96, s97")
    a(f"s_bfe_u32 s97, s99, {3 | ((nc.bit_length() - 1) << 16)}\ns_mul_i32 s97, s97, {cs}\ns_add_u32 s96, s96, s97\ns_add_u32 s96, s96, {BELL}")
    a("s_add_u32 s66, s40, s96\ns_addc_u32 s67, s41, 0")
    a("L_sb:")
    for q in range(8): a(f"s_load_dword s{44+2*q}, s[66:67], {128*q} glc")
    a("s_sub_u32 s79, s79, 1\ns_cbranch_scc1 L_sdone\ns_waitcnt lgkmcnt(0)")
    for q in range(8): a(f"s_cmp_lg_u32 s{44+2*q}, s77\ns_cbranch_scc1 L_sb")
    a(f"ds_write_b32 v61, v5 offset:{HEARD}\nL_sdone:")
    dump_stamps()
    a("s_endpgm")
    flush_cold()

    a("L_aux:")
    a("s_getreg_b32 s78, hwreg(HW_REG_XCC_ID, 0, 4)")
    srd_tail(52, 4096 * 640 * 2); srd_tail(56, 640 * 1728 * 2); srd_tail(60, 640 * 1728 * 2); srd_tail(64, 1728 * 640 * 2); srd_tail(68, 2560)
    a("v_and_b32 v68, 7, v1"); half_masks(64, 68, 69)
    mask64(88, 0xFF00FF00FF00FF00)
    a(f"s_mov_b32 s92, {hx(f2u(1/640))}\ns_mov_b32 s93, {hx(f2u(1e-5))}")
    a("s_lshl_b32 s7, s76, 8\nv_lshl_add_u32 v97, v6, 4, s7\nv_lshl_add_u32 v101, v7, 11, v97")
    a(f"s_lshl_b32 s84, s6, 10\ns_add_u32 s84, s84, {QP}\ns_lshl_b32 s85, s74, 13\ns_add_u32 s85, s85, {QP}\nv_add_u32 v102, {QPB - QP}, v101")
    a("v_bfe_u32 v103, v1, 3, 1\nv_lshlrev_b32 v103, 7, v103\nv_and_b32 v70, 22, v1\nv_or_b32 v103, v103, v70\nv_lshrrev_b32 v70, 5, v1\nv_lshl_or_b32 v103, v70, 3, v103")
    a("s_lshl_b32 s7, s76, 5\nv_add_lshl_u32 v103, v103, s7, 1\nv_and_b32 v98, 3, v1\nv_lshlrev_b32 v98, 3, v98")
    a("s_waitcnt lgkmcnt(0)")
    for n, p in ((52, 16), (56, 20), (60, 22), (64, 24), (68, 26), (40, 30)): a(f"s_mov_b64 s[{n}:{n+1}], s[{p}:{p+1}]")
    a("s_load_dword s77, s[40:41], 0")
    stamp(0)
    a("s_lshr_b32 s7, s73, 3\ns_and_b32 s39, s75, 3\ns_cbranch_scc0 L_role2")
    a("s_sub_u32 s39, s75, 1\ns_lshl_b32 s39, s39, 2\ns_add_u32 s39, s39, s7\ns_cmp_lt_u32 s39, 10\ns_cselect_b32 s38, 1, 0\ns_branch L_role")
    a("L_role2:\ns_lshl_b32 s39, s7, 3\ns_add_u32 s39, s39, s72\ns_cmp_lt_u32 s39, 27\ns_cselect_b32 s38, 2, 0\ns_lshl_b32 s39, s39, 1\ns_lshr_b32 s7, s75, 2\ns_add_u32 s39, s39, s7")
    a("L_role:")
    a("s_waitcnt vmcnt(10)")
    for i in range(10): unpack(44 + 2 * i, 45 + 2 * i, 8 + i)
    def red32(v):
        for k in (8, 4, 2, 1): a(f"v_add_f32_dpp v{v}, v{v}, v{v} row_ror:{k} {DPPM}")
        rows_allreduce("v_add_f32", v, 71, both=False)
    pk("add", 8, 44, 46)
    for i in range(2, 10): pk("add", 8, 8, 44 + 2 * i)
    a("v_add_f32 v8, v8, v9"); red32(8)
    a("v_mul_f32 v8, s92, v8")
    for i in range(10): a(f"v_pk_add_f32 v[{44+2*i}:{45+2*i}], v[{44+2*i}:{45+2*i}], v[8:9] op_sel_hi:[1,0] neg_lo:[0,1] neg_hi:[0,1]")
    pk("mul", 10, 44, 44)
    for i in range(1, 10): a(f"v_pk_fma_f32 v[10:11], v[{44+2*i}:{45+2*i}], v[{44+2*i}:{45+2*i}], v[10:11]")
    a("v_add_f32 v10, v10, v11"); red32(10)
    a("v_mul_f32 v10, s92, v10")
    bfr(10, 10); bfr(8, 8); a("v_add_f32 v10, s93, v10"); bfr(10, 10); a("v_sqrt_f32 v10, v10"); bfr(10, 10); a("v_rcp_f32 v10, v10")
    a("v_readlane_b32 s80, v8, 0\nv_readlane_b32 s81, v8, 32\nv_readlane_b32 s82, v10, 0\nv_readlane_b32 s83, v10, 32")
    a("v_mov_b32 v8, s80\nv_mov_b32 v9, s81\nv_mov_b32 v10, s82\nv_mov_b32 v11, s83")
    a("v_cndmask_b32 v8, v8, v9, s[88:89]\nv_cndmask_b32 v10, v10, v11, s[88:89]")
    a("s_waitcnt vmcnt(5)")
    for i in range(5): a(f"v_lshlrev_b32 v{18+i}, 16, v{18+i}\nv_sub_f32 v{18+i}, v{18+i}, v8")
    for i in range(5): bfr(18 + i, 18 + i)
    for i in range(5): a(f"v_mul_f32 v{18+i}, v{18+i}, v10\nv_cvt_pk_bf16_f32 v{18+i}, v{18+i}, v{18+i}")
    for i in range(6):
        if i < 5:
            for r in range(4): a(f"v_and_b32 v{44+4*i+r}, v{18+i}, v{64+r}")
        if i: a(f"s_waitcnt vmcnt({5-i})"); mfma(72, 20 + 4 * i, 40 + 4 * i, i == 1)
    a("v_mov_b32 v61, 0\ns_waitcnt lgkmcnt(0)"); next_tag()
    a("s_add_u32 s83, s77, s78\ns_add_u32 s83, s83, 1")
    a(f"ds_write_b128 v96, v[72:75] offset:{QRED}")
    def qfields(t): return f"v_lshrrev_b32 v99, v98, {t}\n" + "\n".join(f"v_bfe_u32 v{104+k}, v99, {2*k}, 2" for k in range(4))
    qtag = "\n".join(f"v_bfi_b32 v{76+k}, 3, v{104+k}, v{76+k}" for k in range(4))
    a(qfields("s83"))
    L = loop("qred")
    for w in range(4): a(f"ds_read_b128 v[{76+4*w}:{79+4*w}], v97 offset:{QRED + 1024*w}")
    a("s_waitcnt lgkmcnt(0)"); add4(76, 76, 80); add4(84, 84, 88); add4(76, 76, 84); nan4(76, 80); retry(L)
    a(qtag)
    a(f"s_mov_b64 exec, 0xffff\nbuffer_store_dwordx4 v[76:79], v97, {sWS}, s84 offen\ns_mov_b64 exec, -1\ns_add_u32 s84, s84, {QPB - QP}\ns_mov_b32 s87, 0")
    stamp(1)
    if qpre: a(f"s_sleep {qpre}")
    a("v_mov_b32 v15, v101\ns_mov_b32 s7, s83")
    L = loop("qg")
    for k in range(2): a(f"buffer_load_dwordx4 v[{80+4*k}:{83+4*k}], v15, {sWS}, s85 offen offset:{1024*k} sc1")
    a("s_waitcnt vmcnt(0)")
    for k in range(8): untag(80 + k, 104 + (k & 3))
    a("v_or3_b32 v88, v80, v81, v82\nv_or3_b32 v88, v88, v83, v84\nv_or3_b32 v88, v88, v85, v86\nv_or_b32 v88, v88, v87\nv_and_b32 v88, 3, v88\nv_cmp_ne_u32 vcc, 0, v88")
    a(f"s_cbranch_vccnz {L}_r\n{L}_d:")
    cold.append(f"{L}_r:\ns_sleep {qsleep}\ns_add_u32 s87, s87, 1\ns_cmp_lg_u32 s87, {qB}\ns_cbranch_scc1 {L}_s\n{qfields('s77')}\n{qtag}\n"
                f"s_mov_b64 exec, 0xffff\nbuffer_store_dwordx4 v[76:79], v97, {sWS}, s84 offen sc0 sc1\ns_mov_b64 exec, -1\n"
                f"{L}_s:\ns_cmp_gt_u32 s87, {qB}\ns_cselect_b32 s7, s87, 0\ns_bitcmp1_b32 s7, 0\ns_cselect_b64 vcc, -1, 0\ns_cselect_b32 s7, s77, s83\n"
                f"v_cndmask_b32 v15, v101, v102, vcc\n{qfields('s7')}\ns_sub_u32 s79, s79, 1\ns_cbranch_scc0 {L}\ns_mov_b32 s79, 0\ns_branch {L}_d")
    a(f"s_cmp_lg_u32 s7, s83\ns_cselect_b32 s7, 1, 0\nv_mov_b32 v8, s7\nds_write_b32 v61, v8 offset:{NEAR}")
    add4(80, 80, 84)
    a("v_permlane32_swap_b32 v80, v81\nv_permlane32_swap_b32 v82, v83\nv_add_f32 v80, v80, v81\nv_add_f32 v82, v82, v83\nv_permlane16_swap_b32 v80, v82\nv_add_f32 v80, v80, v82")
    a(f"v_mov_b32_dpp v81, v80 quad_perm:[1,1,3,3] {DPPM}\nv_mov_b32_dpp v82, v80 quad_perm:[0,0,2,2] {DPPM}")
    a(f"v_cvt_pk_bf16_f32 v80, v82, v81\nv_min_u32 v80, -2, v80\nds_write_b32 v103, v80 offset:{QF}")
    stamp(2)
    a("s_mov_b32 s84, s38\ns_mov_b32 s85, s39")
    a("s_cmp_lg_u32 s76, 0\ns_cbranch_scc1 L_noclr\nv_lshlrev_b32 v8, 4, v1")
    a(f"s_lshl_b32 s7, s6, 9\ns_add_u32 s7, s7, {OP + 0x20000}\ns_mov_b32 exec_hi, 0\nbuffer_load_dwordx4 v[116:119], v8, {sWS}, s7 offen\ns_mov_b64 exec, -1")
    a(f"s_cmp_lg_u32 s84, 2\ns_cbranch_scc1 L_clr3\ns_mul_i32 s7, s85, 2560\ns_add_u32 s7, s7, {DP}")
    for k in range(3): a(("s_mov_b32 exec_hi, 0\n" if k == 2 else "") + f"buffer_store_dwordx4 v[112:115], v8, {sWS}, s7 offen offset:{1024*k} sc0 sc1")
    for r in range(4): a(f"v_mov_b32 v{120+r}, s77")
    a(f"s_lshl_b32 s7, s85, 7\ns_add_u32 s7, s7, {PF}\ns_mov_b64 exec, 0xff\ns_waitcnt vmcnt(0)\nbuffer_store_dwordx4 v[120:123], v8, {sWS}, s7 offen sc0 sc1\ns_mov_b64 exec, -1")
    a("L_clr3:\ns_waitcnt vmcnt(0)")
    a("L_noclr:")
    a("s_mov_b32 s90, 0x05040100\ns_mov_b32 s91, 0x07060302\ns_mov_b32 s98, 0\ns_mov_b64 s[30:31], -1")
    a("v_and_b32 v8, 1, v1\nv_mul_u32_u24 v8, 0xaaaa, v8\nv_or_b32 v60, 0x4444, v8")
    a("s_cmp_eq_u32 s84, 2\ns_cbranch_scc1 L_ffn\ns_cmp_eq_u32 s84, 1\ns_cbranch_scc1 L_wo")
    a("s_cmp_lg_u32 s73, 27\ns_cbranch_scc1 L_done\ns_cmp_lg_u32 s76, 1\ns_cbranch_scc1 L_done")
    a(f"v_and_b32 v2, 31, v1\nv_lshlrev_b32 v2, 9, v2\ns_lshl_b32 s94, s72, 14\ns_add_u32 s94, s94, {OP + 0x20000}")
    a(f"v_bfe_u32 v3, v1, 3, 2\nv_lshlrev_b32 v3, 10, v3\nv_lshrrev_b32 v9, 5, v1\nv_mul_u32_u24 v9, {nc*cs}, v9\nv_add_u32 v3, v3, v9\nv_and_b32 v9, 7, v1\nv_lshl_add_u32 v3, v9, 4, v3")
    for m in range(nc): a(f"s_lshl_b32 s{80+m}, s72, 7\ns_add_u32 s{80+m}, s{80+m}, {BELL + m*cs}")
    for r in range(4): a(f"v_mov_b32 v{12+r}, s77")
    wait_lds(CNT + 4, 3, 4)
    a("s_mov_b32 exec_hi, 0")
    L = loop("bw")
    a(f"buffer_load_dword v9, v2, {sWS}, s94 offen sc1"); budget_(L); a("s_waitcnt vmcnt(0)\nv_xor_b32 v9, s77, v9"); tag_test(9); again(L)
    if ring: a(f"s_sleep {ring}")
    a("s_mov_b64 exec, -1")
    for m in range(nc): a(f"buffer_store_dwordx4 v[12:15], v3, {sWS}, s{80+m} offen sc0 sc1")
    stamp(3)
    a("L_done:")
    dump_stamps()
    a("s_endpgm")
    flush_cold()

    def staged(nbatch, nld, win, load_fn, finish_fn):
        n = nbatch * nld
        for i in range(n + win):
            if i >= win:
                a(f"s_waitcnt vmcnt({min(n, i) - (i - win) - 1})")
                if (i - win + 1) % nld == 0: finish_fn((i - win) // nld, ((i - win) // nld) & 1)
            if i < n: load_fn(i // nld, i % nld, (i // nld) & 1)
    a('; register 2 (G & 1) + (u & 1).')

    a("L_wo:")
    a("s_lshl_b32 s80, s72, 2\ns_add_u32 s80, s80, s76\ns_lshl_b32 s7, s80, 7\nv_lshrrev_b32 v8, 5, v1\nv_lshl_add_u32 v8, v8, 4, s7")
    a("v_bfe_u32 v9, v1, 4, 1\nv_lshl_add_u32 v8, v9, 1, v8\nv_mul_u32_u24 v8, 1280, v8\ns_lshl_b32 s7, s85, 7\nv_lshl_add_u32 v9, v6, 3, s7\nv_add_u32 v2, v8, v9")
    def wo_load(k, n, slot):
        i, u, e = k >> 1, 2 * (k & 1) + (n >> 1), n & 1
        reg = 64 + slot * 8 + n * 2
        a(f"s_mov_b32 s7, {(64*(u >> 1) + (u & 1) + 32*(i >> 1) + 4*(i & 1) + 8*e) * 1280}\nbuffer_load_dwordx2 v[{reg}:{reg+1}], v2, {sWO}, s7 offen nt")
    def wo_finish(k, slot):
        for p in range(2):
            i, u, t = k >> 1, 2 * (k & 1) + p, 64 + slot * 8 + p * 4
            for q in range(4): a(f"v_perm_b32 v{128 + (i*2 + (q >> 1))*8 + 2*u + (q & 1)}, v{t + 2 + (q>>1)}, v{t + (q>>1)}, s{90 + (q&1)}")
    staged(8, 4, wo_w, wo_load, wo_finish)
    stamp(3)
    tag_field(58, 1); a("s_movk_i32 s97, 0xfff")
    a(f"s_lshl_b32 s94, s80, 12\ns_add_u32 s94, s94, {OP}\nv_lshlrev_b32 v59, 4, v6\nv_lshl_or_b32 v2, v7, 10, v59")
    a(f"v_add_u32 v5, {RED}, v59\ns_lshl_b32 s7, s76, 8\nv_add_u32 v3, s7, v5")
    a(f"s_mul_i32 s95, s72, 2560\ns_lshl_b32 s7, s85, 8\ns_add_u32 s95, s95, s7\ns_add_u32 s95, s95, {YP}")
    wait_lds(PRG, 1, 8)
    a("L_wo_b:")
    stamp(4)
    for r in (96, 98, 100, 102): zero2(r)
    L = loop("h1")
    for k, off in enumerate((0, 512, 256, 768)): a(f"buffer_load_dwordx4 v[{64+4*k}:{67+4*k}], v2, {sWS}, s94 offen offset:{off} sc1")
    budget_(L)
    a("s_waitcnt vmcnt(2)"); untag(64, 58); untag(68, 58); tag_acc(80, 64, 68, True); add4(64, 64, 68)
    a("s_waitcnt vmcnt(1)"); untag(72, 58)
    a("s_waitcnt vmcnt(0)"); untag(76, 58); tag_acc(80, 72, 76, False); tag_test(80); add4(68, 72, 76)
    a(f"s_and_b64 vcc, vcc, s[30:31]\ns_wqm_b64 exec, vcc\ns_cbranch_scc1 {L}\ns_mov_b64 exec, -1")
    stamp(5)
    for r in range(4): a(f"v_permlane32_swap_b32 v{64+r}, v{68+r}")
    add4(64, 64, 68)
    a("v_permlane16_swap_b32 v64, v66\nv_permlane16_swap_b32 v65, v67"); pk("add", 64, 64, 66)
    a("v_cvt_pk_bf16_f32 v72, v64, v65")
    def wo_b(i, rs=range(4)):
        for r in rs: a(f"v_mov_b32_dpp v{80+4*i+r}, v72 row_newbcast:{4*i+r} {DPPM}")
    wo_b(0); wo_b(1, (0, 1))
    fill = [(1, (2, 3)), (2, (0, 1)), (2, (2, 3)), (3, (0, 1)), (3, (2, 3))]
    for i in range(4):
        for qq in range(2):
            smf(96 + 4 * qq, 80 + 4 * i, 128 + (i * 2 + qq) * 8)
            if fill: wo_b(*fill.pop(0))
    a("s_cmp_lg_u32 s76, 0\ns_mov_b64 exec, 0xffff\nds_write_b64 v3, v[96:97]\nds_write_b64 v3, v[100:101] offset:8\ns_cbranch_scc1 L_wo_next")
    L = loop("yr")
    for w in range(4): a(f"ds_read_b128 v[{64+4*w}:{67+4*w}], v5 offset:{256*w}")
    budget_(L)
    for w in range(1, 4):
        a(f"s_waitcnt lgkmcnt({0 if diag and not few else 3-w})"); add4(64, 64, 64 + 4 * w)
    nan4(64, 68); a("v_bfi_b32 v64, s97, v58, v64"); again(L)
    a(f"buffer_store_dwordx4 v[64:67], v59, {sWS}, s95 offen sc0 sc1")
    stamp(6)
    a("L_wo_next:\ns_mov_b64 exec, -1\ns_cmp_lg_u32 s98, 0\ns_cbranch_scc1 L_wo_end")
    a("s_add_u32 s94, s94, 0x20000\ns_add_u32 s95, s95, 20480\nv_add_u32 v3, 1024, v3\nv_add_u32 v5, 1024, v5\ns_mov_b32 s98, 1\ns_waitcnt vmcnt(0)")
    wait_lds(CNT + 4, 3, 2)
    a("s_branch L_wo_b\nL_wo_end:")
    dump_stamps()
    a("s_endpgm")
    flush_cold()

    GU, DN, HF, AF = 112, 192, 16, 36
    a("L_ffn:")
    a("s_lshl_b32 s7, s85, 5\nv_lshl_add_u32 v8, v7, 2, s7\nv_mul_u32_u24 v8, 1280, v8\ns_lshl_b32 s7, s76, 8\nv_lshl_add_u32 v9, v6, 4, s7\nv_add_u32 v49, v8, v9")
    def dn_block(blk, us=range(4), burst=False):
        def ld(u, e, slot):
            r = 64 + slot * 8 + 4 * e
            a(f"s_mov_b32 s7, {(16*(u >> 1) + 2*(u & 1) + e) * 1280 + 1024*blk}\nbuffer_load_dwordx4 v[{r}:{r+3}], v49, {sWD}, s7 offen nt")
        def fin(u, slot):
            for t in range(4):
                for par in range(2): a(f"v_perm_b32 v{DN + 32*blk + 8*t + 2*u + par}, v{68 + slot*8 + t}, v{64 + slot*8 + t}, s{90+par}")
        if burst:
            for u in us: ld(u, 0, u); ld(u, 1, u)
            for u in us: a(f"s_waitcnt vmcnt({2*(us[-1] - u)})"); fin(u, u)
        elif us: staged(len(us), 2, dn_w, ld, fin)
    dn_block(0, range(4 - late))
    a("s_cmp_lg_u32 s76, 0\ns_cbranch_scc1 L_dn2")
    dn_block(1)
    a(f"L_dn2:\ns_mul_i32 s7, s76, 160\nv_lshrrev_b32 v10, 5, v1\nv_mul_u32_u24 v8, 40, v10\nv_bfe_u32 v9, v1, 4, 1\nv_lshl_add_u32 v8, v9, 2, v8\nv_add_u32 v8, s7, v8")
    a("v_mul_u32_u24 v8, 3456, v8\ns_lshl_b32 s7, s85, 6\nv_lshl_add_u32 v9, v6, 2, s7\nv_add_u32 v2, v8, v9")
    def gu_load(k, n, slot):
        (m, i), u, e = divmod(k, 5), n >> 1, n & 1
        row = 80*(u >> 1) + 8*i
        if e == 0: a(f"s_mov_b32 s7, {(row + 2*(u & 1)) * 3456}")
        a(f"buffer_load_dword v{64 + slot*8 + n}, v2, {sWU if m else sWG}, s7 offen offset:{3456*e} nt")
    def gu_finish(k, slot):
        m, i = divmod(k, 5)
        for u in range(4):
            for par in range(2): a(f"v_perm_b32 v{GU + (i*2 + par)*8 + 2*u + m}, v{65 + slot*8 + 2*u}, v{64 + slot*8 + 2*u}, s{90+par}")
    staged(10, 8, gu_w, gu_load, gu_finish)
    stamp(3)
    a("s_cmp_lt_u32 s85, 40\ns_cselect_b32 s87, s76, 0\ns_cmp_lg_u32 s87, 3\ns_cbranch_scc1 L_pf2")
    a(f"v_min_u32 v9, 53, v1\nv_lshlrev_b32 v9, 7, v9\ns_mov_b32 s7, {PF}")
    L = loop("pf")
    a(f"buffer_load_dword v8, v9, {sWS}, s7 offen sc1\ns_waitcnt vmcnt(0)\nv_cmp_ne_u32 vcc, s77, v8"); retry(L, 16)
    a("L_pf2:\ns_mul_i32 s7, s76, 40\nv_mul_u32_u24 v8, 10, v7\nv_add3_u32 v8, v8, v6, s7")
    tag_field(4, 8)
    a(f"v_lshlrev_b32 v2, 4, v8\nv_lshlrev_b32 v3, 3, v8\nv_cmp_gt_u32 vcc, 10, v6\nv_add_u32 v5, {HTAB}, v2\nv_mov_b32 v11, {DUMP - 2560}\nv_cndmask_b32 v5, v11, v5, vcc")
    a(f"buffer_load_dwordx2 v[46:47], v3, {sX}, 0 offen\nbuffer_load_dwordx2 v[44:45], v3, {sX}, 0 offen offset:1280")
    a(f"s_lshl_b32 s7, s76, 3\ns_add_u32 s7, s7, {STAT + 4}\nv_and_b32 v8, 4, v1\nv_sub_u32 v50, s7, v8\nv_cmp_gt_u32 vcc, 16, v1\nv_cndmask_b32 v50, v11, v50, vcc\nv_mov_b32 v51, {STAT}")
    a(f"s_lshl_b32 s7, s76, 8\ns_add_u32 s7, s7, {RED}\nv_lshl_add_u32 v52, v6, 4, s7\nv_lshl_add_u32 v52, v7, 11, v52")
    a(f"v_and_b32 v11, 7, v1\nv_lshl_add_u32 v8, v7, 3, v11\nv_lshlrev_b32 v8, 3, v8\nv_add_u32 v53, {RED}, v8")
    a("s_lshl_b32 s7, s76, 8\ns_add_u32 s7, s7, 1280\nv_lshl_add_u32 v54, v6, 4, s7\nv_mul_u32_u24 v8, 1280, v7\nv_sub_u32 v54, v54, v8")
    half_masks(12, 11, 8)
    for r in range(4): a(f"v_and_b32 v{12+r}, 0x3f803f80, v{12+r}")
    for r in range(20): a(f"v_mov_b32 v{HF+r}, 0x3f803f80")
    a(f"v_lshrrev_b32 v8, 2, v1\nv_mul_u32_u24 v9, 2560, v8\nv_and_b32 v10, 3, v1\nv_lshl_add_u32 v55, v10, 4, v9\ns_lshl_b32 s7, s85, 6\nv_add_u32 v55, s7, v55")
    a(f"v_cmp_gt_u32 vcc, 6, v8\nv_mov_b32 v10, {hx(OOB)}\nv_cndmask_b32 v56, v10, v55, vcc")
    a("v_and_b32 v8, 16, v1\nv_or_b32 v8, v8, v11\nv_lshrrev_b32 v9, 5, v1\nv_lshl_or_b32 v8, v9, 3, v8")
    a(f"s_lshl_b32 s7, s85, 5\nv_add_u32 v8, s7, v8\nv_lshlrev_b32 v57, 1, v8\nv_lshlrev_b32 v58, 2, v8\nv_add_u32 v58, {HTAB}, v58")
    for k in range(4): a(f"s_mov_b32 s{80+k}, {YP + 5120*k}")
    mask64(50, 0x03FF03FF03FF03FF); mask64(4, 0x00FF00FF00FF00FF); mask64(88, 0xFFFFFFFF)
    a('; the first pass runs the down projection and the final sum with every address out of range')
    for k in (32, 33, 34, 35, 95, 97): a(f"s_mov_b32 s{k}, {hx(OOB)}")
    c1 = -2.0 * 0.7978845608028654 * 1.4426950408889634
    a(f"s_mov_b32 s96, {hx(f2u(c1 * 0.044715))}\nv_mov_b32 v59, {hx(f2u(c1))}")
    a("s_waitcnt vmcnt(0)"); unpack(40, 41, 46); unpack(42, 43, 47)
    for r in (96, 98, 100, 102): zero2(r)
    wait_lds(PRG + 4, 1, 8)
    a(f"v_mov_b32 v0, {PRG + 4}\nL_ffn_b:\nds_read_b32 v8, v0"); budget_("L_ffn_b")
    a("s_waitcnt lgkmcnt(0)\nv_cmp_ne_u32 vcc, 1, v8"); again("L_ffn_b")
    if pre2: a(f"s_sleep {pre2}")
    stamp(4)
    L = loop("h2")
    a("s_mov_b64 exec, s[50:51]")
    for k in range(8): a(f"buffer_load_dwordx4 v[{64+4*k}:{67+4*k}], v2, {sWS}, s{80+(k>>1)} offen offset:{2560*(k&1)} sc1")
    for k in range(8):
        a(f"s_waitcnt vmcnt({7-k})"); untag(64 + 4 * k, 4); add4(108, 108 if k else 40, 64 + 4 * k)
        if k & 1: tag_acc(8, 60 + 4 * k, 64 + 4 * k, k == 1)
    tag_test(8)
    a("v_cvt_pk_bf16_f32 v10, v108, v109\nv_cvt_pk_bf16_f32 v11, v110, v111")
    a("s_mov_b64 exec, -1")
    def gu_b(i, rs=range(4)):
        for r in rs: a(f"v_mov_b32_dpp v{HF+4*i+r}, v{10+(r&1)} row_newbcast:{2*i+(r>>1)} row_mask:0xf bank_mask:0x5")
    gu_b(0); retry(L, gentle=16); stamp(5); gu_b(1, (0, 1))
    fill = [F(gu_b, 1, (2, 3))] + [F(gu_b, i, rs) for i in (2, 3, 4) for rs in ((0, 1), (2, 3))]
    fill += [F(a, "ds_write_b128 v5, v[108:111]")] + [F(a, f"v_mov_b64 v[{64+8*k}:{65+8*k}], 0\nv_mov_b64 v[{68+8*k}:{69+8*k}], 0") for k in range(4)]
    for i in range(5):
        for q in range(3):
            if q == 0: mfma(104, HF + 4 * i, HF + 4 * i, i == 0)
            else: smf(92 + 4 * q, HF + 4 * i, GU + (i * 2 + q - 1) * 8)
            if fill: fill.pop(0)()
    a("s_mov_b64 exec, s[88:89]\nds_write_b32 v50, v104\nds_write_b64 v52, v[96:97]\nds_write_b64 v52, v[100:101] offset:8\ns_mov_b64 exec, -1")
    stamp(6)
    L = loop("gr")
    a("ds_read_b128 v[104:107], v51\nds_read_b128 v[108:111], v51 offset:16")
    a("ds_read2_b64 v[96:99], v53 offset0:0 offset1:32\nds_read2_b64 v[100:103], v53 offset0:64 offset1:96")
    budget_(L)
    a("s_cmp_eq_u32 s98, 0\ns_cbranch_scc1 L_cs\nL_csd:")
    cold.append("L_cs:\nv_add_u32 v8, 2048, v53\nds_read2_b64 v[40:43], v8 offset0:0 offset1:32\nds_read2_b64 v[8:11], v8 offset0:64 offset1:96\ns_waitcnt lgkmcnt(0)\n"
                "v_pk_add_f32 v[40:41], v[40:41], v[42:43]\nv_pk_add_f32 v[8:9], v[8:9], v[10:11]\nv_pk_add_f32 v[62:63], v[40:41], v[8:9]\ns_branch L_csd")
    a(f"s_waitcnt lgkmcnt({0 if diag and not few else 2})"); add4(104, 104, 108); pk("add", 104, 104, 106)
    a("v_mul_f32 v104, s92, v104\nv_mul_f32 v105, s92, v105\nv_fma_f32 v105, -v104, v104, v105\nv_max_f32 v106, 0, v105\nv_add_f32 v106, s93, v106\nv_rsq_f32 v106, v106")
    a("s_waitcnt lgkmcnt(0)"); add4(96, 96, 100); pk("add", 96, 96, 98)
    a("v_pk_fma_f32 v[96:97], v[62:63], v[104:105], v[96:97] op_sel_hi:[1,0,1] neg_lo:[0,1,0] neg_hi:[0,1,0]")
    a("v_add_f32 v105, v105, v96\nv_cmp_u_f32 vcc, v105, v97\nv_pk_mul_f32 v[96:97], v[96:97], v[106:107] op_sel_hi:[1,0]")
    a("v_mul_f32 v98, v96, v96\nv_fma_f32 v98, v98, s96, v59\nv_mul_f32 v98, v98, v96\nv_exp_f32 v98, v98\nv_mul_f32 v96, v96, v97")
    again(L)
    a("v_add_f32 v98, 1.0, v98\nv_rcp_f32 v98, v98\nds_read_b32 v48, v58\nv_mul_f32 v96, v96, v98\ns_cmp_eq_u32 s98, 0")
    a(f"v_mov_b32_dpp v97, v96 quad_perm:[1,1,3,3] {DPPM}\nv_cvt_pk_bf16_f32 v96, v96, v97")
    def dn_a(bank): return "\n".join(f"v_mov_b32_dpp v{AF+r}, v96 row_newbcast:{2*r} row_mask:0xf bank_mask:{bank}" for r in range(4))
    a("s_cbranch_scc1 L_keep\nL_kept:\ns_cmp_lg_u32 s76, 0")
    cold.append("L_keep:\n" + dn_a("0xa") + "\ns_branch L_kept")
    a(dn_a("0x5"))
    for t in range(4): smf(64 + 4 * t, AF, DN + 8 * t)
    a("s_cbranch_scc1 L_dn3")
    for t in range(4, 8): smf(64 + 4 * t, AF, DN + 8 * t)
    a("L_dn3:\ns_mov_b32 exec_hi, 0")
    for blk in range(2):
        if blk: a("s_cbranch_scc1 L_dn4")
        for t in range(4): a(f"v_cvt_pk_bf16_f32 v{96+4*blk+t}, v{64+16*blk+4*t}, v{65+16*blk+4*t}")
        a(f"buffer_store_dwordx4 v[{96+4*blk}:{99+4*blk}], v54, {sWS}, s95 offen offset:{1024*blk} sc0 sc1")
    a("L_dn4:\ns_mov_b64 exec, -1")
    stamp(7)
    a("s_cmp_lg_u32 s87, 3\ns_cbranch_scc1 L_ffn_next")
    a("; back off before the first poll: a line read before its writer arrives slows that write down")
    if pre3: a(f"s_sleep {pre3}")
    L = loop("h3")
    for k in range(4): a(f"buffer_load_dwordx4 v[{64+4*k}:{67+4*k}], {'v56' if k == 3 else 'v55'}, {sWS}, s{32+k} offen sc1")
    for k in range(4):
        a(f"s_waitcnt vmcnt({3-k})" + (" lgkmcnt(0)" if k == 0 else "")); mfma(80, 64 + 4 * k, 12, k == 0)
    a("v_permlane32_swap_b32 v80, v81\nv_permlane32_swap_b32 v82, v83\nv_add_f32 v80, v80, v81\nv_add_f32 v82, v82, v83\nv_cmp_u_f32 vcc, v80, v82")
    a("v_permlane16_swap_b32 v80, v82\nv_add_f32 v80, v80, v48\nv_add_f32 v80, v80, v82\nv_cvt_pk_bf16_f32 v80, v80, v80")
    retry(L)
    stamp(8)
    a(f"s_mov_b64 exec, s[4:5]\nbuffer_store_short v80, v57, {sOUT}, s97 offen\ns_mov_b64 exec, -1")
    stamp(9)
    if not epe:
        a("s_cmp_lg_u32 s85, 0\ns_cbranch_scc1 L_ffn_next")
        a(f"v_mov_b32 v8, s77\ns_mov_b64 exec, 1\nbuffer_store_dword v8, v61, {sWS}, s97 offen\ns_mov_b64 exec, -1")
    a("L_ffn_next:\ns_cmp_lg_u32 s98, 0\ns_cbranch_scc1 L_ffn_end")
    if epe:
        a("; every wave of the launch has read the epoch by now (the first batch's y depends on all of them): advance it")
        a("s_or_b32 s7, s85, s76\ns_cbranch_scc1 L_noep\nv_lshlrev_b32 v64, 4, v1")
        for r in range(4): a(f"v_mov_b32 v{8+r}, s77")
        a(f"s_mov_b64 exec, 0xff\nbuffer_store_dwordx4 v[8:11], v64, {sWS}, 0 offen sc0 sc1\ns_mov_b64 exec, -1\ns_waitcnt vmcnt(0)\nL_noep:")
    for k in range(4): a(f"s_add_u32 s{80+k}, s{80+k}, 20480\ns_mov_b32 s{32+k}, {DP + 40960*k}")
    a(f"s_mul_i32 s95, s85, 2560\ns_add_u32 s95, s95, {DP}\ns_mov_b32 s97, 0\ns_mov_b32 s98, 1\ns_mov_b32 s88, 0xffff")
    a("v_add_u32 v5, 2560, v5\nv_add_u32 v50, 128, v50\nv_add_u32 v51, 128, v51\nv_add_u32 v52, 1024, v52\nv_add_u32 v53, 1024, v53")
    unpack(40, 41, 44); unpack(42, 43, 45)
    for r in (96, 98, 100, 102): zero2(r)
    wait_lds(PRG + 8, 1, 1)
    a("; w_down comes in while the attention output is still being projected")
    if late:
        a("s_waitcnt vmcnt(0)"); dn_block(0, range(4 - late, 4), True); stamp(3)
    a(f"v_mov_b32 v0, {HEARD}")
    a("s_branch L_ffn_b\nL_ffn_end:")
    dump_stamps()
    a("L_exit:\ns_endpgm")
    flush_cold()
    a("L_code_end:")

    hdr = open("cdna_kernels/" + NAME + ".s.ref").read().split("; Override launch")[0]
    out = [hdr.rstrip(), f"; @launch grid=(256,1,1) block=(512,1,1) lds={LDSZ}", '.amdgcn_target "amdgcn-amd-amdhsa--gfx950"']
    out.append("; One persistent launch, 256 workgroups (one per CU) of 8 waves. Workgroup id w: group w & 7, member w >> 3;\n;   tail: partial o -> projection -> partial y -> h, LayerNorm, gate / up, GELU, down -> partial out -> sum + h.\n; The clock is read only to compare progress between workgroups (in-flight depth); no value depends on it.")
    out += a.finish()
    out.append(f""".section .rodata,"a"
.p2align 6
.amdhsa_kernel {kname}
  .amdhsa_next_free_vgpr 256
  .amdhsa_next_free_sgpr 102
  .amdhsa_accum_offset 256
  .amdhsa_group_segment_fixed_size 0
  .amdhsa_kernarg_size 96
  .amdhsa_user_sgpr_count 2
  .amdhsa_user_sgpr_kernarg_segment_ptr 1
  .amdhsa_system_sgpr_workgroup_id_x 1
  .amdhsa_float_denorm_mode_32 3
.end_amdhsa_kernel""")
    return "\n".join(out) + "\n"

if __name__ == "__main__":
    kw = eval("dict(" + (sys.argv[2] if len(sys.argv) > 2 else "") + ")")
    open(sys.argv[1], "w").write(gen(**kw))
```
